```python
import torch

def _softmax(x, axis=-1):
    return torch.softmax(x, dim=axis)
def _gelu(x):
    return torch.nn.functional.gelu(x, approximate="tanh")
def _silu(x):
    return torch.nn.functional.silu(x)
def _sigmoid(x):
    return torch.sigmoid(x)
def _layernorm(x, axis=-1, eps=1e-5):
    m = x.mean(dim=axis, keepdim=True)
    v = x.var(dim=axis, keepdim=True, unbiased=False)
    return (x - m) / torch.sqrt(v + eps)
def _scatter_add(tgt, idx, src, axis=0):
    return tgt.clone().index_add_(axis, idx, src)
def _segment_sum(src, seg, n):
    out = torch.zeros((n,) + src.shape[1:], dtype=src.dtype)
    return out.index_add_(0, seg, src)
def _pad(x, pw):
    flat = tuple(v for pair in reversed(pw) for v in pair)
    return torch.nn.functional.pad(x, flat)

kernel_name = 'sequential_preLN__mha_block_cached__glu_gated_swiglu__decode'

def setup_inputs():

    _w = (lambda a: (lambda t: t.to(torch.bfloat16) if t.is_floating_point() else t)(torch.as_tensor(a)))
    def _A_setup():
        B, Sq, D = 1, 1, 576
        H, Sk, Dh = 32, 8192, 128
        return {
            "x": _w((lambda *s: torch.randn(*s, dtype=torch.bfloat16) * 0.05)(B, Sq, D)),
            "k_cache": _w((lambda *s: torch.randn(*s, dtype=torch.bfloat16) * 1.6)(B, H, Sk, Dh)),
            "v_cache": _w((lambda *s: torch.randn(*s, dtype=torch.bfloat16) * 0.8)(B, H, Sk, Dh)),
            "wq": _w((lambda *s: torch.randn(*s, dtype=torch.bfloat16) * 1.6)(D, H * Dh) * (D ** -0.5)),
            "wo": _w((lambda *s: torch.randn(*s, dtype=torch.bfloat16) * 0.8)(H * Dh, D) * ((H * Dh) ** -0.5)),
        }
    _A_in = _A_setup()

    def _B_setup():
        B, S, D, F = 1, 1, 576, 4608
        return {
            "x": _w((lambda *s: torch.randn(*s, dtype=torch.bfloat16) * 0.05)(B, S, D)),
            "w1": _w((lambda *s: torch.randn(*s, dtype=torch.bfloat16) * 0.4)(D, F) * (2.0 / D) ** 0.5),
            "w3": _w((lambda *s: torch.randn(*s, dtype=torch.bfloat16) * 0.4)(D, F) * (2.0 / D) ** 0.5),
            "w2": _w((lambda *s: torch.randn(*s, dtype=torch.bfloat16) * 0.4)(F, D) * (2.0 / F) ** 0.5),
        }
    _B_in = _B_setup()

    return {
        "A_x": _A_in["x"],
        "A_k_cache": _A_in["k_cache"],
        "A_v_cache": _A_in["v_cache"],
        "A_wq": _A_in["wq"],
        "A_wo": _A_in["wo"],
        "B_x": _B_in["x"],
        "B_w1": _B_in["w1"],
        "B_w3": _B_in["w3"],
        "B_w2": _B_in["w2"],
    }

def reference(A_x, A_k_cache, A_v_cache, A_wq, A_wo, B_x, B_w1, B_w3, B_w2):
    def _A_ref(x, k_cache, v_cache, wq, wo):
        B, Sq, D = x.shape
        H, Dh = 32, 128
        q = (lambda x, *d: x.permute(*d))((x @ wq).reshape(B, Sq, H, Dh), 0, 2, 1, 3)
        scores = torch.einsum("bhqd,bhkd->bhqk", q, k_cache) * (Dh ** -0.5)
        p = _softmax(scores, axis=-1)
        o = torch.einsum("bhqk,bhkd->bhqd", p, v_cache)
        return (lambda x, *d: x.permute(*d))(o, 0, 2, 1, 3).reshape(B, Sq, H * Dh) @ wo

    def _B_ref(x, w1, w3, w2):
        gate = torch.einsum("bsd,df->bsf", x, w1)
        up = torch.einsum("bsd,df->bsf", x, w3)
        h = _silu(gate) * up
        out = torch.einsum("bsf,fd->bsd", h, w2)
        return out

    x = A_x
    h = x + _A_ref(_layernorm(x, axis=-1), A_k_cache, A_v_cache, A_wq, A_wo)
    h2 = h + _B_ref(_layernorm(h, axis=-1), B_w1, B_w3, B_w2)
    return h2
```

```python
import re
TRANS = ("v_exp_f32", "v_log_f32", "v_rcp_f32", "v_rsq_f32", "v_sqrt_f32", "v_sin_f32", "v_cos_f32")
BIG = 99

def regs_of(tok):
    tok = tok.strip()
    neg = tok.lstrip("-")
    if neg.startswith("abs(") and neg.endswith(")"): neg = neg[4:-1]
    if neg.startswith("|") and neg.endswith("|"): neg = neg[1:-1]
    m = re.fullmatch(r"([vsa])(\d+)", neg)
    if m: return [(m.group(1), int(m.group(2)))]
    m = re.fullmatch(r"([vsa])\[(\d+):(\d+)\]", neg)
    if m: return [(m.group(1), i) for i in range(int(m.group(2)), int(m.group(3)) + 1)]
    if neg == "vcc": return [("s", "vcc")]
    if neg == "exec": return [("s", "exec")]
    return []

class Ins:
    def __init__(self, text):
        self.text = text
        body = text.split(";")[0].strip()
        parts = body.split(None, 1)
        self.op = parts[0]
        rest = parts[1] if len(parts) > 1 else ""
        ops = [o.strip() for o in re.split(r",(?![^\[]*\])", rest)] if rest else []
        mods = ""
        if ops:
            last = ops[-1].split(None, 1)
            ops[-1] = last[0]
            mods = last[1] if len(last) > 1 else ""
        self.ops = ops; self.mods = mods
        op = self.op
        self.dpp = "_dpp" in op or re.search(r"\b(row_|quad_perm)", mods) is not None
        self.mfma = op.startswith("v_mfma")
        self.dot = op.startswith("v_dot")
        self.perml = op.startswith("v_permlane")
        self.valu = op.startswith("v_") and not self.mfma
        self.trans = any(op.startswith(t) for t in TRANS)
        self.vmem = op.startswith(("buffer_", "global_", "flat_"))
        self.ds = op.startswith("ds_")
        self.salu = op.startswith("s_")
        self.lane_read = op.startswith(("v_readfirstlane", "v_readlane"))
        R = [regs_of(o) for o in ops]
        W = []; S = []
        if self.valu or self.mfma:
            W = list(R[0]); S = [r for x in R[1:] for r in x]
            if self.perml: W += R[1]; S += R[0]
            if op.startswith(("v_fmac", "v_dot2c", "v_pk_fmac")): S += R[0]
            if op.startswith(("v_add_co", "v_addc_co", "v_sub_co")): W += R[1]; S = [r for x in R[2:] for r in x]
            if op.startswith("v_cndmask") and len(ops) == 3: S += [("s", "vcc")]
            if op.startswith("v_cmp") and len(ops) == 2: W = [("s", "vcc")]; S = [r for x in R for r in x]
        elif self.vmem:
            store = "store" in op or ("atomic" in op)
            if op.startswith("buffer_"):
                if "lds" in mods.split(): S = [r for x in R for r in x]
                elif store:
                    S = [r for x in R for r in x]
                    if "atomic" in op and "sc0" in mods.split(): W = list(R[0])
                else:
                    W = list(R[0]); S = [r for x in R[1:] for r in x]
                    if "d16" in op: S += R[0]
            else:
                if store: S = [r for x in R for r in x]
                else: W = list(R[0]); S = [r for x in R[1:] for r in x]
            self.wide_store = store and ("x3" in op or "x4" in op)
            self.store_data = (R[0] if op.startswith("buffer_") else R[1]) if store else []
        elif self.ds:
            if op.startswith(("ds_read", "ds_bpermute", "ds_permute", "ds_swizzle")) or "_rtn" in op:
                W = list(R[0]); S = [r for x in R[1:] for r in x]
            else: S = [r for x in R for r in x]
        elif self.salu:
            if op.startswith(("s_cmp", "s_cbranch", "s_branch", "s_waitcnt", "s_nop", "s_barrier", "s_sleep", "s_endpgm", "s_setprio", "s_bitcmp")):
                S = [r for x in R for r in x]
            elif R:
                W = list(R[0]); S = [r for x in R[1:] for r in x]
        self.W = W; self.S = S
        if self.mfma:
            self.A = R[1]; self.B = R[2]; self.C = R[3]
            assert "16x16x32" in op, "only the 4-pass MFMA is modelled"
        self.states = 1
        if op == "s_nop": self.states = int(ops[0], 0) + 1

class State:
    def __init__(self): self.ev = {}
    def copy(self):
        s = State(); s.ev = {k: dict(v) for k, v in self.ev.items()}; return s
    def age(self, n):
        for k in list(self.ev):
            d = self.ev[k]
            for e in list(d):
                d[e] += n
                if d[e] > 24: del d[e]
            if not d: del self.ev[k]
    def merge(self, o):
        ch = False
        for k, d in o.ev.items():
            m = self.ev.setdefault(k, {})
            for e, a in d.items():
                if e not in m or a < m[e]: m[e] = a; ch = True
        return ch
    def get(self, r, pred):
        d = self.ev.get(r)
        if not d: return BIG
        return min([a for e, a in d.items() if pred(e)] or [BIG])

def need(ins, st):
    n = 0
    def req(r, pred, w):
        nonlocal n
        a = st.get(r, pred)
        if a < w: n = max(n, w - a)
    isv = lambda e: e[0] in ("valu", "trans", "dot")
    vs = [r for r in ins.S if r[0] in "va"]; vw = [r for r in ins.W if r[0] in "va"]
    ss = [r for r in ins.S if r[0] == "s"]
    if ins.dpp or ins.perml:
        for r in vs: req(r, isv, 2)
    if ins.valu and not ins.trans:
        for r in vs: req(r, lambda e: e[0] == "trans", 1)
    if ins.lane_read:
        for r in vs: req(r, isv, 1)
    if ins.mfma:
        for r in vs: req(r, isv, 2)
        for r in ins.A + ins.B: req(r, lambda e: e[0] == "xdl", 8)
        for r in ins.C: req(r, lambda e: e[0] == "xdl" and e[1] != tuple(ins.C), 6)
        for r in vw: req(r, lambda e: e[0] == "xdl" and e[1] != tuple(ins.W), 8)
    else:
        for r in vs + vw: req(r, lambda e: e[0] == "xdl", 8)
    if ins.valu:
        for r in vw: req(r, lambda e: e[0] == "xdlC", 3)
        for r in vw: req(r, lambda e: e[0] == "wstore", 2)
        for r in ss: req(r, lambda e: e[0] == "vsgpr", 2)
    elif vw:
        for r in vw: req(r, lambda e: e[0] == "wstore", 1)
    if ins.vmem:
        for r in ss: req(r, lambda e: e[0] == "vsgpr", 5)
    if ins.dot:
        c = regs_of(ins.ops[3]) if len(ins.ops) > 3 else regs_of(ins.ops[0])
        ab = regs_of(ins.ops[1]) + regs_of(ins.ops[2])
        for r in ab: req(r, lambda e: e[0] == "dot", 3)
        for r in c + vw: req(r, lambda e: e[0] == "dot" and e[1] != ins.op, 3)
    else:
        for r in vs + vw: req(r, lambda e: e[0] == "dot", 3)
    return n

def apply(ins, st):
    st.age(ins.states)
    for r in ins.W:
        d = st.ev.setdefault(r, {})
        keep = {e: a for e, a in d.items() if e[0] in ("xdlC", "wstore")}
        d.clear(); d.update(keep)
        if r[0] in "va":
            if ins.mfma: d[("xdl", tuple(ins.W))] = 0
            elif ins.trans: d[("trans",)] = 0
            elif ins.dot: d[("dot", ins.op)] = 0
            elif ins.valu: d[("valu",)] = 0
        elif ins.valu: d[("vsgpr",)] = 0
    if ins.mfma:
        for r in ins.C: st.ev.setdefault(r, {})[("xdlC",)] = 0
    if ins.vmem and getattr(ins, "wide_store", False):
        for r in ins.store_data: st.ev.setdefault(r, {})[("wstore",)] = 0

class Asm:
    def __init__(self): self.items = []
    def __call__(self, text):
        for line in text.split("\n"):
            line = line.strip()
            if not line: continue
            if line.endswith(":") or line.startswith((".", ";")): self.items.append(line)
            else: self.items.append(Ins(line))
    def label(self, n): self.items.append(n + ":")
    def finalize(self):
        at_label = {}
        pads = {}
        for _ in range(6):
            st = State(); changed = False; dead = False
            for i, it in enumerate(self.items):
                if isinstance(it, str):
                    if it.endswith(":") and not it.startswith((".", ";")):
                        l = it[:-1]
                        if dead: st = State(); dead = False
                        if l in at_label: st.merge(at_label[l])
                    continue
                n = need(it, st)
                if n > pads.get(i, 0): pads[i] = n; changed = True
                st.age(pads.get(i, 0))
                apply(it, st)
                if it.op.startswith(("s_cbranch", "s_branch")):
                    l = it.ops[0]
                    if at_label.setdefault(l, State()).merge(st): changed = True
                    if it.op == "s_branch": dead = True
                if it.op in ("s_endpgm", "s_setpc_b64"): dead = True
            if not changed: break
        out = []; nn = 0
        for i, it in enumerate(self.items):
            if isinstance(it, str): out.append(it); continue
            p = pads.get(i, 0)
            if p: out.append(f"    s_nop {p-1}"); nn += p
            out.append("    " + it.text)
        self.nops = nn
        return "\n".join(out) + "\n"
```

```python
import sys, struct
sys.path.insert(0, "work")
from asmlib import Asm

KNAME = "sequential_preLN__mha_block_cached__glu_gated_swiglu__decode_kernel"
HEADER = open("sequential_preLN__mha_block_cached__glu_gated_swiglu__decode.s.ref").read().split("; Override launch")[0]

def f32(x): return "0x%08x" % struct.unpack("<I", struct.pack("<f", x))[0]

EPOCH, O1, ML, Z2, P3, STAMP = 0, 0x10000, 0x30000, 0x32000, 0x40000, 0x100000
L_O, L_ML, L_Q, L_MW, L_ACC, L_ST, L_H, L_W = 0, 512, 1024, 1536, 1600, 1856, 2048, 4608

def gen(Wn=4, WA=8, nK=18, EW=8, jB2=9, pol="nt", wpol="nt", diag=0, codepf=4, sleep2=0, sleep3=0):
    a = Asm()
    LANE = "v0"; MASK = [4, 5, 6, 7]; Q = 8; D = 12; B = [16, 20]
    VKV, VW, VM, VL, VF, VG, VTAG = "v24", "v25", "v26", "v27", "v1", "v2", "v3"
    T = [28 + i for i in range(8)]
    S = 36
    SLOT0, NSLOT = 52, 29
    sK, sV, sWQ, sX, sWS, sG, sOUT = "s[32:35]", "s[36:39]", "s[40:43]", "s[44:47]", "s[48:51]", "s[52:55]", "s[56:59]"
    WAVE, HEAD, SPLIT, TAG = "s28", "s29", "s30", "s31"
    SCALE, LOG2E, HI, TMASK, TLOW, ROLE, CNT, EP1 = "s64", "s65", "s66", "s67", "s68", "s69", "s70", "s71"
    v4 = lambda r: f"v[{r}:{r+3}]"
    stamps = []
    def stamp(i):
        if diag: a(f"s_memrealtime s[{80+2*i}:{81+2*i}]")
    def rbf(dst, src):
        a(f"v_cvt_pk_bf16_f32 {dst}, {src}, {src}"); a(f"v_and_b32 {dst}, {HI}, {dst}")
    def dpp(op, d, s0, s1, ctl): a(f"{op}_dpp {d}, {s0}, {s1} {ctl} row_mask:0xf bank_mask:0xf")
    def allred16(regs, op="v_add_f32", steps=(8, 4, 2, 1)):
        for st in steps:
            for r in regs: dpp(op, r, r, r, f"row_ror:{st}")
    def allred_rows(r, t, op="v_add_f32"):
        a(f"v_mov_b32 {t}, {r}"); a(f"v_permlane16_swap_b32 {r}, {t}"); a(f"{op} {r}, {r}, {t}")
        a(f"v_mov_b32 {t}, {r}"); a(f"v_permlane32_swap_b32 {r}, {t}"); a(f"{op} {r}, {r}, {t}")
    def rows_scatter(r0, r1, r2, r3):
        a(f"v_permlane16_swap_b32 {r0}, {r1}"); a(f"v_permlane16_swap_b32 {r2}, {r3}")
        a(f"v_add_f32 {r0}, {r0}, {r1}"); a(f"v_add_f32 {r2}, {r2}, {r3}")
        a(f"v_permlane32_swap_b32 {r0}, {r2}"); a(f"v_add_f32 {r0}, {r0}, {r2}")
    def selector(b, src):
        for j in range(4): a(f"v_and_b32 v{b+j}, {src}, v{MASK[j]}")
    def mfma(A_, B_, first=False): a(f"v_mfma_f32_16x16x32_bf16 {v4(D)}, {v4(A_)}, {v4(B_)}, {'0' if first else v4(D)}")
    def setexec(m):
        a(f"s_mov_b32 exec_lo, {hex(m & 0xffffffff)}"); a(f"s_mov_b32 exec_hi, {hex(m >> 32)}")
    def tagcheck(quads, t0, t1, t2):
        tmp = []
        first = True
        for qd in quads:
            a(f"v_bitop3_b32 {t1}, v{qd}, v{qd+1}, {TAG} bitop3:0x7e")
            a(f"v_bitop3_b32 {t2}, v{qd+2}, v{qd+3}, {TAG} bitop3:0x7e")
            if first: a(f"v_or_b32 {t0}, {t1}, {t2}"); first = False
            else: a(f"v_or3_b32 {t0}, {t0}, {t1}, {t2}")
        a(f"v_and_b32 {t0}, {TLOW}, {t0}")
        a(f"v_cmp_ne_u32 vcc, 0, {t0}")
    def poll(name, loads, quads, sleep):
        a(f"s_mov_b32 {CNT}, 0x8000")
        a.label(name)
        for l in loads: a(l)
        a("s_waitcnt vmcnt(0)")
        tagcheck(quads, f"v{T[0]}", f"v{T[1]}", f"v{T[2]}")
        a(f"s_cbranch_vccz {name}_ok")
        if sleep: a(f"s_sleep {sleep}")
        a(f"s_sub_u32 {CNT}, {CNT}, 1"); a(f"s_cmp_lg_u32 {CNT}, 0"); a(f"s_cbranch_scc1 {name}")
        a.label(name + "_ok")

    a.label(KNAME)
    a("s_cmp_ge_u32 s2, 256"); a("s_cbranch_scc1 L_exit")
    stamp(0)
    a("s_load_dwordx16 s[4:19], s[0:1], 0"); a("s_load_dwordx8 s[20:27], s[0:1], 64")
    a("v_lshrrev_b32 v1, 6, v0"); a("v_and_b32 v0, 63, v0")
    a(f"v_readfirstlane_b32 {WAVE}, v1")
    a(f"s_and_b32 {HEAD}, s2, 7"); a(f"s_lshl_b32 {HEAD}, {HEAD}, 2"); a("s_bfe_u32 s3, s2, 0x20003"); a(f"s_add_u32 {HEAD}, {HEAD}, s3")
    a(f"s_lshr_b32 {SPLIT}, s2, 5")
    a(f"s_lshl_b32 s60, {HEAD}, 21"); a(f"s_lshl_b32 s61, {SPLIT}, 18"); a("s_add_u32 s62, s60, s61")
    a(f"s_lshl_b32 s63, {HEAD}, 8")
    a("s_mov_b32 s34, 0x40000"); a("s_mov_b32 s35, 0x20000"); a("s_mov_b32 s38, 0x40000"); a("s_mov_b32 s39, 0x20000")
    a(f"s_sub_u32 s42, {576*8192}, s63"); a("s_mov_b32 s43, 0x20000")
    a("s_movk_i32 s46, 1152"); a("s_mov_b32 s47, 0x20000")
    a(f"v_lshlrev_b32 v{T[0]}, 4, {LANE}")
    a(f"s_lshl_b32 s3, {WAVE}, 10"); a(f"v_add_u32 {VKV}, s3, v{T[0]}")
    a(f"v_lshrrev_b32 v{T[1]}, 4, {LANE}")
    a(f"v_mul_u32_u24 v{T[2]}, 18, v{T[1]}")
    a(f"s_mul_i32 s3, {WAVE}, 72"); a(f"v_add_u32 v{T[2]}, s3, v{T[2]}")
    a(f"v_and_b32 v{T[3]}, 0xf0, v{T[0]}")
    a(f"v_lshl_add_u32 {VW}, v{T[2]}, 13, v{T[3]}")
    a(f"v_lshlrev_b32 v{T[2]}, 1, v{T[2]}")
    a("s_mov_b32 s60, 0"); a("s_mov_b32 s61, 0")
    a("s_waitcnt lgkmcnt(0)")
    a("s_add_u32 s32, s6, s62"); a("s_addc_u32 s33, s7, 0")
    a("s_mov_b32 s44, s4"); a("s_mov_b32 s45, s5")
    a("s_add_u32 s40, s10, s63"); a("s_addc_u32 s41, s11, 0")
    a("s_add_u32 s36, s8, s62"); a("s_addc_u32 s37, s9, 0")
    a(f"s_cmp_eq_u32 {WAVE}, 8"); a("s_cbranch_scc1 L_helper")

    def late_setup():
        a(f"s_load_dword {EP1}, s[26:27], {EPOCH}")
        a("s_mov_b32 s48, s26"); a("s_mov_b32 s49, s27"); a("s_mov_b32 s50, 0x200000"); a("s_mov_b32 s51, 0x20000")
        a("s_mov_b32 s56, s22"); a("s_mov_b32 s57, s23"); a("s_movk_i32 s58, 1152"); a("s_mov_b32 s59, 0x20000")
        a(f"s_mov_b32 {SCALE}, {f32(128 ** -0.5)}"); a(f"s_mov_b32 {LOG2E}, {f32(1.4426950408889634)}")
        a(f"s_mov_b32 {HI}, 0xffff0000"); a(f"s_mov_b32 {TMASK}, 0xfffff000"); a(f"s_movk_i32 {TLOW}, 0xfff")
        a(f"v_and_b32 v{T[4]}, 1, {LANE}"); a(f"v_lshlrev_b32 v{T[4]}, 4, v{T[4]}")
        a(f"v_mov_b32 v{T[5]}, 0xffff"); a(f"v_lshlrev_b32 v{T[5]}, v{T[4]}, v{T[5]}")
        a(f"v_bfe_u32 v{T[4]}, {LANE}, 1, 2")
        for j in range(4):
            a(f"v_cmp_eq_u32 vcc, {j}, v{T[4]}"); a(f"v_cndmask_b32 v{MASK[j]}, 0, v{T[5]}, vcc")
        u = late_setup.n = getattr(late_setup, "n", 0) + 1
        a("s_mov_b32 s55, 0x20000")
        a("s_cmp_lt_u32 s2, 144"); a(f"s_cbranch_scc0 L_r1_{u}")
        a(f"s_and_b32 {ROLE}, s2, 0xf0"); a("s_and_b32 s3, s2, 7"); a("s_lshl_b32 s3, s3, 1"); a(f"s_or_b32 {ROLE}, {ROLE}, s3")
        a("s_bfe_u32 s3, s2, 0x10003"); a(f"s_or_b32 {ROLE}, {ROLE}, s3")
        a(f"s_mul_i32 s3, {ROLE}, {32*1152}"); a("s_add_u32 s52, s20, s3"); a("s_addc_u32 s53, s21, 0")
        a(f"s_mov_b32 s54, {32*1152}"); a("s_mov_b32 s63, 0x40000000")
        a("s_movk_i32 s62, 4608"); a(f"s_lshl_b32 s3, {WAVE}, 7")
        a(f"s_branch L_r2_{u}")
        a.label(f"L_r1_{u}")
        a(f"s_sub_u32 {ROLE}, s2, 144"); a(f"s_lshr_b32 {ROLE}, {ROLE}, 3")
        a("s_and_b32 s3, s2, 7"); a(f"s_mul_i32 s3, s3, {512*1152}"); a(f"s_lshl_b32 s62, {ROLE}, 7")
        a(f"s_sub_u32 s54, {512*1152}, s62"); a("s_add_u32 s3, s3, s62")
        a("s_cmp_lt_u32 s2, 216"); a("s_cselect_b32 s54, s54, 0"); a("s_cselect_b32 s3, s3, 0")
        a("s_add_u32 s52, s12, s3"); a("s_addc_u32 s53, s13, 0")
        a("s_movk_i32 s63, 4608"); a("s_movk_i32 s62, 9216"); a(f"s_mul_i32 s3, {WAVE}, {64*1152}")
        a.label(f"L_r2_{u}")
        a(f"v_lshrrev_b32 v{T[4]}, 3, {LANE}"); a(f"v_mul_lo_u32 v{T[4]}, v{T[4]}, s62")
        a(f"v_and_b32 v{T[5]}, 7, {LANE}"); a(f"v_lshl_add_u32 v{T[4]}, v{T[5]}, 4, v{T[4]}")
        a(f"v_add_u32 {VG}, s3, v{T[4]}")
    def tag_setup():
        a(f"s_add_u32 {EP1}, {EP1}, 1"); a(f"s_and_b32 {TAG}, {EP1}, 0xfff"); a(f"v_mov_b32 {VTAG}, {TAG}")

    order = []; free = list(range(NSLOT)); slot_of = {}
    def alloc(item):
        s = free.pop(0); slot_of[item] = SLOT0 + 4 * s; return slot_of[item]
    def release(item): free.append((slot_of[item] - SLOT0) // 4)
    def issue(item):
        k, i = item
        if k == "k" or k == "v":
            r = alloc(item)
            if item == ("v", 0): a("s_mov_b32 s60, 0")
            a(f"buffer_load_dwordx4 {v4(r)}, {VKV}, {sK if k == 'k' else sV}, s60 offen {pol}")
            a("s_addk_i32 s60, 0x2000")
        elif k == "w":
            r = alloc(item)
            a(f"buffer_load_dwordx4 {v4(r)}, {VW}, {sWQ}, s61 offen {wpol}")
            a("s_addk_i32 s61, 0x2000")
        elif k == "g":
            r = alloc(item)
            a(f"buffer_load_dwordx4 {v4(r)}, {VG}, {sG}, {'0' if i < 4 else 's63'} offen offset:{(i % 4) * 1152} {wpol}")
        elif k == "x":
            if i == 0: r = alloc(item); a(f"buffer_load_dwordx4 {v4(r)}, v{T[0]}, {sX}, 0 offen")
            if i == 1: r = alloc(item); a(f"buffer_load_dwordx4 {v4(r)}, v{T[0]}, {sX}, 0 offen offset:1024")
            if i == 2: a(f"buffer_load_dwordx4 {v4(S)}, v{T[2]}, {sX}, 0 offen")
            if i == 3: a(f"buffer_load_dwordx4 {v4(S+4)}, v{T[2]}, {sX}, 0 offen offset:16")
            if i == 4: a(f"buffer_load_dword v{S+8}, v{T[2]}, {sX}, 0 offen offset:32")
        order.append(item)
    known = [-1]
    def wait_idx(idx):
        if idx > known[0]:
            a(f"s_waitcnt vmcnt({len(order) - 1 - idx})"); known[0] = idx
    def wait_item(item): wait_idx(order.index(item))
    def landed(item): return item in order and order.index(item) <= known[0]

    def task_ln():
        wait_item(("x", 4))
        x0, x1 = slot_of[("x", 0)], slot_of[("x", 1)]
        U = [B[0] + i for i in range(8)]
        for i in range(4):
            a(f"v_lshlrev_b32 v{U[2*i]}, 16, v{x0+i}"); a(f"v_and_b32 v{U[2*i+1]}, {HI}, v{x0+i}")
        U2 = [x0 + i for i in range(4)] + [Q + i for i in range(4)]
        for i in range(4):
            a(f"v_lshlrev_b32 v{U2[2*i]}, 16, v{x1+i}")
        for i in range(4):
            a(f"v_and_b32 v{U2[2*i+1]}, {HI}, v{x1+i}")
        s = f"v{T[0]}"; t = f"v{T[1]}"
        a(f"v_add_f32 {s}, v{U[0]}, v{U[1]}")
        for r in U[2:] + U2: a(f"v_add_f32 {s}, {s}, v{r}")
        allred16([s]); allred_rows(s, t)
        a(f"v_mul_f32 {s}, {f32(1/576)}, {s}")
        q2 = f"v{T[2]}"
        for r in U: a(f"v_sub_f32 v{r}, v{r}, {s}")
        a(f"v_mul_f32 {q2}, v{U[0]}, v{U[0]}")
        for r in U[1:]: a(f"v_fmac_f32 {q2}, v{r}, v{r}")
        a("s_mov_b64 exec, 0xff")
        for r in U2: a(f"v_sub_f32 v{r}, v{r}, {s}")
        for r in U2: a(f"v_fmac_f32 {q2}, v{r}, v{r}")
        a("s_mov_b64 exec, -1")
        allred16([q2]); allred_rows(q2, t)
        a(f"v_mul_f32 {q2}, {f32(1/576)}, {q2}")
        rbf(s, s); rbf(q2, q2)
        a(f"v_add_f32 {q2}, {f32(1e-5)}, {q2}"); rbf(q2, q2)
        a(f"v_sqrt_f32 {q2}, {q2}"); rbf(q2, q2)
        a(f"v_rcp_f32 {q2}, {q2}")
        for i in range(9):
            lo, hi = f"v{T[3]}", f"v{T[4]}"
            a(f"v_lshlrev_b32 {lo}, 16, v{S+i}"); a(f"v_and_b32 {hi}, {HI}, v{S+i}")
            a(f"v_sub_f32 {lo}, {lo}, {s}"); a(f"v_sub_f32 {hi}, {hi}, {s}")
            a(f"v_cvt_pk_bf16_f32 v{S+i}, {lo}, {hi}")
            a(f"v_lshlrev_b32 {lo}, 16, v{S+i}"); a(f"v_and_b32 {hi}, {HI}, v{S+i}")
            a(f"v_mul_f32 {lo}, {lo}, {q2}"); a(f"v_mul_f32 {hi}, {hi}, {q2}")
            a(f"v_cvt_pk_bf16_f32 v{S+i}, {lo}, {hi}")
        release(("x", 0)); release(("x", 1))
        a("s_mov_b32 s72, 0x01000100"); a("s_mov_b32 s73, 0x03020302")
    def task_wq(t):
        wait_item(("w", t)); b = B[t & 1]
        a(f"v_perm_b32 v{T[0]}, v{S+t//2}, v{S+t//2}, {'s73' if t & 1 else 's72'}")
        selector(b, f"v{T[0]}")
        mfma(slot_of[("w", t)], b, first=(t == 0)); release(("w", t))
    def acc_addr(dst, valid):
        a(f"v_lshrrev_b32 {dst}, 4, {LANE}")
        if valid == "two": a(f"v_and_b32 {dst}, 1, {dst}")
        a(f"v_lshlrev_b32 {dst}, 7, {dst}"); a(f"v_and_b32 v{T[7]}, 7, {LANE}"); a(f"v_lshl_add_u32 {dst}, v{T[7]}, 2, {dst}")
    PLAIN, TWO = 0x00FF00FF00FF00FF, 0xFF00FF0000FF00FF
    def task_qfin():
        acc_addr(f"v{T[0]}", "plain")
        setexec(PLAIN)
        for r in range(4): a(f"ds_add_f32 v{T[0]}, v{D+r} offset:{L_Q + 32*r}")
        a("s_mov_b64 exec, -1")
        a(f"v_and_b32 v{T[0]}, 15, {LANE}"); a(f"v_lshlrev_b32 v{T[0]}, 5, v{T[0]}")
        a("s_waitcnt lgkmcnt(0)"); a("s_barrier")
        a(f"ds_read_b128 {v4(B[0])}, v{T[0]} offset:{L_Q}"); a(f"ds_read_b128 {v4(B[1])}, v{T[0]} offset:{L_Q+16}")
        tag_setup()
        a(f"v_mov_b32 {VM}, 0xff800000"); a(f"v_mov_b32 {VL}, 0")
        a("s_waitcnt lgkmcnt(0)")
        for i in range(4): a(f"v_cvt_pk_bf16_f32 v{Q+i}, v{B[0]+2*i}, v{B[0]+2*i+1}")
        stamp(1)
    def task_kq(q):
        wait_item(("k", 4*q+3))
        for x in range(4):
            r = slot_of[("k", 4*q+x)]
            for i in range(4):
                a(f"v_dot2_f32_bf16 v{T[x]}, v{r+i}, v{Q+i}, {'0' if i == 0 else 'v%d' % T[x]}")
            release(("k", 4*q+x))
        allred16([f"v{T[x]}" for x in range(4)])
        a(f"v_cvt_pk_bf16_f32 v{T[4]}, v{T[0]}, v{T[1]}"); a(f"v_cvt_pk_bf16_f32 v{T[5]}, v{T[2]}, v{T[3]}")
        a(f"v_lshlrev_b32 v{T[0]}, 16, v{T[4]}"); a(f"v_and_b32 v{T[1]}, {HI}, v{T[4]}")
        a(f"v_lshlrev_b32 v{T[2]}, 16, v{T[5]}"); a(f"v_and_b32 v{T[3]}, {HI}, v{T[5]}")
        for x in range(4): a(f"v_mul_f32 v{T[x]}, {SCALE}, v{T[x]}")
        a(f"v_cvt_pk_bf16_f32 v{S+2*q}, v{T[0]}, v{T[1]}"); a(f"v_cvt_pk_bf16_f32 v{S+2*q+1}, v{T[2]}, v{T[3]}")
        a(f"v_max3_f32 {VM}, {VM}, v{T[0]}, v{T[1]}"); a(f"v_max3_f32 {VM}, {VM}, v{T[2]}, v{T[3]}")
    PA, PB = f"v{T[5]}", f"v{T[6]}"
    def prep_pv(j):
        if j % 2 == 0:
            a(f"v_lshlrev_b32 {PA}, 16, v{S+j//2}"); a(f"v_and_b32 {PB}, {HI}, v{S+j//2}")
            a(f"v_fma_f32 {PA}, {PA}, {LOG2E}, -{VF}"); a(f"v_fma_f32 {PB}, {PB}, {LOG2E}, -{VF}")
            a(f"v_exp_f32 {PA}, {PA}"); a(f"v_exp_f32 {PB}, {PB}")
        p = PA if j % 2 == 0 else PB
        a(f"v_cvt_pk_bf16_f32 v{T[0]}, {p}, {p}"); a(f"v_add_f32 {VL}, {VL}, {p}")
        selector(B[j & 1], f"v{T[0]}")
    def task_smax():
        allred_rows(VM, f"v{T[0]}", "v_max_f32"); rbf(VM, VM)
        a(f"s_lshl_b32 s3, {WAVE}, 2"); a(f"v_mov_b32 v{T[0]}, s3")
        a(f"ds_write_b32 v{T[0]}, {VM} offset:{L_MW}")
        a(f"v_mul_f32 {VF}, {LOG2E}, {VM}")
        stamp(2)
        prep_pv(0)
    def wgmax(dst):
        a(f"v_mov_b32 v{T[0]}, 0")
        a(f"ds_read_b128 {v4(Q)}, v{T[0]} offset:{L_MW}"); a(f"ds_read_b128 v[{T[1]+1}:{T[1]+4}], v{T[0]} offset:{L_MW+16}")
        a("s_waitcnt lgkmcnt(0)")
        a(f"v_max3_f32 {dst}, v{Q}, v{Q+1}, v{Q+2}"); a(f"v_max3_f32 {dst}, {dst}, v{Q+3}, v{T[1]+1}")
        a(f"v_max3_f32 {dst}, {dst}, v{T[1]+2}, v{T[1]+3}"); a(f"v_max_f32 {dst}, {dst}, v{T[1]+4}")
    def task_pv(j):
        wait_item(("v", j))
        mfma(slot_of[("v", j)], B[j & 1], first=(j == 0)); release(("v", j))
        if j == jB2:
            assert j % 2 == 1
            a("s_waitcnt lgkmcnt(0)"); a("s_barrier")
            wgmax(f"v{T[1]}")
            a(f"v_sub_f32 {VM}, {VM}, v{T[1]}"); a(f"v_mul_f32 {VM}, {LOG2E}, {VM}"); a(f"v_exp_f32 {VM}, {VM}")
        if j < 31: prep_pv(j + 1)

    seq = [("x", i) for i in range(5)]
    for i in range(max(18, nK)):
        if i < 18: seq.append(("w", i))
        if i < nK: seq.append(("k", i))
    nA = len(seq)
    seq += [("k", i) for i in range(nK, 32)] + [("v", i) for i in range(32)] + [("g", i) for i in range(EW)]
    st = dict(ln=False, wq=0, q=False, kq=0, sm=False, pv=0)
    def run_ready(force=False):
        did = False
        if not st["ln"]:
            if force: task_ln(); st["ln"] = True; return True
            return False
        n = 0
        while st["wq"] < 18 and (landed(("w", st["wq"])) or (force and not did and ("w", st["wq"]) in order)):
            task_wq(st["wq"]); st["wq"] += 1; did = True
        if st["wq"] == 18 and not st["q"]: task_qfin(); st["q"] = True; did = True
        if st["q"] and st["kq"] < 8:
            it = ("k", 4 * st["kq"] + 3)
            if landed(it) or (force and not did and it in order): task_kq(st["kq"]); st["kq"] += 1; did = True
            if st["kq"] == 8: task_smax(); st["sm"] = True
            return did
        if st["sm"]:
            while st["pv"] < 32 and n < 2 and (landed(("v", st["pv"])) or (force and not did and ("v", st["pv"]) in order)):
                task_pv(st["pv"]); st["pv"] += 1; n += 1; did = True
        return did
    first_batch = 5 + WA
    for n, item in enumerate(seq):
        if n == first_batch:
            late_setup()
            a("s_barrier")
            run_ready(force=True)
        W = WA if n < nA else Wn
        if n >= first_batch: wait_idx(n - W)
        while not free and item[0] != "x":
            assert run_ready(force=True)
        issue(item)
        if n >= first_batch: run_ready()
    acc_addr(f"v{T[2]}", "plain")
    allred_pending = True
    while st["pv"] < 32: assert run_ready(force=True)
    stamp(3)
    allred_rows(VL, f"v{T[0]}")
    a(f"v_mul_f32 {VL}, {VL}, {VM}"); a(f"v_mov_b32 v{T[0]}, 0")
    for r in range(4): a(f"v_mul_f32 v{D+r}, v{D+r}, {VM}")
    setexec(PLAIN)
    for r in range(4): a(f"ds_add_f32 v{T[2]}, v{D+r} offset:{L_O + 32*r}")
    a("s_mov_b64 exec, 1")
    a(f"ds_add_f32 v{T[0]}, {VL} offset:{L_ML + 4}")
    a("s_mov_b64 exec, -1")
    a("s_waitcnt lgkmcnt(0)"); a("s_barrier")
    a("s_barrier")
    for i in range(EW, 8): issue(("g", i))
    G = [slot_of[("g", i)] for i in range(8)]
    F = [SLOT0 + 4 * s for s in free]
    assert len(F) >= 14
    a("s_branch L_tail")

    a.label("L_helper")
    a(f"v_mov_b32 v{B[0]}, 0"); a(f"v_mov_b32 v{B[0]+1}, 0"); a(f"v_mov_b32 v{B[0]+2}, 0"); a(f"v_mov_b32 v{B[0]+3}, 0")
    a(f"ds_write_b128 v{T[0]}, {v4(B[0])}"); a(f"ds_write_b128 v{T[0]}, {v4(B[0])} offset:1024")
    late_setup()
    a("s_waitcnt lgkmcnt(0)"); a("s_barrier")
    tag_setup()
    if codepf:
        a("s_getpc_b64 s[74:75]"); a.label("L_pc")
        a(f"s_sub_u32 s74, s74, L_pc-{KNAME}"); a("s_subb_u32 s75, s75, 0")
        a(f"v_lshlrev_b32 v{T[1]}, 6, {LANE}"); a(f"v_mov_b32 v{T[2]}, L_end-{KNAME}-4")
        for j in range(codepf):
            a(f"v_min_u32 v{T[3]}, v{T[1]}, v{T[2]}"); a(f"global_load_dword v{T[4]}, v{T[3]}, s[74:75]")
            a(f"v_add_u32 v{T[1]}, 4096, v{T[1]}")
    a(f"s_lshl_b32 s3, {HEAD}, 3"); a(f"s_add_u32 s3, s3, {SPLIT}")
    a(f"s_lshl_b32 s62, s3, 9"); a(f"s_add_u32 s62, s62, {O1}"); a(f"v_add_u32 {VW}, s62, v{T[0]}")
    a("s_lshl_b32 s62, s3, 4"); a(f"s_add_u32 s62, s62, {ML}"); a(f"v_writelane_b32 {VW}, s62, 32")
    a("s_barrier")
    a("s_barrier")
    a(f"v_mov_b32 {VKV}, v{T[0]}")
    wgmax(VM)
    a(f"ds_write_b32 v{T[0]}, {VM} offset:{L_ML}"); a(f"ds_write_b32 v{T[0]}, {VM} offset:{L_ML+8}")
    for i in range(4): a(f"buffer_load_dwordx4 {v4(G[i])}, {VG}, {sG}, 0 offen offset:{i * 1152} {wpol}")
    a("s_setprio 3")
    a("s_waitcnt lgkmcnt(0)"); a("s_barrier")
    a(f"ds_read_b128 {v4(B[0])}, {VKV} offset:{L_O}")
    setexec((1 << 33) - 1)
    a("s_waitcnt lgkmcnt(0)")
    for i in range(4): a(f"v_and_or_b32 v{B[0]+i}, v{B[0]+i}, {TMASK}, {VTAG}")
    a(f"buffer_store_dwordx4 {v4(B[0])}, {VW}, {sWS}, 0 offen sc1")
    a("s_mov_b64 exec, -1")
    a("s_barrier")
    a("s_setprio 0")

    a.label("L_tail")
    stamp(4)
    a("s_cmp_lt_u32 s2, 144"); a("s_cbranch_scc1 L_ffn")
    a("s_cmp_lt_u32 s2, 216"); a("s_cbranch_scc1 L_wo")
    a("s_cmp_lt_u32 s2, 252"); a("s_cbranch_scc1 L_red")
    a("s_branch L_done")

    a.label("L_wo")
    a(f"s_cmp_eq_u32 {WAVE}, 8"); a("s_cbranch_scc1 L_wo_pub")
    OA, OB, MLr = F[0], F[1], F[2]
    a("s_and_b32 s3, s2, 7"); a("s_lshl_b32 s3, s3, 2"); a(f"s_lshr_b32 s62, {WAVE}, 1"); a("s_add_u32 s3, s3, s62")
    a(f"s_lshl_b32 s62, s3, 12"); a(f"s_and_b32 s60, {WAVE}, 1"); a("s_lshl_b32 s60, s60, 8"); a("s_add_u32 s62, s62, s60")
    a(f"s_add_u32 s62, s62, {O1}")
    a(f"v_lshrrev_b32 v{T[4]}, 4, {LANE}"); a(f"v_and_b32 v{T[5]}, 15, {LANE}")
    a(f"v_lshlrev_b32 {VKV}, 9, v{T[4]}"); a(f"v_lshl_add_u32 {VKV}, v{T[5]}, 4, {VKV}"); a(f"v_add_u32 {VKV}, s62, {VKV}")
    a("s_lshl_b32 s62, s3, 7"); a(f"s_add_u32 s62, s62, {ML}")
    a(f"v_bfe_u32 v{T[6]}, {LANE}, 3, 1"); a(f"v_lshl_add_u32 v{T[6]}, v{T[6]}, 2, v{T[4]}")
    a(f"v_lshlrev_b32 {VW}, 4, v{T[6]}"); a(f"v_add_u32 {VW}, s62, {VW}")
    a(f"s_lshl_b32 s62, {WAVE}, 8"); a(f"s_add_u32 s62, s62, {L_W}")
    a(f"v_lshlrev_b32 {VL}, 4, v{T[5]}"); a(f"v_lshl_add_u32 {VL}, v{T[4]}, 2, {VL}"); a(f"v_add_u32 {VL}, s62, {VL}")
    a(f"v_lshrrev_b32 {VF}, 3, {LANE}"); a(f"v_lshlrev_b32 {VF}, 5, {VF}"); a(f"v_add_u32 {VF}, s62, {VF}")
    acc_addr(VM, "two")
    a("s_mov_b32 s74, 0xff00ff00"); a("s_mov_b32 s75, 0xff00ff00")
    poll("L_p1", [f"buffer_load_dwordx4 {v4(MLr)}, {VW}, {sWS}, 0 offen sc1",
                  f"buffer_load_dwordx4 {v4(OA)}, {VKV}, {sWS}, 0 offen sc1",
                  f"buffer_load_dwordx4 {v4(OB)}, {VKV}, {sWS}, 0 offen offset:2048 sc1"], [MLr, OA, OB], 0)
    stamp(5)
    m1, l1, m2, l2, M, t = (f"v{T[i]}" for i in range(6))
    a(f"v_and_b32 {m1}, {TMASK}, v{MLr}"); a(f"v_and_b32 {l1}, {TMASK}, v{MLr+1}")
    for i in range(4): a(f"v_and_b32 v{OA+i}, {TMASK}, v{OA+i}")
    a(f"v_mov_b32_dpp {m2}, {m1} row_ror:8 row_mask:0xf bank_mask:0xf"); a(f"v_mov_b32_dpp {l2}, {l1} row_ror:8 row_mask:0xf bank_mask:0xf")
    for i in range(4): a(f"v_and_b32 v{OB+i}, {TMASK}, v{OB+i}")
    a(f"v_max_f32 {M}, {m1}, {m2}"); allred_rows(M, t, "v_max_f32")
    a(f"v_sub_f32 {m1}, {m1}, {M}"); a(f"v_sub_f32 {m2}, {m2}, {M}")
    a(f"v_mul_f32 {m1}, {LOG2E}, {m1}"); a(f"v_mul_f32 {m2}, {LOG2E}, {m2}")
    a(f"v_exp_f32 {m1}, {m1}"); a(f"v_exp_f32 {m2}, {m2}")
    a(f"v_mul_f32 {l1}, {l1}, {m1}"); a(f"v_fmac_f32 {l1}, {l2}, {m2}")
    a(f"v_cndmask_b32 {l2}, {m1}, {m2}, s[74:75]"); a(f"v_cndmask_b32 {m2}, {m2}, {m1}, s[74:75]")
    for i in range(4): a(f"v_mul_f32 v{OA+i}, v{OA+i}, {l2}")
    for i in range(4): a(f"v_fmac_f32 v{OA+i}, v{OB+i}, {m2}")
    allred_rows(l1, t)
    rows_scatter(*(f"v{OA+i}" for i in range(4)))
    a(f"v_rcp_f32 {l1}, {l1}")
    a(f"v_mul_f32 v{OA}, v{OA}, {l1}")
    a(f"v_cvt_pk_bf16_f32 v{OA}, v{OA}, v{OA}")
    a(f"ds_write_b32 {VL}, v{OA}")
    a("s_waitcnt lgkmcnt(0)")
    a(f"ds_read_b128 {v4(OA)}, {VF}"); a(f"ds_read_b128 {v4(OB)}, {VF} offset:16")
    for tt in range(8):
        if tt == 0: a("s_waitcnt lgkmcnt(1)")
        if tt == 4: a("s_waitcnt lgkmcnt(0)")
        selector(B[tt & 1], f"v{(OA if tt < 4 else OB) + tt % 4}")
        mfma(G[tt], B[tt & 1], first=(tt == 0))
    setexec(TWO)
    for r in range(4): a(f"ds_add_f32 {VM}, v{D+r} offset:{L_ACC + 32*r}")
    a("s_waitcnt lgkmcnt(0)"); a("s_barrier")
    a("s_branch L_done")
    a.label("L_wo_pub")
    a("s_and_b32 s3, s2, 7"); a("s_lshl_b32 s3, s3, 8"); a(f"s_lshl_b32 s62, {ROLE}, 11"); a("s_add_u32 s3, s3, s62"); a(f"s_add_u32 s3, s3, {Z2}")
    a(f"v_add_u32 {VW}, s3, {VKV}")
    a("s_mov_b64 exec, 0xffff")
    a("s_barrier")
    a(f"ds_read_b128 {v4(B[0])}, {VKV} offset:{L_ACC}")
    a("s_waitcnt lgkmcnt(0)")
    for i in range(4): a(f"v_and_or_b32 v{B[0]+i}, v{B[0]+i}, {TMASK}, {VTAG}")
    a(f"buffer_store_dwordx4 {v4(B[0])}, {VW}, {sWS}, 0 offen sc1")
    stamp(6)
    a("s_branch L_done")

    a.label("L_ffn")
    W13 = F[0:9]; ZA, ZB = F[9], F[10]; HX = F[11]
    AD = f"v[{HX}:{HX+1}]"
    a(f"s_cmp_eq_u32 {WAVE}, 8"); a("s_cbranch_scc1 L_ffn_now13")
    a(f"v_lshrrev_b32 v{T[4]}, 3, {LANE}"); a(f"v_mul_u32_u24 v{T[4]}, 9, v{T[4]}")
    a(f"s_mul_i32 s3, {WAVE}, 72"); a(f"v_add_u32 {VF}, s3, v{T[4]}")
    a(f"v_mul_u32_u24 v{T[4]}, 9216, {VF}")
    a(f"v_and_b32 v{T[5]}, 3, {LANE}"); a(f"v_lshl_add_u32 v{T[4]}, v{T[5]}, 4, v{T[4]}")
    a(f"s_lshl_b32 s3, {ROLE}, 6"); a(f"v_add_u32 v{T[4]}, s3, v{T[4]}")
    a("s_mov_b32 s74, 0xf0f0f0f0"); a("s_mov_b32 s75, 0xf0f0f0f0")
    a(f"v_mov_b32 v{HX}, s16"); a(f"v_mov_b32 v{HX+1}, s17"); a(f"v_mov_b32 v{HX+2}, s18"); a(f"v_mov_b32 v{HX+3}, s19")
    a(f"v_cndmask_b32 v{HX}, v{HX}, v{HX+2}, s[74:75]"); a(f"v_cndmask_b32 v{HX+1}, v{HX+1}, v{HX+3}, s[74:75]")
    a(f"v_add_co_u32 v{HX}, vcc, v{HX}, v{T[4]}"); a(f"v_addc_co_u32 v{HX+1}, vcc, 0, v{HX+1}, vcc")
    a("s_movk_i32 s72, 9216"); a("s_mov_b32 s73, 0")
    for tt in range(9):
        a(f"global_load_dwordx4 {v4(W13[tt])}, {AD}, off {wpol}")
        if tt < 8: a(f"v_lshl_add_u64 {AD}, s[72:73], 0, {AD}")
    a(f"v_lshlrev_b32 {VF}, 2, {VF}"); a(f"v_add_u32 {VF}, {L_H}, {VF}")
    a.label("L_ffn_now13")
    a(f"v_lshrrev_b32 v{T[4]}, 4, {LANE}"); a(f"v_and_b32 v{T[5]}, 15, {LANE}")
    a(f"s_lshl_b32 s3, {WAVE}, 11"); a(f"s_add_u32 s3, s3, {Z2}")
    a(f"v_lshlrev_b32 {VKV}, 8, v{T[4]}"); a(f"v_lshl_add_u32 {VKV}, v{T[5]}, 4, {VKV}"); a(f"v_add_u32 {VKV}, s3, {VKV}")
    a(f"s_lshl_b32 s3, {WAVE}, 6"); a(f"v_lshl_add_u32 {VL}, v{T[5]}, 2, v{T[4]}"); a(f"v_add_u32 {VL}, s3, {VL}")
    a(f"v_lshlrev_b32 v{T[6]}, 1, {VL}"); a(f"v_lshlrev_b32 {VL}, 2, {VL}")
    a(f"buffer_load_ushort v{HX+2}, v{T[6]}, {sX}, 0 offen")
    acc_addr(VM, "two")
    a(f"v_bfe_u32 {VW}, {LANE}, 4, 1"); a(f"v_lshlrev_b32 {VW}, 2, {VW}")
    poll("L_p2", [f"buffer_load_dwordx4 {v4(ZA)}, {VKV}, {sWS}, 0 offen sc1",
                  f"buffer_load_dwordx4 {v4(ZB)}, {VKV}, {sWS}, 0 offen offset:1024 sc1"], [ZA, ZB], sleep2)
    stamp(5)
    for i in range(4): a(f"v_and_b32 v{ZA+i}, {TMASK}, v{ZA+i}"); a(f"v_and_b32 v{ZB+i}, {TMASK}, v{ZB+i}")
    for i in range(4): a(f"v_add_f32 v{ZA+i}, v{ZA+i}, v{ZB+i}")
    a(f"v_lshlrev_b32 v{HX+2}, 16, v{HX+2}")
    rows_scatter(*(f"v{ZA+i}" for i in range(4)))
    h = f"v{ZA}"; h2 = f"v{ZA+1}"
    rbf(h, h); a(f"v_add_f32 {h}, {h}, v{HX+2}"); rbf(h, h)
    a(f"ds_write_b32 {VL}, {h} offset:{L_H}")
    a(f"v_mul_f32 {h2}, {h}, {h}")
    allred16([h, h2])
    a(f"v_permlane16_swap_b32 {h}, {h2}"); a(f"v_add_f32 {h}, {h}, {h2}")
    setexec(0x0001000100010001)
    a(f"ds_add_f32 {VW}, {h} offset:{L_ST}")
    a("s_mov_b64 exec, -1")
    a(f"v_mov_b32 v{T[7]}, 0")
    a("s_waitcnt lgkmcnt(0)"); a("s_barrier")
    a(f"s_cmp_eq_u32 {WAVE}, 8"); a("s_cbranch_scc1 L_ffn_b6")
    HV = [ZA + i for i in range(4)] + [ZB + i for i in range(4)] + [HX]
    a(f"ds_read_b64 v[{T[0]}:{T[1]}], v{T[7]} offset:{L_ST}")
    for i in range(4): a(f"ds_read2_b32 v[{HV[2*i]}:{HV[2*i+1]}], {VF} offset0:{2*i} offset1:{2*i+1}")
    a(f"ds_read_b32 v{HV[8]}, {VF} offset:32")
    mu, var = f"v{T[0]}", f"v{T[1]}"
    a("s_waitcnt lgkmcnt(5)")
    a(f"v_mul_f32 {mu}, {f32(1/576)}, {mu}"); a(f"v_mul_f32 {var}, {f32(1/576)}, {var}")
    a(f"v_fma_f32 {var}, -{mu}, {mu}, {var}"); a(f"v_max_f32 {var}, 0, {var}")
    rbf(mu, mu); rbf(var, var)
    a(f"v_add_f32 {var}, {f32(1e-5)}, {var}"); rbf(var, var)
    a(f"v_sqrt_f32 {var}, {var}"); rbf(var, var)
    a(f"v_rcp_f32 {var}, {var}")
    a(f"v_mul_f32 {mu}, {mu}, {var}")
    a("s_waitcnt lgkmcnt(0)")
    for tt in range(9):
        a(f"v_fma_f32 v{HV[tt]}, v{HV[tt]}, {var}, -{mu}")
    for tt in range(9):
        a(f"v_cvt_pk_bf16_f32 v{HV[tt]}, v{HV[tt]}, v{HV[tt]}")
        selector(B[tt & 1], f"v{HV[tt]}")
        mfma(W13[tt], B[tt & 1], first=(tt == 0))
    setexec(TWO)
    for r in range(4): a(f"ds_add_f32 {VM}, v{D+r} offset:{L_ACC + 32*r}")
    a("s_mov_b64 exec, -1")
    a.label("L_ffn_b6")
    a(f"v_lshrrev_b32 v{T[7]}, 3, {LANE}"); a(f"v_lshlrev_b32 v{T[7]}, 4, v{T[7]}")
    a(f"s_mul_i32 s3, {ROLE}, 2304"); a(f"s_lshl_b32 s62, {WAVE}, 8"); a("s_add_u32 s3, s3, s62"); a(f"s_add_u32 s3, s3, {P3}")
    a(f"v_lshrrev_b32 {VW}, 4, {LANE}"); a(f"v_lshlrev_b32 {VW}, 7, {VW}"); a(f"v_and_b32 v{T[6]}, 7, {LANE}")
    a(f"v_lshl_add_u32 {VW}, v{T[6]}, 4, {VW}"); a(f"v_add_u32 {VW}, s3, {VW}")
    a("s_waitcnt lgkmcnt(0)"); a("s_barrier")
    a(f"ds_read_b128 {v4(ZA)}, v{T[7]} offset:{L_ACC}"); a(f"ds_read_b128 {v4(ZB)}, v{T[7]} offset:{L_ACC+128}")
    a("s_waitcnt lgkmcnt(1)")
    g = [f"v{ZA+i}" for i in range(4)]; u = [f"v{ZB+i}" for i in range(4)]; e = [f"v{T[i]}" for i in range(4)]
    def rbf4(x):
        a(f"v_cvt_pk_bf16_f32 {x[1]}, {x[0]}, {x[1]}"); a(f"v_cvt_pk_bf16_f32 {x[3]}, {x[2]}, {x[3]}")
        a(f"v_lshlrev_b32 {x[0]}, 16, {x[1]}"); a(f"v_lshlrev_b32 {x[2]}, 16, {x[3]}")
        a(f"v_and_b32 {x[1]}, {HI}, {x[1]}"); a(f"v_and_b32 {x[3]}, {HI}, {x[3]}")
    rbf4(g)
    for i in range(4): a(f"v_mul_f32 {e[i]}, {f32(-1.4426950408889634)}, {g[i]}")
    for i in range(4): a(f"v_exp_f32 {e[i]}, {e[i]}")
    a("s_waitcnt lgkmcnt(0)")
    rbf4(u)
    for i in range(4): a(f"v_add_f32 {e[i]}, 1.0, {e[i]}")
    for i in range(4): a(f"v_rcp_f32 {e[i]}, {e[i]}")
    for i in range(4): a(f"v_mul_f32 {g[i]}, {g[i]}, {e[i]}")
    rbf4(g)
    for i in range(4): a(f"v_mul_f32 {g[i]}, {g[i]}, {u[i]}")
    for tt in range(4):
        a(f"v_cvt_pk_bf16_f32 {g[tt]}, {g[tt]}, {g[tt]}")
        selector(B[tt & 1], g[tt])
        mfma(G[tt], B[tt & 1], first=(tt == 0))
    for r in range(4): a(f"v_permlane32_swap_b32 v{D+r}, {e[r]}")
    for r in range(4): dpp("v_add_f32", f"v{D+r}", e[r], f"v{D+r}", "row_ror:8")
    for r in range(4): a(f"v_and_or_b32 v{D+r}, v{D+r}, {TMASK}, {VTAG}")
    a("s_mov_b64 exec, 0x00ff00ff")
    a(f"buffer_store_dwordx4 {v4(D)}, {VW}, {sWS}, 0 offen sc1")
    stamp(6)
    a("s_branch L_done")

    a.label("L_red")
    PA_, HH = F[0], F[1]
    a(f"s_sub_u32 {ROLE}, s2, 216")
    a(f"v_and_b32 v{T[4]}, 3, {LANE}")
    a(f"s_lshr_b32 s3, {ROLE}, 1"); a("s_lshl_b32 s3, s3, 5"); a(f"s_and_b32 s62, {ROLE}, 1"); a("s_lshl_b32 s62, s62, 2"); a("s_add_u32 s3, s3, s62")
    a(f"v_lshl_add_u32 {VL}, v{T[4]}, 3, s3"); a(f"v_lshlrev_b32 {VL}, 1, {VL}")
    a(f"s_cmp_lg_u32 {WAVE}, 0"); a("s_cbranch_scc1 L_red_h3")
    a(f"buffer_load_dwordx2 v[{Q}:{Q+1}], {VL}, {sX}, 0 offen")
    a(f"s_lshr_b32 s62, {ROLE}, 2"); a("s_lshl_b32 s62, s62, 11"); a("s_and_b32 s3, s3, 63"); a("s_lshl_b32 s3, s3, 2")
    a("s_add_u32 s3, s3, s62"); a(f"s_add_u32 s3, s3, {Z2}")
    a(f"v_bfe_u32 {VKV}, {LANE}, 2, 3"); a(f"v_lshlrev_b32 {VKV}, 8, {VKV}"); a(f"v_lshl_add_u32 {VKV}, v{T[4]}, 5, {VKV}")
    a(f"v_add_u32 {VKV}, s3, {VKV}")
    poll("L_p2r", [f"buffer_load_dwordx4 {v4(HH)}, {VKV}, {sWS}, 0 offen sc1"], [HH], 2)
    hv = [f"v{HH+i}" for i in range(4)]; e = [f"v{T[i]}" for i in range(4)]
    for i in range(4): a(f"v_and_b32 {hv[i]}, {TMASK}, {hv[i]}")
    allred16(hv, steps=(4, 8))
    for i in range(4): a(f"v_mov_b32 {e[i]}, {hv[i]}")
    for i in range(4): a(f"v_permlane16_swap_b32 {hv[i]}, {e[i]}")
    for i in range(4): a(f"v_add_f32 {hv[i]}, {hv[i]}, {e[i]}")
    rbf4(hv)
    a(f"v_lshlrev_b32 {e[0]}, 16, v{Q}"); a(f"v_and_b32 {e[1]}, {HI}, v{Q}"); a(f"v_lshlrev_b32 {e[2]}, 16, v{Q+1}"); a(f"v_and_b32 {e[3]}, {HI}, v{Q+1}")
    for i in range(4): a(f"v_add_f32 {hv[i]}, {hv[i]}, {e[i]}")
    rbf4(hv)
    stamp(5)
    a.label("L_red_h3")
    a(f"v_lshrrev_b32 {VW}, 2, {LANE}"); a(f"s_lshl_b32 s3, {WAVE}, 4"); a(f"v_add_u32 {VW}, s3, {VW}")
    a(f"v_mul_u32_u24 {VW}, 2304, {VW}"); a(f"v_lshl_add_u32 {VW}, v{T[4]}, 4, {VW}")
    a(f"s_lshl_b32 s3, {ROLE}, 6"); a(f"s_add_u32 s3, s3, {P3}"); a(f"v_add_u32 {VW}, s3, {VW}")
    a(f"v_lshlrev_b32 {VM}, 2, v{T[4]}"); a(f"v_lshlrev_b32 {VF}, 4, v{T[4]}")
    poll("L_p3", [f"buffer_load_dwordx4 {v4(PA_)}, {VW}, {sWS}, 0 offen sc1"], [PA_], sleep3)
    stamp(6)
    pv = [f"v{PA_+i}" for i in range(4)]
    for i in range(4): a(f"v_and_b32 {pv[i]}, {TMASK}, {pv[i]}")
    allred16(pv, steps=(4, 8))
    setexec(0x000F000F000F000F)
    for r in range(4): a(f"ds_add_f32 {VM}, {pv[r]} offset:{L_ACC + 16*r}")
    a("s_waitcnt lgkmcnt(0)"); a("s_barrier")
    a(f"s_cmp_lg_u32 {WAVE}, 0"); a("s_cbranch_scc1 L_done")
    a("s_mov_b64 exec, 0xf")
    a(f"ds_read_b128 {v4(PA_)}, {VF} offset:{L_ACC}")
    a("s_waitcnt lgkmcnt(0)")
    rbf4(pv)
    for i in range(4): a(f"v_add_f32 {pv[i]}, {pv[i]}, {hv[i]}")
    a(f"v_cvt_pk_bf16_f32 v{Q}, {pv[0]}, {pv[1]}"); a(f"v_cvt_pk_bf16_f32 v{Q+1}, {pv[2]}, {pv[3]}")
    a(f"buffer_store_dwordx2 v[{Q}:{Q+1}], {VL}, {sOUT}, 0 offen")
    a(f"s_cmp_lg_u32 {ROLE}, 0"); a("s_cbranch_scc1 L_done")
    a("s_mov_b64 exec, 1")
    a(f"v_mov_b32 v{T[0]}, {EP1}"); a(f"v_mov_b32 v{T[1]}, {EPOCH}")
    a(f"buffer_store_dword v{T[0]}, v{T[1]}, {sWS}, 0 offen")

    a.label("L_done")
    if diag:
        stamp(7)
        a("s_mov_b64 exec, 1"); a("s_waitcnt lgkmcnt(0)")
        a("s_mul_i32 s3, s2, 9"); a(f"s_add_u32 s3, s3, {WAVE}"); a("s_lshl_b32 s3, s3, 5"); a(f"s_add_u32 s3, s3, {STAMP}")
        a("v_mov_b32 v28, s3")
        for i in range(8): a(f"v_mov_b32 v{16+i}, s{80+2*i}")
        a(f"buffer_store_dwordx4 v[16:19], v28, {sWS}, 0 offen"); a(f"buffer_store_dwordx4 v[20:23], v28, {sWS}, 0 offen offset:16")
    a.label("L_exit")
    a("s_endpgm")
    a.label("L_end")
    body = a.finalize()
    out = HEADER + "; Generated by gen.py: 256 workgroups (8 streaming waves + 1 helper wave), tagged hand-offs through d_ws.\n"
    out += "; @launch grid=(256,1,1) block=(576,1,1) lds=8192\n"
    out += '.amdgcn_target "amdgcn-amd-amdhsa--gfx950"\n.text\n' + f".globl {KNAME}\n.p2align 8\n.type {KNAME},@function\n"
    out += body
    out += f""".section .rodata,"a"
.p2align 6
.amdhsa_kernel {KNAME}
  .amdhsa_next_free_vgpr 168
  .amdhsa_next_free_sgpr 100
  .amdhsa_accum_offset 168
  .amdhsa_group_segment_fixed_size 0
  .amdhsa_kernarg_size 96
  .amdhsa_user_sgpr_count 2
  .amdhsa_user_sgpr_kernarg_segment_ptr 1
  .amdhsa_system_sgpr_workgroup_id_x 1
.end_amdhsa_kernel
"""
    return out

if __name__ == "__main__":
    kw = eval("dict(" + (sys.argv[2] if len(sys.argv) > 2 else "") + ")")
    open(sys.argv[1], "w").write(gen(**kw))
```

```python
import sys, struct
sys.path.insert(0, "work")
from asmlib import Asm

KNAME = "sequential_preLN__mha_block_cached__glu_gated_swiglu__decode_kernel"
HEADER = open("sequential_preLN__mha_block_cached__glu_gated_swiglu__decode.s.ref").read().split("; Override launch")[0]

def f32(x): return "0x%08x" % struct.unpack("<I", struct.pack("<f", x))[0]

EPOCH, O1, ML, Z2, P3, STAMP = 0, 0x10000, 0x30000, 0x32000, 0x40000, 0x100000
L_O, L_ML, L_Q, L_MW, L_ACC, L_ST, L_H, L_W = 0, 512, 1024, 1536, 1600, 1856, 2048, 4608

def gen(Wn=4, WA=8, nK=18, EW=8, jB2=9, pol="nt", wpol="nt", diag=0, codepf=4, sleep2=0, sleep3=0):
    a = Asm()
    LANE = "v0"; MASK = [4, 5, 6, 7]; Q = 8; D = 12; B = [16, 20]
    VKV, VW, VM, VL, VF, VG, VTAG = "v24", "v25", "v26", "v27", "v1", "v2", "v3"
    T = [28 + i for i in range(8)]
    S = 36
    SLOT0, NSLOT = 52, 29
    sK, sV, sWQ, sX, sWS, sG, sOUT = "s[32:35]", "s[36:39]", "s[40:43]", "s[44:47]", "s[48:51]", "s[52:55]", "s[56:59]"
    WAVE, HEAD, SPLIT, TAG = "s28", "s29", "s30", "s31"
    SCALE, LOG2E, HI, TMASK, TLOW, ROLE, CNT, EP1 = "s64", "s65", "s66", "s67", "s68", "s69", "s70", "s71"
    v4 = lambda r: f"v[{r}:{r+3}]"
    stamps = []
    def stamp(i):
        if diag: a(f"s_memrealtime s[{80+2*i}:{81+2*i}]")
    def rbf(dst, src):
        a(f"v_cvt_pk_bf16_f32 {dst}, {src}, {src}"); a(f"v_and_b32 {dst}, {HI}, {dst}")
    def dpp(op, d, s0, s1, ctl): a(f"{op}_dpp {d}, {s0}, {s1} {ctl} row_mask:0xf bank_mask:0xf")
    def allred16(regs, op="v_add_f32", steps=(8, 4, 2, 1)):
        for st in steps:
            for r in regs: dpp(op, r, r, r, f"row_ror:{st}")
    def allred_rows(r, t, op="v_add_f32"):
        a(f"v_mov_b32 {t}, {r}"); a(f"v_permlane16_swap_b32 {r}, {t}"); a(f"{op} {r}, {r}, {t}")
        a(f"v_mov_b32 {t}, {r}"); a(f"v_permlane32_swap_b32 {r}, {t}"); a(f"{op} {r}, {r}, {t}")
    def rows_scatter(r0, r1, r2, r3):
        a(f"v_permlane16_swap_b32 {r0}, {r1}"); a(f"v_permlane16_swap_b32 {r2}, {r3}")
        a(f"v_add_f32 {r0}, {r0}, {r1}"); a(f"v_add_f32 {r2}, {r2}, {r3}")
        a(f"v_permlane32_swap_b32 {r0}, {r2}"); a(f"v_add_f32 {r0}, {r0}, {r2}")
    def selector(b, src):
        for j in range(4): a(f"v_and_b32 v{b+j}, {src}, v{MASK[j]}")
    def mfma(A_, B_, first=False): a(f"v_mfma_f32_16x16x32_bf16 {v4(D)}, {v4(A_)}, {v4(B_)}, {'0' if first else v4(D)}")
    def setexec(m):
        a(f"s_mov_b32 exec_lo, {hex(m & 0xffffffff)}"); a(f"s_mov_b32 exec_hi, {hex(m >> 32)}")
    def tagcheck(quads, t0, t1, t2):
        tmp = []
        first = True
        for qd in quads:
            a(f"v_bitop3_b32 {t1}, v{qd}, v{qd+1}, {TAG} bitop3:0x7e")
            a(f"v_bitop3_b32 {t2}, v{qd+2}, v{qd+3}, {TAG} bitop3:0x7e")
            if first: a(f"v_or_b32 {t0}, {t1}, {t2}"); first = False
            else: a(f"v_or3_b32 {t0}, {t0}, {t1}, {t2}")
        a(f"v_and_b32 {t0}, {TLOW}, {t0}")
        a(f"v_cmp_ne_u32 vcc, 0, {t0}")
    def poll(name, loads, quads, sleep):
        a(f"s_mov_b32 {CNT}, 0x8000")
        a.label(name)
        for l in loads: a(l)
        a("s_waitcnt vmcnt(0)")
        tagcheck(quads, f"v{T[0]}", f"v{T[1]}", f"v{T[2]}")
        a(f"s_cbranch_vccz {name}_ok")
        if sleep: a(f"s_sleep {sleep}")
        a(f"s_sub_u32 {CNT}, {CNT}, 1"); a(f"s_cmp_lg_u32 {CNT}, 0"); a(f"s_cbranch_scc1 {name}")
        a.label(name + "_ok")

    a.label(KNAME)
    a("s_cmp_ge_u32 s2, 256"); a("s_cbranch_scc1 L_exit")
    stamp(0)
    a("s_load_dwordx16 s[4:19], s[0:1], 0"); a("s_load_dwordx8 s[20:27], s[0:1], 64")
    a("v_lshrrev_b32 v1, 6, v0"); a("v_and_b32 v0, 63, v0")
    a(f"v_readfirstlane_b32 {WAVE}, v1")
    a(f"s_and_b32 {HEAD}, s2, 7"); a(f"s_lshl_b32 {HEAD}, {HEAD}, 2"); a("s_bfe_u32 s3, s2, 0x20003"); a(f"s_add_u32 {HEAD}, {HEAD}, s3")
    a(f"s_lshr_b32 {SPLIT}, s2, 5")
    a(f"s_lshl_b32 s60, {HEAD}, 21"); a(f"s_lshl_b32 s61, {SPLIT}, 18"); a("s_add_u32 s62, s60, s61")
    a(f"s_lshl_b32 s63, {HEAD}, 8")
    a("s_mov_b32 s34, 0x40000"); a("s_mov_b32 s35, 0x20000"); a("s_mov_b32 s38, 0x40000"); a("s_mov_b32 s39, 0x20000")
    a(f"s_sub_u32 s42, {576*8192}, s63"); a("s_mov_b32 s43, 0x20000")
    a("s_movk_i32 s46, 1152"); a("s_mov_b32 s47, 0x20000")
    a(f"v_lshlrev_b32 v{T[0]}, 4, {LANE}")
    a(f"s_lshl_b32 s3, {WAVE}, 10"); a(f"v_add_u32 {VKV}, s3, v{T[0]}")
    a(f"v_lshrrev_b32 v{T[1]}, 4, {LANE}")
    a(f"v_mul_u32_u24 v{T[2]}, 18, v{T[1]}")
    a(f"s_mul_i32 s3, {WAVE}, 72"); a(f"v_add_u32 v{T[2]}, s3, v{T[2]}")
    a(f"v_and_b32 v{T[3]}, 0xf0, v{T[0]}")
    a(f"v_lshl_add_u32 {VW}, v{T[2]}, 13, v{T[3]}")
    a(f"v_lshlrev_b32 v{T[2]}, 1, v{T[2]}")
    a("s_mov_b32 s60, 0"); a("s_mov_b32 s61, 0")
    a("s_waitcnt lgkmcnt(0)")
    a("s_add_u32 s32, s6, s62"); a("s_addc_u32 s33, s7, 0")
    a("s_mov_b32 s44, s4"); a("s_mov_b32 s45, s5")
    a("s_add_u32 s40, s10, s63"); a("s_addc_u32 s41, s11, 0")
    a("s_add_u32 s36, s8, s62"); a("s_addc_u32 s37, s9, 0")
    a(f"s_cmp_eq_u32 {WAVE}, 8"); a("s_cbranch_scc1 L_helper")

    def late_setup():
        a(f"s_load_dword {EP1}, s[26:27], {EPOCH}")
        a("s_mov_b32 s48, s26"); a("s_mov_b32 s49, s27"); a("s_mov_b32 s50, 0x200000"); a("s_mov_b32 s51, 0x20000")
        a("s_mov_b32 s56, s22"); a("s_mov_b32 s57, s23"); a("s_movk_i32 s58, 1152"); a("s_mov_b32 s59, 0x20000")
        a(f"s_mov_b32 {SCALE}, {f32(128 ** -0.5)}"); a(f"s_mov_b32 {LOG2E}, {f32(1.4426950408889634)}")
        a(f"s_mov_b32 {HI}, 0xffff0000"); a(f"s_mov_b32 {TMASK}, 0xfffff000"); a(f"s_movk_i32 {TLOW}, 0xfff")
        a(f"v_and_b32 v{T[4]}, 1, {LANE}"); a(f"v_lshlrev_b32 v{T[4]}, 4, v{T[4]}")
        a(f"v_mov_b32 v{T[5]}, 0xffff"); a(f"v_lshlrev_b32 v{T[5]}, v{T[4]}, v{T[5]}")
        a(f"v_bfe_u32 v{T[4]}, {LANE}, 1, 2")
        for j in range(4):
            a(f"v_cmp_eq_u32 vcc, {j}, v{T[4]}"); a(f"v_cndmask_b32 v{MASK[j]}, 0, v{T[5]}, vcc")
        u = late_setup.n = getattr(late_setup, "n", 0) + 1
        a("s_mov_b32 s55, 0x20000")
        a("s_cmp_lt_u32 s2, 144"); a(f"s_cbranch_scc0 L_r1_{u}")
        a(f"s_and_b32 {ROLE}, s2, 0xf0"); a("s_and_b32 s3, s2, 7"); a("s_lshl_b32 s3, s3, 1"); a(f"s_or_b32 {ROLE}, {ROLE}, s3")
        a("s_bfe_u32 s3, s2, 0x10003"); a(f"s_or_b32 {ROLE}, {ROLE}, s3")
        a(f"s_mul_i32 s3, {ROLE}, {32*1152}"); a("s_add_u32 s52, s20, s3"); a("s_addc_u32 s53, s21, 0")
        a(f"s_mov_b32 s54, {32*1152}"); a("s_mov_b32 s63, 0x40000000")
        a("s_movk_i32 s62, 4608"); a(f"s_lshl_b32 s3, {WAVE}, 7")
        a(f"s_branch L_r2_{u}")
        a.label(f"L_r1_{u}")
        a(f"s_sub_u32 {ROLE}, s2, 144"); a(f"s_lshr_b32 {ROLE}, {ROLE}, 3")
        a("s_and_b32 s3, s2, 7"); a(f"s_mul_i32 s3, s3, {512*1152}"); a(f"s_lshl_b32 s62, {ROLE}, 7")
        a(f"s_sub_u32 s54, {512*1152}, s62"); a("s_add_u32 s3, s3, s62")
        a("s_cmp_lt_u32 s2, 216"); a("s_cselect_b32 s54, s54, 0"); a("s_cselect_b32 s3, s3, 0")
        a("s_add_u32 s52, s12, s3"); a("s_addc_u32 s53, s13, 0")
        a("s_movk_i32 s63, 4608"); a("s_movk_i32 s62, 9216"); a(f"s_mul_i32 s3, {WAVE}, {64*1152}")
        a.label(f"L_r2_{u}")
        a(f"v_lshrrev_b32 v{T[4]}, 3, {LANE}"); a(f"v_mul_lo_u32 v{T[4]}, v{T[4]}, s62")
        a(f"v_and_b32 v{T[5]}, 7, {LANE}"); a(f"v_lshl_add_u32 v{T[4]}, v{T[5]}, 4, v{T[4]}")
        a(f"v_add_u32 {VG}, s3, v{T[4]}")
    def tag_setup():
        a(f"s_add_u32 {EP1}, {EP1}, 1"); a(f"s_and_b32 {TAG}, {EP1}, 0xfff"); a(f"v_mov_b32 {VTAG}, {TAG}")

    order = []; free = list(range(NSLOT)); slot_of = {}
    def alloc(item):
        s = free.pop(0); slot_of[item] = SLOT0 + 4 * s; return slot_of[item]
    def release(item): free.append((slot_of[item] - SLOT0) // 4)
    def issue(item):
        k, i = item
        if k == "k" or k == "v":
            r = alloc(item)
            if item == ("v", 0): a("s_mov_b32 s60, 0")
            a(f"buffer_load_dwordx4 {v4(r)}, {VKV}, {sK if k == 'k' else sV}, s60 offen {pol}")
            a("s_addk_i32 s60, 0x2000")
        elif k == "w":
            r = alloc(item)
            a(f"buffer_load_dwordx4 {v4(r)}, {VW}, {sWQ}, s61 offen {wpol}")
            a("s_addk_i32 s61, 0x2000")
        elif k == "g":
            r = alloc(item)
            a(f"buffer_load_dwordx4 {v4(r)}, {VG}, {sG}, {'0' if i < 4 else 's63'} offen offset:{(i % 4) * 1152} {wpol}")
        elif k == "x":
            if i == 0: r = alloc(item); a(f"buffer_load_dwordx4 {v4(r)}, v{T[0]}, {sX}, 0 offen")
            if i == 1: r = alloc(item); a(f"buffer_load_dwordx4 {v4(r)}, v{T[0]}, {sX}, 0 offen offset:1024")
            if i == 2: a(f"buffer_load_dwordx4 {v4(S)}, v{T[2]}, {sX}, 0 offen")
            if i == 3: a(f"buffer_load_dwordx4 {v4(S+4)}, v{T[2]}, {sX}, 0 offen offset:16")
            if i == 4: a(f"buffer_load_dword v{S+8}, v{T[2]}, {sX}, 0 offen offset:32")
        order.append(item)
    known = [-1]
    def wait_idx(idx):
        if idx > known[0]:
            a(f"s_waitcnt vmcnt({len(order) - 1 - idx})"); known[0] = idx
    def wait_item(item): wait_idx(order.index(item))
    def landed(item): return item in order and order.index(item) <= known[0]

    def task_ln():
        wait_item(("x", 4))
        x0, x1 = slot_of[("x", 0)], slot_of[("x", 1)]
        U = [B[0] + i for i in range(8)]
        for i in range(4):
            a(f"v_lshlrev_b32 v{U[2*i]}, 16, v{x0+i}"); a(f"v_and_b32 v{U[2*i+1]}, {HI}, v{x0+i}")
        U2 = [x0 + i for i in range(4)] + [Q + i for i in range(4)]
        for i in range(4):
            a(f"v_lshlrev_b32 v{U2[2*i]}, 16, v{x1+i}")
        for i in range(4):
            a(f"v_and_b32 v{U2[2*i+1]}, {HI}, v{x1+i}")
        s = f"v{T[0]}"; t = f"v{T[1]}"
        a(f"v_add_f32 {s}, v{U[0]}, v{U[1]}")
        for r in U[2:] + U2: a(f"v_add_f32 {s}, {s}, v{r}")
        allred16([s]); allred_rows(s, t)
        a(f"v_mul_f32 {s}, {f32(1/576)}, {s}")
        q2 = f"v{T[2]}"
        for r in U: a(f"v_sub_f32 v{r}, v{r}, {s}")
        a(f"v_mul_f32 {q2}, v{U[0]}, v{U[0]}")
        for r in U[1:]: a(f"v_fmac_f32 {q2}, v{r}, v{r}")
        a("s_mov_b64 exec, 0xff")
        for r in U2: a(f"v_sub_f32 v{r}, v{r}, {s}")
        for r in U2: a(f"v_fmac_f32 {q2}, v{r}, v{r}")
        a("s_mov_b64 exec, -1")
        allred16([q2]); allred_rows(q2, t)
        a(f"v_mul_f32 {q2}, {f32(1/576)}, {q2}")
        rbf(s, s); rbf(q2, q2)
        a(f"v_add_f32 {q2}, {f32(1e-5)}, {q2}"); rbf(q2, q2)
        a(f"v_sqrt_f32 {q2}, {q2}"); rbf(q2, q2)
        a(f"v_rcp_f32 {q2}, {q2}")
        for i in range(9):
            lo, hi = f"v{T[3]}", f"v{T[4]}"
            a(f"v_lshlrev_b32 {lo}, 16, v{S+i}"); a(f"v_and_b32 {hi}, {HI}, v{S+i}")
            a(f"v_sub_f32 {lo}, {lo}, {s}"); a(f"v_sub_f32 {hi}, {hi}, {s}")
            a(f"v_cvt_pk_bf16_f32 v{S+i}, {lo}, {hi}")
            a(f"v_lshlrev_b32 {lo}, 16, v{S+i}"); a(f"v_and_b32 {hi}, {HI}, v{S+i}")
            a(f"v_mul_f32 {lo}, {lo}, {q2}"); a(f"v_mul_f32 {hi}, {hi}, {q2}")
            a(f"v_cvt_pk_bf16_f32 v{S+i}, {lo}, {hi}")
        release(("x", 0)); release(("x", 1))
        a("s_mov_b32 s72, 0x01000100"); a("s_mov_b32 s73, 0x03020302")
    def task_wq(t):
        wait_item(("w", t)); b = B[t & 1]
        a(f"v_perm_b32 v{T[0]}, v{S+t//2}, v{S+t//2}, {'s73' if t & 1 else 's72'}")
        selector(b, f"v{T[0]}")
        mfma(slot_of[("w", t)], b, first=(t == 0)); release(("w", t))
    def acc_addr(dst, valid):
        a(f"v_lshrrev_b32 {dst}, 4, {LANE}")
        if valid == "two": a(f"v_and_b32 {dst}, 1, {dst}")
        a(f"v_lshlrev_b32 {dst}, 7, {dst}"); a(f"v_and_b32 v{T[7]}, 7, {LANE}"); a(f"v_lshl_add_u32 {dst}, v{T[7]}, 2, {dst}")
    PLAIN, TWO = 0x00FF00FF00FF00FF, 0xFF00FF0000FF00FF
    def task_qfin():
        acc_addr(f"v{T[0]}", "plain")
        setexec(PLAIN)
        for r in range(4): a(f"ds_add_f32 v{T[0]}, v{D+r} offset:{L_Q + 32*r}")
        a("s_mov_b64 exec, -1")
        a(f"v_and_b32 v{T[0]}, 15, {LANE}"); a(f"v_lshlrev_b32 v{T[0]}, 5, v{T[0]}")
        a("s_waitcnt lgkmcnt(0)"); a("s_barrier")
        a(f"ds_read_b128 {v4(B[0])}, v{T[0]} offset:{L_Q}"); a(f"ds_read_b128 {v4(B[1])}, v{T[0]} offset:{L_Q+16}")
        tag_setup()
        a(f"v_mov_b32 {VM}, 0xff800000"); a(f"v_mov_b32 {VL}, 0")
        a("s_waitcnt lgkmcnt(0)")
        for i in range(4): a(f"v_cvt_pk_bf16_f32 v{Q+i}, v{B[0]+2*i}, v{B[0]+2*i+1}")
        stamp(1)
    def task_kq(q):
        wait_item(("k", 4*q+3))
        for x in range(4):
            r = slot_of[("k", 4*q+x)]
            for i in range(4):
                a(f"v_dot2_f32_bf16 v{T[x]}, v{r+i}, v{Q+i}, {'0' if i == 0 else 'v%d' % T[x]}")
            release(("k", 4*q+x))
        allred16([f"v{T[x]}" for x in range(4)])
        a(f"v_cvt_pk_bf16_f32 v{T[4]}, v{T[0]}, v{T[1]}"); a(f"v_cvt_pk_bf16_f32 v{T[5]}, v{T[2]}, v{T[3]}")
        a(f"v_lshlrev_b32 v{T[0]}, 16, v{T[4]}"); a(f"v_and_b32 v{T[1]}, {HI}, v{T[4]}")
        a(f"v_lshlrev_b32 v{T[2]}, 16, v{T[5]}"); a(f"v_and_b32 v{T[3]}, {HI}, v{T[5]}")
        for x in range(4): a(f"v_mul_f32 v{T[x]}, {SCALE}, v{T[x]}")
        a(f"v_cvt_pk_bf16_f32 v{S+2*q}, v{T[0]}, v{T[1]}"); a(f"v_cvt_pk_bf16_f32 v{S+2*q+1}, v{T[2]}, v{T[3]}")
        a(f"v_max3_f32 {VM}, {VM}, v{T[0]}, v{T[1]}"); a(f"v_max3_f32 {VM}, {VM}, v{T[2]}, v{T[3]}")
    PA, PB = f"v{T[5]}", f"v{T[6]}"
    def prep_pv(j):
        if j % 2 == 0:
            a(f"v_lshlrev_b32 {PA}, 16, v{S+j//2}"); a(f"v_and_b32 {PB}, {HI}, v{S+j//2}")
            a(f"v_fma_f32 {PA}, {PA}, {LOG2E}, -{VF}"); a(f"v_fma_f32 {PB}, {PB}, {LOG2E}, -{VF}")
            a(f"v_exp_f32 {PA}, {PA}"); a(f"v_exp_f32 {PB}, {PB}")
        p = PA if j % 2 == 0 else PB
        a(f"v_cvt_pk_bf16_f32 v{T[0]}, {p}, {p}"); a(f"v_add_f32 {VL}, {VL}, {p}")
        selector(B[j & 1], f"v{T[0]}")
    def task_smax():
        allred_rows(VM, f"v{T[0]}", "v_max_f32"); rbf(VM, VM)
        a(f"s_lshl_b32 s3, {WAVE}, 2"); a(f"v_mov_b32 v{T[0]}, s3")
        a(f"ds_write_b32 v{T[0]}, {VM} offset:{L_MW}")
        a(f"v_mul_f32 {VF}, {LOG2E}, {VM}")
        stamp(2)
        prep_pv(0)
    def wgmax(dst):
        a(f"v_mov_b32 v{T[0]}, 0")
        a(f"ds_read_b128 {v4(Q)}, v{T[0]} offset:{L_MW}"); a(f"ds_read_b128 v[{T[1]+1}:{T[1]+4}], v{T[0]} offset:{L_MW+16}")
        a("s_waitcnt lgkmcnt(0)")
        a(f"v_max3_f32 {dst}, v{Q}, v{Q+1}, v{Q+2}"); a(f"v_max3_f32 {dst}, {dst}, v{Q+3}, v{T[1]+1}")
        a(f"v_max3_f32 {dst}, {dst}, v{T[1]+2}, v{T[1]+3}"); a(f"v_max_f32 {dst}, {dst}, v{T[1]+4}")
    def task_pv(j):
        wait_item(("v", j))
        mfma(slot_of[("v", j)], B[j & 1], first=(j == 0)); release(("v", j))
        if j == jB2:
            assert j % 2 == 1
            a("s_waitcnt lgkmcnt(0)"); a("s_barrier")
            wgmax(f"v{T[1]}")
            a(f"v_sub_f32 {VM}, {VM}, v{T[1]}"); a(f"v_mul_f32 {VM}, {LOG2E}, {VM}"); a(f"v_exp_f32 {VM}, {VM}")
        if j < 31: prep_pv(j + 1)

    seq = [("x", i) for i in range(5)]
    for i in range(max(18, nK)):
        if i < 18: seq.append(("w", i))
        if i < nK: seq.append(("k", i))
    nA = len(seq)
    seq += [("k", i) for i in range(nK, 32)] + [("v", i) for i in range(32)] + [("g", i) for i in range(EW)]
    st = dict(ln=False, wq=0, q=False, kq=0, sm=False, pv=0)
    def run_ready(force=False):
        did = False
        if not st["ln"]:
            if force: task_ln(); st["ln"] = True; return True
            return False
        n = 0
        while st["wq"] < 18 and (landed(("w", st["wq"])) or (force and not did and ("w", st["wq"]) in order)):
            task_wq(st["wq"]); st["wq"] += 1; did = True
        if st["wq"] == 18 and not st["q"]: task_qfin(); st["q"] = True; did = True
        if st["q"] and st["kq"] < 8:
            it = ("k", 4 * st["kq"] + 3)
            if landed(it) or (force and not did and it in order): task_kq(st["kq"]); st["kq"] += 1; did = True
            if st["kq"] == 8: task_smax(); st["sm"] = True
            return did
        if st["sm"]:
            while st["pv"] < 32 and n < 2 and (landed(("v", st["pv"])) or (force and not did and ("v", st["pv"]) in order)):
                task_pv(st["pv"]); st["pv"] += 1; n += 1; did = True
        return did
    first_batch = 5 + WA
    for n, item in enumerate(seq):
        if n == first_batch:
            late_setup()
            a("s_barrier")
            run_ready(force=True)
        W = WA if n < nA else Wn
        if n >= first_batch: wait_idx(n - W)
        while not free and item[0] != "x":
            assert run_ready(force=True)
        issue(item)
        if n >= first_batch: run_ready()
    acc_addr(f"v{T[2]}", "plain")
    allred_pending = True
    while st["pv"] < 32: assert run_ready(force=True)
    stamp(3)
    allred_rows(VL, f"v{T[0]}")
    a(f"v_mul_f32 {VL}, {VL}, {VM}"); a(f"v_mov_b32 v{T[0]}, 0")
    for r in range(4): a(f"v_mul_f32 v{D+r}, v{D+r}, {VM}")
    setexec(PLAIN)
    for r in range(4): a(f"ds_add_f32 v{T[2]}, v{D+r} offset:{L_O + 32*r}")
    a("s_mov_b64 exec, 1")
    a(f"ds_add_f32 v{T[0]}, {VL} offset:{L_ML + 4}")
    a("s_mov_b64 exec, -1")
    a("s_waitcnt lgkmcnt(0)"); a("s_barrier")
    a("s_barrier")
    for i in range(EW, 8): issue(("g", i))
    G = [slot_of[("g", i)] for i in range(8)]
    F = [SLOT0 + 4 * s for s in free]
    assert len(F) >= 14
    a("s_branch L_tail")

    a.label("L_helper")
    a(f"v_mov_b32 v{B[0]}, 0"); a(f"v_mov_b32 v{B[0]+1}, 0"); a(f"v_mov_b32 v{B[0]+2}, 0"); a(f"v_mov_b32 v{B[0]+3}, 0")
    a(f"ds_write_b128 v{T[0]}, {v4(B[0])}"); a(f"ds_write_b128 v{T[0]}, {v4(B[0])} offset:1024")
    late_setup()
    a("s_waitcnt lgkmcnt(0)"); a("s_barrier")
    tag_setup()
    if codepf:
        a("s_getpc_b64 s[74:75]"); a.label("L_pc")
        a(f"s_sub_u32 s74, s74, L_pc-{KNAME}"); a("s_subb_u32 s75, s75, 0")
        a(f"v_lshlrev_b32 v{T[1]}, 6, {LANE}"); a(f"v_mov_b32 v{T[2]}, L_end-{KNAME}-4")
        for j in range(codepf):
            a(f"v_min_u32 v{T[3]}, v{T[1]}, v{T[2]}"); a(f"global_load_dword v{T[4]}, v{T[3]}, s[74:75]")
            a(f"v_add_u32 v{T[1]}, 4096, v{T[1]}")
    a(f"s_lshl_b32 s3, {HEAD}, 3"); a(f"s_add_u32 s3, s3, {SPLIT}")
    a(f"s_lshl_b32 s62, s3, 9"); a(f"s_add_u32 s62, s62, {O1}"); a(f"v_add_u32 {VW}, s62, v{T[0]}")
    a("s_lshl_b32 s62, s3, 4"); a(f"s_add_u32 s62, s62, {ML}"); a(f"v_writelane_b32 {VW}, s62, 32")
    a("s_barrier")
    a("s_barrier")
    a(f"v_mov_b32 {VKV}, v{T[0]}")
    wgmax(VM)
    a(f"ds_write_b32 v{T[0]}, {VM} offset:{L_ML}"); a(f"ds_write_b32 v{T[0]}, {VM} offset:{L_ML+8}")
    for i in range(4): a(f"buffer_load_dwordx4 {v4(G[i])}, {VG}, {sG}, 0 offen offset:{i * 1152} {wpol}")
    a("s_setprio 3")
    a("s_waitcnt lgkmcnt(0)"); a("s_barrier")
    a(f"ds_read_b128 {v4(B[0])}, {VKV} offset:{L_O}")
    setexec((1 << 33) - 1)
    a("s_waitcnt lgkmcnt(0)")
    for i in range(4): a(f"v_and_or_b32 v{B[0]+i}, v{B[0]+i}, {TMASK}, {VTAG}")
    a(f"buffer_store_dwordx4 {v4(B[0])}, {VW}, {sWS}, 0 offen sc1")
    a("s_mov_b64 exec, -1")
    a("s_barrier")
    a("s_setprio 0")

    a.label("L_tail")
    stamp(4)
    a("s_cmp_lt_u32 s2, 144"); a("s_cbranch_scc1 L_ffn")
    a("s_cmp_lt_u32 s2, 216"); a("s_cbranch_scc1 L_wo")
    a("s_cmp_lt_u32 s2, 252"); a("s_cbranch_scc1 L_red")
    a("s_branch L_done")

    a.label("L_wo")
    a(f"s_cmp_eq_u32 {WAVE}, 8"); a("s_cbranch_scc1 L_wo_pub")
    OA, OB, MLr = F[0], F[1], F[2]
    a("s_and_b32 s3, s2, 7"); a("s_lshl_b32 s3, s3, 2"); a(f"s_lshr_b32 s62, {WAVE}, 1"); a("s_add_u32 s3, s3, s62")
    a(f"s_lshl_b32 s62, s3, 12"); a(f"s_and_b32 s60, {WAVE}, 1"); a("s_lshl_b32 s60, s60, 8"); a("s_add_u32 s62, s62, s60")
    a(f"s_add_u32 s62, s62, {O1}")
    a(f"v_lshrrev_b32 v{T[4]}, 4, {LANE}"); a(f"v_and_b32 v{T[5]}, 15, {LANE}")
    a(f"v_lshlrev_b32 {VKV}, 9, v{T[4]}"); a(f"v_lshl_add_u32 {VKV}, v{T[5]}, 4, {VKV}"); a(f"v_add_u32 {VKV}, s62, {VKV}")
    a("s_lshl_b32 s62, s3, 7"); a(f"s_add_u32 s62, s62, {ML}")
    a(f"v_bfe_u32 v{T[6]}, {LANE}, 3, 1"); a(f"v_lshl_add_u32 v{T[6]}, v{T[6]}, 2, v{T[4]}")
    a(f"v_lshlrev_b32 {VW}, 4, v{T[6]}"); a(f"v_add_u32 {VW}, s62, {VW}")
    a(f"s_lshl_b32 s62, {WAVE}, 8"); a(f"s_add_u32 s62, s62, {L_W}")
    a(f"v_lshlrev_b32 {VL}, 4, v{T[5]}"); a(f"v_lshl_add_u32 {VL}, v{T[4]}, 2, {VL}"); a(f"v_add_u32 {VL}, s62, {VL}")
    a(f"v_lshrrev_b32 {VF}, 3, {LANE}"); a(f"v_lshlrev_b32 {VF}, 5, {VF}"); a(f"v_add_u32 {VF}, s62, {VF}")
    acc_addr(VM, "two")
    a("s_mov_b32 s74, 0xff00ff00"); a("s_mov_b32 s75, 0xff00ff00")
    poll("L_p1", [f"buffer_load_dwordx4 {v4(MLr)}, {VW}, {sWS}, 0 offen sc1",
                  f"buffer_load_dwordx4 {v4(OA)}, {VKV}, {sWS}, 0 offen sc1",
                  f"buffer_load_dwordx4 {v4(OB)}, {VKV}, {sWS}, 0 offen offset:2048 sc1"], [MLr, OA, OB], 0)
    stamp(5)
    m1, l1, m2, l2, M, t = (f"v{T[i]}" for i in range(6))
    a(f"v_and_b32 {m1}, {TMASK}, v{MLr}"); a(f"v_and_b32 {l1}, {TMASK}, v{MLr+1}")
    for i in range(4): a(f"v_and_b32 v{OA+i}, {TMASK}, v{OA+i}")
    a(f"v_mov_b32_dpp {m2}, {m1} row_ror:8 row_mask:0xf bank_mask:0xf"); a(f"v_mov_b32_dpp {l2}, {l1} row_ror:8 row_mask:0xf bank_mask:0xf")
    for i in range(4): a(f"v_and_b32 v{OB+i}, {TMASK}, v{OB+i}")
    a(f"v_max_f32 {M}, {m1}, {m2}"); allred_rows(M, t, "v_max_f32")
    a(f"v_sub_f32 {m1}, {m1}, {M}"); a(f"v_sub_f32 {m2}, {m2}, {M}")
    a(f"v_mul_f32 {m1}, {LOG2E}, {m1}"); a(f"v_mul_f32 {m2}, {LOG2E}, {m2}")
    a(f"v_exp_f32 {m1}, {m1}"); a(f"v_exp_f32 {m2}, {m2}")
    a(f"v_mul_f32 {l1}, {l1}, {m1}"); a(f"v_fmac_f32 {l1}, {l2}, {m2}")
    a(f"v_cndmask_b32 {l2}, {m1}, {m2}, s[74:75]"); a(f"v_cndmask_b32 {m2}, {m2}, {m1}, s[74:75]")
    for i in range(4): a(f"v_mul_f32 v{OA+i}, v{OA+i}, {l2}")
    for i in range(4): a(f"v_fmac_f32 v{OA+i}, v{OB+i}, {m2}")
    allred_rows(l1, t)
    rows_scatter(*(f"v{OA+i}" for i in range(4)))
    a(f"v_rcp_f32 {l1}, {l1}")
    a(f"v_mul_f32 v{OA}, v{OA}, {l1}")
    a(f"v_cvt_pk_bf16_f32 v{OA}, v{OA}, v{OA}")
    a(f"ds_write_b32 {VL}, v{OA}")
    a("s_waitcnt lgkmcnt(0)")
    a(f"ds_read_b128 {v4(OA)}, {VF}"); a(f"ds_read_b128 {v4(OB)}, {VF} offset:16")
    for tt in range(8):
        if tt == 0: a("s_waitcnt lgkmcnt(1)")
        if tt == 4: a("s_waitcnt lgkmcnt(0)")
        selector(B[tt & 1], f"v{(OA if tt < 4 else OB) + tt % 4}")
        mfma(G[tt], B[tt & 1], first=(tt == 0))
    setexec(TWO)
    for r in range(4): a(f"ds_add_f32 {VM}, v{D+r} offset:{L_ACC + 32*r}")
    a("s_waitcnt lgkmcnt(0)"); a("s_barrier")
    a("s_branch L_done")
    a.label("L_wo_pub")
    a("s_and_b32 s3, s2, 7"); a("s_lshl_b32 s3, s3, 8"); a(f"s_lshl_b32 s62, {ROLE}, 11"); a("s_add_u32 s3, s3, s62"); a(f"s_add_u32 s3, s3, {Z2}")
    a(f"v_add_u32 {VW}, s3, {VKV}")
    a("s_mov_b64 exec, 0xffff")
    a("s_barrier")
    a(f"ds_read_b128 {v4(B[0])}, {VKV} offset:{L_ACC}")
    a("s_waitcnt lgkmcnt(0)")
    for i in range(4): a(f"v_and_or_b32 v{B[0]+i}, v{B[0]+i}, {TMASK}, {VTAG}")
    a(f"buffer_store_dwordx4 {v4(B[0])}, {VW}, {sWS}, 0 offen sc1")
    stamp(6)
    a("s_branch L_done")

    a.label("L_ffn")
    W13 = F[0:9]; ZA, ZB = F[9], F[10]; HX = F[11]
    AD = f"v[{HX}:{HX+1}]"
    a(f"s_cmp_eq_u32 {WAVE}, 8"); a("s_cbranch_scc1 L_ffn_now13")
    a(f"v_lshrrev_b32 v{T[4]}, 3, {LANE}"); a(f"v_mul_u32_u24 v{T[4]}, 9, v{T[4]}")
    a(f"s_mul_i32 s3, {WAVE}, 72"); a(f"v_add_u32 {VF}, s3, v{T[4]}")
    a(f"v_mul_u32_u24 v{T[4]}, 9216, {VF}")
    a(f"v_and_b32 v{T[5]}, 3, {LANE}"); a(f"v_lshl_add_u32 v{T[4]}, v{T[5]}, 4, v{T[4]}")
    a(f"s_lshl_b32 s3, {ROLE}, 6"); a(f"v_add_u32 v{T[4]}, s3, v{T[4]}")
    a("s_mov_b32 s74, 0xf0f0f0f0"); a("s_mov_b32 s75, 0xf0f0f0f0")
    a(f"v_mov_b32 v{HX}, s16"); a(f"v_mov_b32 v{HX+1}, s17"); a(f"v_mov_b32 v{HX+2}, s18"); a(f"v_mov_b32 v{HX+3}, s19")
    a(f"v_cndmask_b32 v{HX}, v{HX}, v{HX+2}, s[74:75]"); a(f"v_cndmask_b32 v{HX+1}, v{HX+1}, v{HX+3}, s[74:75]")
    a(f"v_add_co_u32 v{HX}, vcc, v{HX}, v{T[4]}"); a(f"v_addc_co_u32 v{HX+1}, vcc, 0, v{HX+1}, vcc")
    a("s_movk_i32 s72, 9216"); a("s_mov_b32 s73, 0")
    for tt in range(9):
        a(f"global_load_dwordx4 {v4(W13[tt])}, {AD}, off {wpol}")
        if tt < 8: a(f"v_lshl_add_u64 {AD}, s[72:73], 0, {AD}")
    a(f"v_lshlrev_b32 {VF}, 2, {VF}"); a(f"v_add_u32 {VF}, {L_H}, {VF}")
    a.label("L_ffn_now13")
    a(f"v_lshrrev_b32 v{T[4]}, 4, {LANE}"); a(f"v_and_b32 v{T[5]}, 15, {LANE}")
    a(f"s_lshl_b32 s3, {WAVE}, 11"); a(f"s_add_u32 s3, s3, {Z2}")
    a(f"v_lshlrev_b32 {VKV}, 8, v{T[4]}"); a(f"v_lshl_add_u32 {VKV}, v{T[5]}, 4, {VKV}"); a(f"v_add_u32 {VKV}, s3, {VKV}")
    a(f"s_lshl_b32 s3, {WAVE}, 6"); a(f"v_lshl_add_u32 {VL}, v{T[5]}, 2, v{T[4]}"); a(f"v_add_u32 {VL}, s3, {VL}")
    a(f"v_lshlrev_b32 v{T[6]}, 1, {VL}"); a(f"v_lshlrev_b32 {VL}, 2, {VL}")
    a(f"buffer_load_ushort v{HX+2}, v{T[6]}, {sX}, 0 offen")
    acc_addr(VM, "two")
    a(f"v_bfe_u32 {VW}, {LANE}, 4, 1"); a(f"v_lshlrev_b32 {VW}, 2, {VW}")
    poll("L_p2", [f"buffer_load_dwordx4 {v4(ZA)}, {VKV}, {sWS}, 0 offen sc1",
                  f"buffer_load_dwordx4 {v4(ZB)}, {VKV}, {sWS}, 0 offen offset:1024 sc1"], [ZA, ZB], sleep2)
    stamp(5)
    for i in range(4): a(f"v_and_b32 v{ZA+i}, {TMASK}, v{ZA+i}"); a(f"v_and_b32 v{ZB+i}, {TMASK}, v{ZB+i}")
    for i in range(4): a(f"v_add_f32 v{ZA+i}, v{ZA+i}, v{ZB+i}")
    a(f"v_lshlrev_b32 v{HX+2}, 16, v{HX+2}")
    rows_scatter(*(f"v{ZA+i}" for i in range(4)))
    h = f"v{ZA}"; h2 = f"v{ZA+1}"
    rbf(h, h); a(f"v_add_f32 {h}, {h}, v{HX+2}"); rbf(h, h)
    a(f"ds_write_b32 {VL}, {h} offset:{L_H}")
    a(f"v_mul_f32 {h2}, {h}, {h}")
    allred16([h, h2])
    a(f"v_permlane16_swap_b32 {h}, {h2}"); a(f"v_add_f32 {h}, {h}, {h2}")
    setexec(0x0001000100010001)
    a(f"ds_add_f32 {VW}, {h} offset:{L_ST}")
    a("s_mov_b64 exec, -1")
    a(f"v_mov_b32 v{T[7]}, 0")
    a("s_waitcnt lgkmcnt(0)"); a("s_barrier")
    a(f"s_cmp_eq_u32 {WAVE}, 8"); a("s_cbranch_scc1 L_ffn_b6")
    HV = [ZA + i for i in range(4)] + [ZB + i for i in range(4)] + [HX]
    a(f"ds_read_b64 v[{T[0]}:{T[1]}], v{T[7]} offset:{L_ST}")
    for i in range(4): a(f"ds_read2_b32 v[{HV[2*i]}:{HV[2*i+1]}], {VF} offset0:{2*i} offset1:{2*i+1}")
    a(f"ds_read_b32 v{HV[8]}, {VF} offset:32")
    mu, var = f"v{T[0]}", f"v{T[1]}"
    a("s_waitcnt lgkmcnt(5)")
    a(f"v_mul_f32 {mu}, {f32(1/576)}, {mu}"); a(f"v_mul_f32 {var}, {f32(1/576)}, {var}")
    a(f"v_fma_f32 {var}, -{mu}, {mu}, {var}"); a(f"v_max_f32 {var}, 0, {var}")
    rbf(mu, mu); rbf(var, var)
    a(f"v_add_f32 {var}, {f32(1e-5)}, {var}"); rbf(var, var)
    a(f"v_sqrt_f32 {var}, {var}"); rbf(var, var)
    a(f"v_rcp_f32 {var}, {var}")
    a(f"v_mul_f32 {mu}, {mu}, {var}")
    a("s_waitcnt lgkmcnt(0)")
    for tt in range(9):
        a(f"v_fma_f32 v{HV[tt]}, v{HV[tt]}, {var}, -{mu}")
    for tt in range(9):
        a(f"v_cvt_pk_bf16_f32 v{HV[tt]}, v{HV[tt]}, v{HV[tt]}")
        selector(B[tt & 1], f"v{HV[tt]}")
        mfma(W13[tt], B[tt & 1], first=(tt == 0))
    setexec(TWO)
    for r in range(4): a(f"ds_add_f32 {VM}, v{D+r} offset:{L_ACC + 32*r}")
    a("s_mov_b64 exec, -1")
    a.label("L_ffn_b6")
    a(f"v_lshrrev_b32 v{T[7]}, 3, {LANE}"); a(f"v_lshlrev_b32 v{T[7]}, 4, v{T[7]}")
    a(f"s_mul_i32 s3, {ROLE}, 2304"); a(f"s_lshl_b32 s62, {WAVE}, 8"); a("s_add_u32 s3, s3, s62"); a(f"s_add_u32 s3, s3, {P3}")
    a(f"v_lshrrev_b32 {VW}, 4, {LANE}"); a(f"v_lshlrev_b32 {VW}, 7, {VW}"); a(f"v_and_b32 v{T[6]}, 7, {LANE}")
    a(f"v_lshl_add_u32 {VW}, v{T[6]}, 4, {VW}"); a(f"v_add_u32 {VW}, s3, {VW}")
    a("s_waitcnt lgkmcnt(0)"); a("s_barrier")
    a(f"ds_read_b128 {v4(ZA)}, v{T[7]} offset:{L_ACC}"); a(f"ds_read_b128 {v4(ZB)}, v{T[7]} offset:{L_ACC+128}")
    a("s_waitcnt lgkmcnt(1)")
    g = [f"v{ZA+i}" for i in range(4)]; u = [f"v{ZB+i}" for i in range(4)]; e = [f"v{T[i]}" for i in range(4)]
    def rbf4(x):
        a(f"v_cvt_pk_bf16_f32 {x[1]}, {x[0]}, {x[1]}"); a(f"v_cvt_pk_bf16_f32 {x[3]}, {x[2]}, {x[3]}")
        a(f"v_lshlrev_b32 {x[0]}, 16, {x[1]}"); a(f"v_lshlrev_b32 {x[2]}, 16, {x[3]}")
        a(f"v_and_b32 {x[1]}, {HI}, {x[1]}"); a(f"v_and_b32 {x[3]}, {HI}, {x[3]}")
    rbf4(g)
    for i in range(4): a(f"v_mul_f32 {e[i]}, {f32(-1.4426950408889634)}, {g[i]}")
    for i in range(4): a(f"v_exp_f32 {e[i]}, {e[i]}")
    a("s_waitcnt lgkmcnt(0)")
    rbf4(u)
    for i in range(4): a(f"v_add_f32 {e[i]}, 1.0, {e[i]}")
    for i in range(4): a(f"v_rcp_f32 {e[i]}, {e[i]}")
    for i in range(4): a(f"v_mul_f32 {g[i]}, {g[i]}, {e[i]}")
    rbf4(g)
    for i in range(4): a(f"v_mul_f32 {g[i]}, {g[i]}, {u[i]}")
    for tt in range(4):
        a(f"v_cvt_pk_bf16_f32 {g[tt]}, {g[tt]}, {g[tt]}")
        selector(B[tt & 1], g[tt])
        mfma(G[tt], B[tt & 1], first=(tt == 0))
    for r in range(4): a(f"v_permlane32_swap_b32 v{D+r}, {e[r]}")
    for r in range(4): dpp("v_add_f32", f"v{D+r}", e[r], f"v{D+r}", "row_ror:8")
    for r in range(4): a(f"v_and_or_b32 v{D+r}, v{D+r}, {TMASK}, {VTAG}")
    a("s_mov_b64 exec, 0x00ff00ff")
    a(f"buffer_store_dwordx4 {v4(D)}, {VW}, {sWS}, 0 offen sc1")
    stamp(6)
    a("s_branch L_done")

    a.label("L_red")
    PA_, HH = F[0], F[1]
    a(f"s_sub_u32 {ROLE}, s2, 216")
    a(f"v_and_b32 v{T[4]}, 3, {LANE}")
    a(f"s_lshr_b32 s3, {ROLE}, 1"); a("s_lshl_b32 s3, s3, 5"); a(f"s_and_b32 s62, {ROLE}, 1"); a("s_lshl_b32 s62, s62, 2"); a("s_add_u32 s3, s3, s62")
    a(f"v_lshl_add_u32 {VL}, v{T[4]}, 3, s3"); a(f"v_lshlrev_b32 {VL}, 1, {VL}")
    a(f"s_cmp_lg_u32 {WAVE}, 0"); a("s_cbranch_scc1 L_red_h3")
    a(f"buffer_load_dwordx2 v[{Q}:{Q+1}], {VL}, {sX}, 0 offen")
    a(f"s_lshr_b32 s62, {ROLE}, 2"); a("s_lshl_b32 s62, s62, 11"); a("s_and_b32 s3, s3, 63"); a("s_lshl_b32 s3, s3, 2")
    a("s_add_u32 s3, s3, s62"); a(f"s_add_u32 s3, s3, {Z2}")
    a(f"v_bfe_u32 {VKV}, {LANE}, 2, 3"); a(f"v_lshlrev_b32 {VKV}, 8, {VKV}"); a(f"v_lshl_add_u32 {VKV}, v{T[4]}, 5, {VKV}")
    a(f"v_add_u32 {VKV}, s3, {VKV}")
    poll("L_p2r", [f"buffer_load_dwordx4 {v4(HH)}, {VKV}, {sWS}, 0 offen sc1"], [HH], 2)
    hv = [f"v{HH+i}" for i in range(4)]; e = [f"v{T[i]}" for i in range(4)]
    for i in range(4): a(f"v_and_b32 {hv[i]}, {TMASK}, {hv[i]}")
    allred16(hv, steps=(4, 8))
    for i in range(4): a(f"v_mov_b32 {e[i]}, {hv[i]}")
    for i in range(4): a(f"v_permlane16_swap_b32 {hv[i]}, {e[i]}")
    for i in range(4): a(f"v_add_f32 {hv[i]}, {hv[i]}, {e[i]}")
    rbf4(hv)
    a(f"v_lshlrev_b32 {e[0]}, 16, v{Q}"); a(f"v_and_b32 {e[1]}, {HI}, v{Q}"); a(f"v_lshlrev_b32 {e[2]}, 16, v{Q+1}"); a(f"v_and_b32 {e[3]}, {HI}, v{Q+1}")
    for i in range(4): a(f"v_add_f32 {hv[i]}, {hv[i]}, {e[i]}")
    rbf4(hv)
    stamp(5)
    a.label("L_red_h3")
    a(f"v_lshrrev_b32 {VW}, 2, {LANE}"); a(f"s_lshl_b32 s3, {WAVE}, 4"); a(f"v_add_u32 {VW}, s3, {VW}")
    a(f"v_mul_u32_u24 {VW}, 2304, {VW}"); a(f"v_lshl_add_u32 {VW}, v{T[4]}, 4, {VW}")
    a(f"s_lshl_b32 s3, {ROLE}, 6"); a(f"s_add_u32 s3, s3, {P3}"); a(f"v_add_u32 {VW}, s3, {VW}")
    a(f"v_lshlrev_b32 {VM}, 2, v{T[4]}"); a(f"v_lshlrev_b32 {VF}, 4, v{T[4]}")
    poll("L_p3", [f"buffer_load_dwordx4 {v4(PA_)}, {VW}, {sWS}, 0 offen sc1"], [PA_], sleep3)
    stamp(6)
    pv = [f"v{PA_+i}" for i in range(4)]
    for i in range(4): a(f"v_and_b32 {pv[i]}, {TMASK}, {pv[i]}")
    allred16(pv, steps=(4, 8))
    setexec(0x000F000F000F000F)
    for r in range(4): a(f"ds_add_f32 {VM}, {pv[r]} offset:{L_ACC + 16*r}")
    a("s_waitcnt lgkmcnt(0)"); a("s_barrier")
    a(f"s_cmp_lg_u32 {WAVE}, 0"); a("s_cbranch_scc1 L_done")
    a("s_mov_b64 exec, 0xf")
    a(f"ds_read_b128 {v4(PA_)}, {VF} offset:{L_ACC}")
    a("s_waitcnt lgkmcnt(0)")
    rbf4(pv)
    for i in range(4): a(f"v_add_f32 {pv[i]}, {pv[i]}, {hv[i]}")
    a(f"v_cvt_pk_bf16_f32 v{Q}, {pv[0]}, {pv[1]}"); a(f"v_cvt_pk_bf16_f32 v{Q+1}, {pv[2]}, {pv[3]}")
    a(f"buffer_store_dwordx2 v[{Q}:{Q+1}], {VL}, {sOUT}, 0 offen")
    a(f"s_cmp_lg_u32 {ROLE}, 0"); a("s_cbranch_scc1 L_done")
    a("s_mov_b64 exec, 1")
    a(f"v_mov_b32 v{T[0]}, {EP1}"); a(f"v_mov_b32 v{T[1]}, {EPOCH}")
    a(f"buffer_store_dword v{T[0]}, v{T[1]}, {sWS}, 0 offen")

    a.label("L_done")
    if diag == 2:
        stamp(7)
        a("s_mov_b64 exec, 1"); a("s_waitcnt lgkmcnt(0)")
        a("s_mov_b32 s76, s24"); a("s_mov_b32 s77, s25"); a("s_movk_i32 s78, 256"); a("s_mov_b32 s79, 0x20000")
        a("s_not_b32 s3, s80"); a("v_mov_b32 v16, s3"); a("v_mov_b32 v17, 0")
        a("buffer_atomic_umax v16, v17, s[76:79], 0 offen sc1")
        a("v_mov_b32 v18, s80"); a("buffer_atomic_umax v18, v17, s[76:79], 0 offen offset:4 sc1")
        a("v_mov_b32 v19, s88"); a("buffer_atomic_umax v19, v17, s[76:79], 0 offen offset:8 sc1")
        a("v_mov_b32 v20, s94"); a("buffer_atomic_umax v20, v17, s[76:79], 0 offen offset:12 sc1")
        a(f"s_cmp_eq_u32 {WAVE}, 8"); a("s_cbranch_scc1 L_exit")
        a("v_mov_b32 v21, s82"); a("buffer_atomic_umax v21, v17, s[76:79], 0 offen offset:16 sc1")
        a("v_mov_b32 v22, s84"); a("buffer_atomic_umax v22, v17, s[76:79], 0 offen offset:20 sc1")
        a("v_mov_b32 v23, s86"); a("buffer_atomic_umax v23, v17, s[76:79], 0 offen offset:24 sc1")
    elif diag:
        stamp(7)
        a("s_mov_b64 exec, 1"); a("s_waitcnt lgkmcnt(0)")
        a("s_mul_i32 s3, s2, 9"); a(f"s_add_u32 s3, s3, {WAVE}"); a("s_lshl_b32 s3, s3, 5"); a(f"s_add_u32 s3, s3, {STAMP}")
        a("v_mov_b32 v28, s3")
        for i in range(8): a(f"v_mov_b32 v{16+i}, s{80+2*i}")
        a(f"buffer_store_dwordx4 v[16:19], v28, {sWS}, 0 offen"); a(f"buffer_store_dwordx4 v[20:23], v28, {sWS}, 0 offen offset:16")
    a.label("L_exit")
    a("s_endpgm")
    a.label("L_end")
    body = a.finalize()
    out = HEADER + "; Generated by gen.py: 256 workgroups (8 streaming waves + 1 helper wave), tagged hand-offs through d_ws.\n"
    out += "; @launch grid=(256,1,1) block=(576,1,1) lds=8192\n"
    out += '.amdgcn_target "amdgcn-amd-amdhsa--gfx950"\n.text\n' + f".globl {KNAME}\n.p2align 8\n.type {KNAME},@function\n"
    out += body
    out += f""".section .rodata,"a"
.p2align 6
.amdhsa_kernel {KNAME}
  .amdhsa_next_free_vgpr 168
  .amdhsa_next_free_sgpr 100
  .amdhsa_accum_offset 168
  .amdhsa_group_segment_fixed_size 0
  .amdhsa_kernarg_size 96
  .amdhsa_user_sgpr_count 2
  .amdhsa_user_sgpr_kernarg_segment_ptr 1
  .amdhsa_system_sgpr_workgroup_id_x 1
.end_amdhsa_kernel
"""
    return out

if __name__ == "__main__":
    kw = eval("dict(" + (sys.argv[2] if len(sys.argv) > 2 else "") + ")")
    open(sys.argv[1], "w").write(gen(**kw))
```

```python
import sys, struct
sys.path.insert(0, "work")
from asmlib import Asm

KNAME = "sequential_preLN__mha_block_cached__glu_gated_swiglu__decode_kernel"
HEADER = open("sequential_preLN__mha_block_cached__glu_gated_swiglu__decode.s.ref").read().split("; Override launch")[0]

def f32(x): return "0x%08x" % struct.unpack("<I", struct.pack("<f", x))[0]

EPOCH, O1, ML, Z2, P3, STAMP = 0, 0x10000, 0x30000, 0x32000, 0x40000, 0x100000
L_ST, L_MW, L_LW, L_Q, L_H, L_P = 0, 128, 160, 256, 512, 4096

def gen(Wn=4, WA=8, nK=18, EW=0, jB2=25, dyn=1, Ww=4, Wv=None, pol="nt", wpol="nt", diag=0, codepf=4, sleep2=0, sleep3=0):
    a = Asm()
    LANE = "v0"; MASK = [4, 5, 6, 7]; Q = 8; D = 12; B = [16, 20]
    VKV, VW, VM, VL, VF, VG, VTAG = "v24", "v25", "v26", "v27", "v1", "v2", "v3"
    T = [28 + i for i in range(8)]
    S = 36
    SLOT0, NSLOT = 52, 29
    sK, sV, sWQ, sX, sWS, sG, sOUT = "s[32:35]", "s[36:39]", "s[40:43]", "s[44:47]", "s[48:51]", "s[52:55]", "s[56:59]"
    WAVE, HEAD, SPLIT, TAG = "s28", "s29", "s30", "s31"
    RID = "s79"; L_ROLE = 192
    assert not (dyn and EW)
    Wv = Wv or Wn
    SCALE, LOG2E, HI, TMASK, TLOW, ROLE, CNT, EP1 = "s64", "s65", "s66", "s67", "s68", "s69", "s70", "s71"
    v4 = lambda r: f"v[{r}:{r+3}]"
    stamps = []
    names = diag.split() if isinstance(diag, str) else ["start", "q", "kend", "vend", "tail", "got", "pub", "end"]
    def stamp(n):
        if diag and n in names:
            i = names.index(n); a(f"s_memrealtime s[{80+2*i}:{81+2*i}]")
    def rbf(dst, src):
        a(f"v_cvt_pk_bf16_f32 {dst}, {src}, {src}"); a(f"v_and_b32 {dst}, {HI}, {dst}")
    def dpp(op, d, s0, s1, ctl): a(f"{op}_dpp {d}, {s0}, {s1} {ctl} row_mask:0xf bank_mask:0xf")
    def allred16(regs, op="v_add_f32", steps=(8, 4, 2, 1)):
        for st in steps:
            for r in regs: dpp(op, r, r, r, f"row_ror:{st}")
    def allred_rows(r, t, op="v_add_f32"):
        a(f"v_mov_b32 {t}, {r}"); a(f"v_permlane16_swap_b32 {r}, {t}"); a(f"{op} {r}, {r}, {t}")
        a(f"v_mov_b32 {t}, {r}"); a(f"v_permlane32_swap_b32 {r}, {t}"); a(f"{op} {r}, {r}, {t}")
    def rows_scatter(r0, r1, r2, r3):
        a(f"v_permlane16_swap_b32 {r0}, {r1}"); a(f"v_permlane16_swap_b32 {r2}, {r3}")
        a(f"v_add_f32 {r0}, {r0}, {r1}"); a(f"v_add_f32 {r2}, {r2}, {r3}")
        a(f"v_permlane32_swap_b32 {r0}, {r2}"); a(f"v_add_f32 {r0}, {r0}, {r2}")
    def selector(b, src):
        for j in range(4): a(f"v_and_b32 v{b+j}, {src}, v{MASK[j]}")
    def mfma(A_, B_, first=False): a(f"v_mfma_f32_16x16x32_bf16 {v4(D)}, {v4(A_)}, {v4(B_)}, {'0' if first else v4(D)}")
    def setexec(m):
        a(f"s_mov_b32 exec_lo, {hex(m & 0xffffffff)}"); a(f"s_mov_b32 exec_hi, {hex(m >> 32)}")
    def tagcheck(quads, t0, t1, t2):
        tmp = []
        first = True
        for qd in quads:
            a(f"v_bitop3_b32 {t1}, v{qd}, v{qd+1}, {TAG} bitop3:0x7e")
            a(f"v_bitop3_b32 {t2}, v{qd+2}, v{qd+3}, {TAG} bitop3:0x7e")
            if first: a(f"v_or_b32 {t0}, {t1}, {t2}"); first = False
            else: a(f"v_or3_b32 {t0}, {t0}, {t1}, {t2}")
        a(f"v_and_b32 {t0}, {TLOW}, {t0}")
        a(f"v_cmp_ne_u32 vcc, 0, {t0}")
    def poll(name, loads, quads, sleep):
        if diag and "wts" in names and name in ("L_p1", "L_p2"): a("s_waitcnt vmcnt(0)"); stamp("wts")
        a(f"s_mov_b32 {CNT}, 0x8000")
        a.label(name)
        for l in loads: a(l)
        a("s_waitcnt vmcnt(0)")
        tagcheck(quads, f"v{T[0]}", f"v{T[1]}", f"v{T[2]}")
        a(f"s_cbranch_vccz {name}_ok")
        if sleep: a(f"s_sleep {sleep}")
        a(f"s_sub_u32 {CNT}, {CNT}, 1"); a(f"s_cmp_lg_u32 {CNT}, 0"); a(f"s_cbranch_scc1 {name}")
        a.label(name + "_ok")
        if diag and "polls" in names and name in ("L_p1", "L_p2", "L_p3"):
            i = names.index("polls"); a(f"s_sub_u32 s{80+2*i}, 0x8001, {CNT}")

    a.label(KNAME)
    a("s_cmp_ge_u32 s2, 256"); a("s_cbranch_scc1 L_exit")
    if diag:
        for i in range(8): a(f"s_mov_b32 s{80+2*i}, 0")
    stamp("start")
    a("s_load_dwordx16 s[4:19], s[0:1], 0"); a("s_load_dwordx8 s[20:27], s[0:1], 64")
    a("v_lshrrev_b32 v1, 6, v0"); a("v_and_b32 v0, 63, v0")
    a(f"v_readfirstlane_b32 {WAVE}, v1")
    a(f"s_and_b32 {HEAD}, s2, 7"); a(f"s_lshl_b32 {HEAD}, {HEAD}, 2"); a("s_bfe_u32 s3, s2, 0x20003"); a(f"s_add_u32 {HEAD}, {HEAD}, s3")
    a(f"s_lshr_b32 {SPLIT}, s2, 5")
    a(f"s_lshl_b32 s60, {HEAD}, 21"); a(f"s_lshl_b32 s61, {SPLIT}, 18"); a("s_add_u32 s62, s60, s61")
    a(f"s_lshl_b32 s63, {HEAD}, 8")
    a("s_mov_b32 s34, 0x40000"); a("s_mov_b32 s35, 0x20000"); a("s_mov_b32 s38, 0x40000"); a("s_mov_b32 s39, 0x20000")
    a(f"s_sub_u32 s42, {576*8192}, s63"); a("s_mov_b32 s43, 0x20000")
    a("s_movk_i32 s46, 1152"); a("s_mov_b32 s47, 0x20000")
    a(f"v_lshlrev_b32 v{T[0]}, 4, {LANE}")
    a(f"s_lshl_b32 s3, {WAVE}, 10"); a(f"v_add_u32 {VKV}, s3, v{T[0]}")
    a(f"v_lshrrev_b32 v{T[1]}, 4, {LANE}")
    a(f"v_mul_u32_u24 v{T[2]}, 18, v{T[1]}")
    a(f"s_mul_i32 s3, {WAVE}, 72"); a(f"v_add_u32 v{T[2]}, s3, v{T[2]}")
    a(f"v_and_b32 v{T[3]}, 0xf0, v{T[0]}")
    a(f"v_lshl_add_u32 {VW}, v{T[2]}, 13, v{T[3]}")
    a(f"v_lshlrev_b32 v{T[2]}, 1, v{T[2]}")
    a("s_mov_b32 s60, 0"); a("s_mov_b32 s61, 0")
    a("s_waitcnt lgkmcnt(0)")
    a("s_add_u32 s32, s6, s62"); a("s_addc_u32 s33, s7, 0")
    a("s_mov_b32 s44, s4"); a("s_mov_b32 s45, s5")
    a("s_add_u32 s40, s10, s63"); a("s_addc_u32 s41, s11, 0")
    a("s_add_u32 s36, s8, s62"); a("s_addc_u32 s37, s9, 0")
    a(f"s_cmp_eq_u32 {WAVE}, 8"); a("s_cbranch_scc1 L_helper")

    def late_setup():
        a(f"s_load_dword {EP1}, s[26:27], {EPOCH}")
        a("s_mov_b32 s48, s26"); a("s_mov_b32 s49, s27"); a("s_mov_b32 s50, 0x200000"); a("s_mov_b32 s51, 0x20000")
        a("s_mov_b32 s56, s22"); a("s_mov_b32 s57, s23"); a("s_movk_i32 s58, 1152"); a("s_mov_b32 s59, 0x20000")
        a(f"s_mov_b32 {SCALE}, {f32(128 ** -0.5)}"); a(f"s_mov_b32 {LOG2E}, {f32(1.4426950408889634)}")
        a(f"s_mov_b32 {HI}, 0xffff0000"); a(f"s_mov_b32 {TMASK}, 0xfffff000"); a(f"s_movk_i32 {TLOW}, 0xfff")
        a(f"v_and_b32 v{T[4]}, 1, {LANE}"); a(f"v_lshlrev_b32 v{T[4]}, 4, v{T[4]}")
        a(f"v_mov_b32 v{T[5]}, 0xffff"); a(f"v_lshlrev_b32 v{T[5]}, v{T[4]}, v{T[5]}")
        a(f"v_bfe_u32 v{T[4]}, {LANE}, 1, 2")
        for j in range(4):
            a(f"v_cmp_eq_u32 vcc, {j}, v{T[4]}"); a(f"v_cndmask_b32 v{MASK[j]}, 0, v{T[5]}, vcc")
        a("s_mov_b32 s96, s24"); a("s_mov_b32 s97, s25"); a("s_movk_i32 s98, 256"); a("s_mov_b32 s99, 0x20000")
        if not dyn:
            a("s_and_b32 s78, s2, 0xf0"); a("s_and_b32 s3, s2, 7"); a("s_lshl_b32 s3, s3, 1"); a("s_or_b32 s78, s78, s3")
            a("s_bfe_u32 s3, s2, 0x10003"); a("s_or_b32 s78, s78, s3")
            a("s_cmp_lt_u32 s2, 144"); a(f"s_cselect_b32 {RID}, s78, s2")
            role_setup()
    def role_setup():
        u = role_setup.n = getattr(role_setup, "n", 0) + 1
        a("s_mov_b32 s55, 0x20000")
        a(f"s_cmp_lt_u32 {RID}, 144"); a(f"s_cbranch_scc0 L_r1_{u}")
        a(f"s_mov_b32 {ROLE}, {RID}")
        a(f"s_mul_i32 s3, {ROLE}, {32*1152}"); a("s_add_u32 s52, s20, s3"); a("s_addc_u32 s53, s21, 0")
        a(f"s_mov_b32 s54, {32*1152}"); a("s_mov_b32 s63, 0x40000000")
        a(f"s_lshl_b32 s3, {WAVE}, 7")
        a(f"s_branch L_r2_{u}")
        a.label(f"L_r1_{u}")
        a(f"s_sub_u32 {ROLE}, {RID}, 144"); a(f"s_lshr_b32 {ROLE}, {ROLE}, 3")
        a(f"s_and_b32 s3, {RID}, 7"); a(f"s_mul_i32 s3, s3, {512*1152}"); a(f"s_lshl_b32 s62, {ROLE}, 7")
        a(f"s_sub_u32 s54, {512*1152}, s62"); a("s_add_u32 s3, s3, s62")
        a(f"s_cmp_lt_u32 {RID}, 216"); a("s_cselect_b32 s54, s54, 0"); a("s_cselect_b32 s3, s3, 0")
        a("s_add_u32 s52, s12, s3"); a("s_addc_u32 s53, s13, 0")
        a(f"s_mov_b32 s63, {32*1152}"); a(f"s_mul_i32 s3, {WAVE}, {64*1152}")
        a.label(f"L_r2_{u}")
        a("s_movk_i32 s76, 4608"); a("s_add_u32 s77, s63, s76")
        a(f"v_lshrrev_b32 v{T[4]}, 4, {LANE}"); a(f"v_bfe_u32 v{T[5]}, {LANE}, 3, 1"); a(f"v_lshl_add_u32 v{T[4]}, v{T[4]}, 3, v{T[5]}")
        a(f"v_mul_u32_u24 v{T[4]}, 1152, v{T[4]}")
        a(f"v_and_b32 v{T[5]}, 7, {LANE}"); a(f"v_lshl_add_u32 v{T[4]}, v{T[5]}, 4, v{T[4]}")
        a(f"v_add_u32 {VG}, s3, v{T[4]}")
    def gload(i, r):
        so = ("0", "s76", "s63", "s77")[i >> 1]
        a(f"buffer_load_dwordx4 {v4(r)}, {VG}, {sG}, {so} offen offset:{(i & 1) * 2304} {wpol}")
    def bcast_sel(b, src, t):
        d = f"v{T[6 + (t & 1)]}"
        a(f"v_mov_b32_dpp {d}, {src} row_newbcast:{2*t} row_mask:0xf bank_mask:0x3")
        a(f"v_mov_b32_dpp {d}, {src} row_newbcast:{2*t+1} row_mask:0xf bank_mask:0xc")
        selector(b, d)
    def part_addr(dst, two):
        a(f"s_lshl_b32 s3, {WAVE}, 9"); a(f"s_add_u32 s3, s3, {L_P}")
        a(f"v_lshrrev_b32 {dst}, 4, {LANE}"); a(f"v_lshlrev_b32 {dst}, 7, {dst}")
        a(f"v_and_b32 v{T[7]}, 7, {LANE}"); a(f"v_lshl_add_u32 {dst}, v{T[7]}, 4, {dst}"); a(f"v_add_u32 {dst}, s3, {dst}")
    def sum_parts(addr, dst, tmp, n, stride):
        regs = [dst] + tmp[:n-1]
        for i in range(n): a(f"ds_read_b128 {v4(regs[i])}, {addr} offset:{L_P + i * stride}")
        for i in range(1, n):
            a(f"s_waitcnt lgkmcnt({n-1-i})")
            for r in range(4): a(f"v_add_f32 v{dst+r}, v{dst+r}, v{regs[i]+r}")
    def tag_setup():
        a(f"s_add_u32 {EP1}, {EP1}, 1"); a(f"s_and_b32 {TAG}, {EP1}, 0xfff"); a(f"v_mov_b32 {VTAG}, {TAG}")

    order = []; free = list(range(NSLOT)); slot_of = {}
    def alloc(item):
        s = free.pop(0); slot_of[item] = SLOT0 + 4 * s; return slot_of[item]
    def release(item): free.append((slot_of[item] - SLOT0) // 4)
    def issue(item):
        k, i = item
        if k == "k" or k == "v":
            r = alloc(item)
            if item == ("v", 0): a("s_mov_b32 s60, 0")
            a(f"buffer_load_dwordx4 {v4(r)}, {VKV}, {sK if k == 'k' else sV}, s60 offen {pol}")
            a("s_addk_i32 s60, 0x2000")
        elif k == "w":
            r = alloc(item)
            a(f"buffer_load_dwordx4 {v4(r)}, {VW}, {sWQ}, s61 offen {wpol}")
            a("s_addk_i32 s61, 0x2000")
        elif k == "g":
            r = alloc(item)
            gload(i, r)
        elif k == "x":
            if i == 0: r = alloc(item); a(f"buffer_load_dwordx4 {v4(r)}, v{T[0]}, {sX}, 0 offen")
            if i == 1: r = alloc(item); a(f"buffer_load_dwordx4 {v4(r)}, v{T[0]}, {sX}, 0 offen offset:1024")
            if i == 2: a(f"buffer_load_dwordx4 {v4(S)}, v{T[2]}, {sX}, 0 offen")
            if i == 3: a(f"buffer_load_dwordx4 {v4(S+4)}, v{T[2]}, {sX}, 0 offen offset:16")
            if i == 4: a(f"buffer_load_dword v{S+8}, v{T[2]}, {sX}, 0 offen offset:32")
        order.append(item)
    known = [-1]
    def wait_idx(idx):
        if idx > known[0]:
            a(f"s_waitcnt vmcnt({len(order) - 1 - idx})"); known[0] = idx
    def wait_item(item): wait_idx(order.index(item))
    def landed(item): return item in order and order.index(item) <= known[0]

    def task_ln():
        wait_item(("x", 4))
        x0, x1 = slot_of[("x", 0)], slot_of[("x", 1)]
        U = [B[0] + i for i in range(8)]
        for i in range(4):
            a(f"v_lshlrev_b32 v{U[2*i]}, 16, v{x0+i}"); a(f"v_and_b32 v{U[2*i+1]}, {HI}, v{x0+i}")
        U2 = [x0 + i for i in range(4)] + [Q + i for i in range(4)]
        for i in range(4):
            a(f"v_lshlrev_b32 v{U2[2*i]}, 16, v{x1+i}")
        for i in range(4):
            a(f"v_and_b32 v{U2[2*i+1]}, {HI}, v{x1+i}")
        s = f"v{T[0]}"; t = f"v{T[1]}"
        a(f"v_add_f32 {s}, v{U[0]}, v{U[1]}")
        for r in U[2:] + U2: a(f"v_add_f32 {s}, {s}, v{r}")
        allred16([s]); allred_rows(s, t)
        a(f"v_mul_f32 {s}, {f32(1/576)}, {s}")
        q2 = f"v{T[2]}"
        for r in U: a(f"v_sub_f32 v{r}, v{r}, {s}")
        a(f"v_mul_f32 {q2}, v{U[0]}, v{U[0]}")
        for r in U[1:]: a(f"v_fmac_f32 {q2}, v{r}, v{r}")
        a("s_mov_b64 exec, 0xff")
        for r in U2: a(f"v_sub_f32 v{r}, v{r}, {s}")
        for r in U2: a(f"v_fmac_f32 {q2}, v{r}, v{r}")
        a("s_mov_b64 exec, -1")
        allred16([q2]); allred_rows(q2, t)
        a(f"v_mul_f32 {q2}, {f32(1/576)}, {q2}")
        rbf(s, s); rbf(q2, q2)
        a(f"v_add_f32 {q2}, {f32(1e-5)}, {q2}"); rbf(q2, q2)
        a(f"v_sqrt_f32 {q2}, {q2}"); rbf(q2, q2)
        a(f"v_rcp_f32 {q2}, {q2}")
        for i in range(9):
            lo, hi = f"v{T[3]}", f"v{T[4]}"
            a(f"v_lshlrev_b32 {lo}, 16, v{S+i}"); a(f"v_and_b32 {hi}, {HI}, v{S+i}")
            a(f"v_sub_f32 {lo}, {lo}, {s}"); a(f"v_sub_f32 {hi}, {hi}, {s}")
            a(f"v_cvt_pk_bf16_f32 v{S+i}, {lo}, {hi}")
            a(f"v_lshlrev_b32 {lo}, 16, v{S+i}"); a(f"v_and_b32 {hi}, {HI}, v{S+i}")
            a(f"v_mul_f32 {lo}, {lo}, {q2}"); a(f"v_mul_f32 {hi}, {hi}, {q2}")
            a(f"v_cvt_pk_bf16_f32 v{S+i}, {lo}, {hi}")
        release(("x", 0)); release(("x", 1))
        a("s_mov_b32 s72, 0x01000100"); a("s_mov_b32 s73, 0x03020302")
    def task_wq(t):
        wait_item(("w", t)); b = B[t & 1]
        a(f"v_perm_b32 v{T[0]}, v{S+t//2}, v{S+t//2}, {'s73' if t & 1 else 's72'}")
        selector(b, f"v{T[0]}")
        mfma(slot_of[("w", t)], b, first=(t == 0)); release(("w", t))
    PLAIN, TWO = 0x00FF00FF00FF00FF, 0xFF00FF0000FF00FF
    VP = VW
    def task_qfin():
        part_addr(VP, False)
        setexec(PLAIN)
        a(f"ds_write_b128 {VP}, {v4(D)}")
        a("s_mov_b64 exec, -1")
        a(f"v_and_b32 v{T[0]}, 15, {LANE}"); a(f"v_lshlrev_b32 v{T[0]}, 4, v{T[0]}")
        a(f"v_mov_b32 {VM}, 0xff800000"); a(f"v_mov_b32 {VL}, 0")
        a("s_waitcnt lgkmcnt(0)"); a("s_barrier")
        tag_setup()
        a("s_barrier")
        a(f"ds_read_b128 {v4(Q)}, v{T[0]} offset:{L_Q}")
        a("s_waitcnt lgkmcnt(0)")
        stamp("q")
    def task_kq(q):
        wait_item(("k", 4*q+3))
        for x in range(4):
            r = slot_of[("k", 4*q+x)]
            for i in range(4):
                a(f"v_dot2_f32_bf16 v{T[x]}, v{r+i}, v{Q+i}, {'0' if i == 0 else 'v%d' % T[x]}")
            release(("k", 4*q+x))
        allred16([f"v{T[x]}" for x in range(4)])
        a(f"v_cvt_pk_bf16_f32 v{T[4]}, v{T[0]}, v{T[1]}"); a(f"v_cvt_pk_bf16_f32 v{T[5]}, v{T[2]}, v{T[3]}")
        a(f"v_lshlrev_b32 v{T[0]}, 16, v{T[4]}"); a(f"v_and_b32 v{T[1]}, {HI}, v{T[4]}")
        a(f"v_lshlrev_b32 v{T[2]}, 16, v{T[5]}"); a(f"v_and_b32 v{T[3]}, {HI}, v{T[5]}")
        for x in range(4): a(f"v_mul_f32 v{T[x]}, {SCALE}, v{T[x]}")
        a(f"v_cvt_pk_bf16_f32 v{S+2*q}, v{T[0]}, v{T[1]}"); a(f"v_cvt_pk_bf16_f32 v{S+2*q+1}, v{T[2]}, v{T[3]}")
        a(f"v_max3_f32 {VM}, {VM}, v{T[0]}, v{T[1]}"); a(f"v_max3_f32 {VM}, {VM}, v{T[2]}, v{T[3]}")
    PA, PB = f"v{T[5]}", f"v{T[6]}"
    def prep_pv(j):
        if j % 2 == 0:
            a(f"v_lshlrev_b32 {PA}, 16, v{S+j//2}"); a(f"v_and_b32 {PB}, {HI}, v{S+j//2}")
            a(f"v_fma_f32 {PA}, {PA}, {LOG2E}, -{VF}"); a(f"v_fma_f32 {PB}, {PB}, {LOG2E}, -{VF}")
            a(f"v_exp_f32 {PA}, {PA}"); a(f"v_exp_f32 {PB}, {PB}")
        p = PA if j % 2 == 0 else PB
        a(f"v_cvt_pk_bf16_f32 v{T[0]}, {p}, {p}"); a(f"v_add_f32 {VL}, {VL}, {p}")
        selector(B[j & 1], f"v{T[0]}")
    def task_smax():
        allred_rows(VM, f"v{T[0]}", "v_max_f32"); rbf(VM, VM)
        a(f"s_lshl_b32 s3, {WAVE}, 2"); a(f"v_mov_b32 v{T[0]}, s3")
        a(f"ds_write_b32 v{T[0]}, {VM} offset:{L_MW}")
        a(f"v_mul_f32 {VF}, {LOG2E}, {VM}")
        stamp("kend")
        prep_pv(0)
    def wgmax(dst):
        a(f"v_mov_b32 v{T[0]}, 0")
        a(f"ds_read_b128 {v4(Q)}, v{T[0]} offset:{L_MW}"); a(f"ds_read_b128 v[{T[1]+1}:{T[1]+4}], v{T[0]} offset:{L_MW+16}")
        a("s_waitcnt lgkmcnt(0)")
        a(f"v_max3_f32 {dst}, v{Q}, v{Q+1}, v{Q+2}"); a(f"v_max3_f32 {dst}, {dst}, v{Q+3}, v{T[1]+1}")
        a(f"v_max3_f32 {dst}, {dst}, v{T[1]+2}, v{T[1]+3}"); a(f"v_max_f32 {dst}, {dst}, v{T[1]+4}")
    def task_pv(j):
        wait_item(("v", j))
        mfma(slot_of[("v", j)], B[j & 1], first=(j == 0)); release(("v", j))
        if j == jB2:
            assert j % 2 == 1
            a("s_waitcnt lgkmcnt(0)"); a("s_barrier")
            wgmax(f"v{T[1]}")
            a(f"v_sub_f32 {VM}, {VM}, v{T[1]}"); a(f"v_mul_f32 {VM}, {LOG2E}, {VM}"); a(f"v_exp_f32 {VM}, {VM}")
            a(f"v_mul_f32 {VF}, {LOG2E}, v{T[1]}")
            a(f"v_mul_f32 {VL}, {VL}, {VM}")
            for r in range(4): a(f"v_mul_f32 v{D+r}, v{D+r}, {VM}")
        if j == 30:
            prep_pv(31)
            allred_rows(VL, f"v{T[0]}")
            a(f"s_lshl_b32 s3, {WAVE}, 2"); a(f"v_mov_b32 v{T[0]}, s3"); a(f"ds_write_b32 v{T[0]}, {VL} offset:{L_LW}")
            return
        if j < 31: prep_pv(j + 1)

    seq = [("x", i) for i in range(5)]
    for i in range(max(18, nK)):
        if i < 18: seq.append(("w", i))
        if i < nK: seq.append(("k", i))
    nA = len(seq)
    seq += [("k", i) for i in range(nK, 32)] + [("v", i) for i in range(32)] + [("g", i) for i in range(EW)]
    st = dict(ln=False, wq=0, q=False, kq=0, sm=False, pv=0)
    def run_ready(force=False):
        did = False
        if not st["ln"]:
            if force: task_ln(); st["ln"] = True; return True
            return False
        n = 0
        while st["wq"] < 18 and (landed(("w", st["wq"])) or (force and not did and ("w", st["wq"]) in order)):
            task_wq(st["wq"]); st["wq"] += 1; did = True
        if st["wq"] == 18 and not st["q"]: task_qfin(); st["q"] = True; did = True
        if st["q"] and st["kq"] < 8:
            it = ("k", 4 * st["kq"] + 3)
            if landed(it) or (force and not did and it in order): task_kq(st["kq"]); st["kq"] += 1; did = True
            if st["kq"] == 8: task_smax(); st["sm"] = True
            return did
        if st["sm"]:
            while st["pv"] < 32 and n < 2 and (landed(("v", st["pv"])) or (force and not did and ("v", st["pv"]) in order)):
                task_pv(st["pv"]); st["pv"] += 1; n += 1; did = True
        return did
    first_batch = 5 + WA
    for n, item in enumerate(seq):
        if n == first_batch:
            late_setup()
            a("s_barrier")
            run_ready(force=True)
        W = WA if n < nA else (Wv if item[0] in "vg" else Wn)
        if n >= first_batch and seq[n - W][0] != "g": wait_idx(n - W)
        while not free and item[0] != "x":
            assert run_ready(force=True)
        issue(item)
        if n >= first_batch: run_ready()
    while st["pv"] < 31: assert run_ready(force=True)
    setexec(PLAIN) if st["pv"] == 32 else None
    if st["pv"] == 31:
        task_pv(31); st["pv"] = 32; setexec(PLAIN)
    stamp("vend")
    a(f"ds_write_b128 {VP}, {v4(D)}")
    a("s_mov_b64 exec, -1")
    a("s_waitcnt lgkmcnt(0)"); stamp("oadd"); a("s_barrier")
    if dyn:
        a(f"v_mov_b32 v{T[0]}, 0"); a(f"ds_read_b32 v{T[0]}, v{T[0]} offset:{L_ROLE}")
        a("s_waitcnt lgkmcnt(0)"); a(f"v_readfirstlane_b32 {RID}, v{T[0]}")
        role_setup()
    a("s_barrier")
    for i in range(EW, 8): alloc(("g", i))
    G = [slot_of[("g", i)] for i in range(8)]
    F = [SLOT0 + 4 * s for s in free]
    assert len(F) >= 14
    a("s_branch L_tail")

    a.label("L_helper")
    a(f"v_mov_b32 v{B[0]}, 0"); a(f"v_lshlrev_b32 v{T[1]}, 2, {LANE}")
    a(f"ds_write_b32 v{T[1]}, v{B[0]} offset:{L_ST}")
    late_setup()
    a("s_waitcnt lgkmcnt(0)"); a("s_barrier")
    tag_setup()
    if codepf:
        a("s_getpc_b64 s[74:75]"); a.label("L_pc")
        a(f"s_sub_u32 s74, s74, L_pc-{KNAME}"); a("s_subb_u32 s75, s75, 0")
        a(f"v_lshlrev_b32 v{T[1]}, 6, {LANE}"); a(f"v_mov_b32 v{T[2]}, L_end-{KNAME}-4")
        for j in range(codepf):
            a(f"v_min_u32 v{T[3]}, v{T[1]}, v{T[2]}"); a(f"global_load_dword v{T[4]}, v{T[3]}, s[74:75]")
            a(f"v_add_u32 v{T[1]}, 4096, v{T[1]}")
    a(f"s_lshl_b32 s3, {HEAD}, 3"); a(f"s_add_u32 s3, s3, {SPLIT}")
    a(f"s_lshl_b32 s62, s3, 9"); a(f"s_add_u32 s62, s62, {O1}"); a(f"v_add_u32 {VW}, s62, v{T[0]}")
    a("s_lshl_b32 s62, s3, 4"); a(f"s_add_u32 s62, s62, {ML}"); a(f"v_writelane_b32 {VW}, s62, 32")
    a(f"v_and_b32 {VKV}, 0x1f0, v{T[0]}"); a(f"v_lshrrev_b32 v{T[1]}, 5, {LANE}"); a(f"v_lshl_add_u32 {VKV}, v{T[1]}, 11, {VKV}")
    a(f"v_bfe_u32 {VF}, {LANE}, 3, 2"); a(f"v_lshlrev_b32 {VF}, 6, {VF}"); a(f"v_and_b32 v{T[1]}, 7, {LANE}"); a(f"v_lshl_add_u32 {VF}, v{T[1]}, 1, {VF}")
    HT = [SLOT0 + 4 * i for i in range(3)] if False else [Q, B[0], B[1]]
    def half_sum():
        for r in range(4): a(f"v_mov_b32 v{T[r]}, v{D+r}")
        for r in range(4): a(f"v_permlane32_swap_b32 v{D+r}, v{T[r]}")
        for r in range(4): a(f"v_add_f32 v{D+r}, v{D+r}, v{T[r]}")
    a("s_setprio 3")
    a("s_barrier")
    sum_parts(VKV, D, HT, 4, 512); half_sum()
    for r in range(4): a(f"v_cvt_pk_bf16_f32 v{D+r}, v{D+r}, v{D+r}")
    for r in range(4): a(f"ds_write_b16 {VF}, v{D+r} offset:{L_Q + 16*r}")
    a("s_waitcnt lgkmcnt(0)"); a("s_barrier")
    a("s_barrier")
    if dyn:
        a(f"v_mov_b32 {VL}, 1"); a(f"v_mov_b32 {VF}, 0")
        a("s_mov_b64 exec, 1")
        a(f"buffer_atomic_add {VL}, {VF}, s[96:99], 0 offen sc0 sc1")
        a("s_mov_b64 exec, -1")
    wgmax(VM)
    if dyn:
        a("s_waitcnt vmcnt(0)")
        stamp("claim")
        a(f"v_readfirstlane_b32 {RID}, {VL}")
        a("s_mov_b64 exec, 1"); a(f"ds_write_b32 {VF}, {VL} offset:{L_ROLE}"); a("s_mov_b64 exec, -1")
        role_setup()
        a("s_waitcnt lgkmcnt(0)")
    a(f"v_mov_b32 {VF}, 0")
    a("s_barrier")
    a(f"ds_read_b128 {v4(F[0])}, {VF} offset:{L_LW}"); a(f"ds_read_b128 {v4(F[1])}, {VF} offset:{L_LW+16}")
    stamp("b3")
    sum_parts(VKV, D, HT, 4, 512)
    for r in range(4): a(f"v_add_f32 v{F[0]+r}, v{F[0]+r}, v{F[1]+r}")
    half_sum()
    a(f"v_add_f32 v{F[0]}, v{F[0]}, v{F[0]+1}"); a(f"v_add_f32 v{F[0]+2}, v{F[0]+2}, v{F[0]+3}")
    a("s_mov_b32 exec_lo, 0"); a("s_mov_b32 exec_hi, 1")
    a(f"v_add_f32 v{D+1}, v{F[0]}, v{F[0]+2}"); a(f"v_mov_b32 v{D}, {VM}"); a(f"v_mov_b32 v{D+2}, {VM}"); a(f"v_mov_b32 v{D+3}, {VM}")
    a("s_mov_b32 exec_lo, -1")
    for i in range(4): a(f"v_and_or_b32 v{D+i}, v{D+i}, {TMASK}, {VTAG}")
    a(f"buffer_store_dwordx4 {v4(D)}, {VW}, {sWS}, 0 offen sc1")
    stamp("ostore")
    a("s_mov_b64 exec, -1")
    a("s_barrier")
    a("s_setprio 0")

    a.label("L_tail")
    stamp("tail")
    a(f"s_cmp_lt_u32 {RID}, 144"); a("s_cbranch_scc1 L_ffn")
    a(f"s_cmp_lt_u32 {RID}, 216"); a("s_cbranch_scc1 L_wo")
    a(f"s_cmp_lt_u32 {RID}, 252"); a("s_cbranch_scc1 L_red")
    a("s_branch L_done")

    a.label("L_wo")
    a(f"s_cmp_eq_u32 {WAVE}, 8"); a("s_cbranch_scc1 L_wo_pub")
    OA, OB, MLr = F[0], F[1], F[2]
    for i in range(EW, 8):
        if i - EW >= Ww: a(f"s_waitcnt vmcnt({Ww-1})")
        gload(i, G[i])
    a(f"s_and_b32 s3, {RID}, 7"); a("s_lshl_b32 s3, s3, 2"); a(f"s_lshr_b32 s62, {WAVE}, 1"); a("s_add_u32 s3, s3, s62")
    a(f"s_lshl_b32 s62, s3, 12"); a(f"s_and_b32 s60, {WAVE}, 1"); a("s_lshl_b32 s60, s60, 8"); a("s_add_u32 s62, s62, s60")
    a(f"s_add_u32 s62, s62, {O1}")
    a(f"v_lshrrev_b32 v{T[4]}, 4, {LANE}"); a(f"v_and_b32 v{T[5]}, 15, {LANE}")
    a(f"v_lshlrev_b32 {VKV}, 9, v{T[4]}"); a(f"v_lshl_add_u32 {VKV}, v{T[5]}, 4, {VKV}"); a(f"v_add_u32 {VKV}, s62, {VKV}")
    a("s_lshl_b32 s62, s3, 7"); a(f"s_add_u32 s62, s62, {ML}")
    a(f"v_bfe_u32 v{T[6]}, {LANE}, 3, 1"); a(f"v_lshl_add_u32 v{T[6]}, v{T[6]}, 2, v{T[4]}")
    a(f"v_lshlrev_b32 {VW}, 4, v{T[6]}"); a(f"v_add_u32 {VW}, s62, {VW}")
    part_addr(VM, True)
    a("s_mov_b32 s74, 0xff00ff00"); a("s_mov_b32 s75, 0xff00ff00")
    poll("L_p1", [f"buffer_load_dwordx4 {v4(MLr)}, {VW}, {sWS}, 0 offen sc1",
                  f"buffer_load_dwordx4 {v4(OA)}, {VKV}, {sWS}, 0 offen sc1",
                  f"buffer_load_dwordx4 {v4(OB)}, {VKV}, {sWS}, 0 offen offset:2048 sc1"], [MLr, OA, OB], 0)
    stamp("got")
    m1, l1, m2, l2, M, t = (f"v{T[i]}" for i in range(6))
    a(f"v_and_b32 {m1}, {TMASK}, v{MLr}"); a(f"v_and_b32 {l1}, {TMASK}, v{MLr+1}")
    for i in range(4): a(f"v_and_b32 v{OA+i}, {TMASK}, v{OA+i}")
    a(f"v_mov_b32_dpp {m2}, {m1} row_ror:8 row_mask:0xf bank_mask:0xf"); a(f"v_mov_b32_dpp {l2}, {l1} row_ror:8 row_mask:0xf bank_mask:0xf")
    for i in range(4): a(f"v_and_b32 v{OB+i}, {TMASK}, v{OB+i}")
    a(f"v_max_f32 {M}, {m1}, {m2}"); allred_rows(M, t, "v_max_f32")
    a(f"v_sub_f32 {m1}, {m1}, {M}"); a(f"v_sub_f32 {m2}, {m2}, {M}")
    a(f"v_mul_f32 {m1}, {LOG2E}, {m1}"); a(f"v_mul_f32 {m2}, {LOG2E}, {m2}")
    a(f"v_exp_f32 {m1}, {m1}"); a(f"v_exp_f32 {m2}, {m2}")
    a(f"v_mul_f32 {l1}, {l1}, {m1}"); a(f"v_fmac_f32 {l1}, {l2}, {m2}")
    a(f"v_cndmask_b32 {l2}, {m1}, {m2}, s[74:75]"); a(f"v_cndmask_b32 {m2}, {m2}, {m1}, s[74:75]")
    for i in range(4): a(f"v_mul_f32 v{OA+i}, v{OA+i}, {l2}")
    for i in range(4): a(f"v_fmac_f32 v{OA+i}, v{OB+i}, {m2}")
    allred_rows(l1, t)
    rows_scatter(*(f"v{OA+i}" for i in range(4)))
    a(f"v_rcp_f32 {l1}, {l1}")
    a(f"v_mul_f32 v{OA}, v{OA}, {l1}")
    a(f"v_cvt_pk_bf16_f32 v{OA}, v{OA}, v{OA}")
    for tt in range(8):
        bcast_sel(B[tt & 1], f"v{OA}", tt)
        mfma(G[tt], B[tt & 1], first=(tt == 0))
    setexec(TWO)
    a(f"ds_write_b128 {VM}, {v4(D)}")
    a("s_waitcnt lgkmcnt(0)"); a("s_barrier")
    a("s_branch L_done")
    a.label("L_wo_pub")
    a(f"s_and_b32 s3, {RID}, 7"); a("s_lshl_b32 s3, s3, 8"); a(f"s_lshl_b32 s62, {ROLE}, 11"); a("s_add_u32 s3, s3, s62"); a(f"s_add_u32 s3, s3, {Z2}")
    a(f"v_lshrrev_b32 v{T[4]}, 4, {LANE}"); a(f"v_and_b32 v{T[5]}, 15, {LANE}"); a(f"v_lshlrev_b32 v{T[5]}, 4, v{T[5]}")
    a(f"v_lshl_add_u32 {VKV}, v{T[4]}, 10, v{T[5]}")
    a(f"v_lshl_add_u32 {VW}, v{T[4]}, 2, v{T[5]}"); a(f"v_add_u32 {VW}, s3, {VW}")
    a("s_barrier")
    sum_parts(VKV, D, HT, 4, 256)
    rows_scatter(*(f"v{D+i}" for i in range(4)))
    a(f"v_and_or_b32 v{D}, v{D}, {TMASK}, {VTAG}")
    a(f"buffer_store_dword v{D}, {VW}, {sWS}, 0 offen sc1")
    stamp("pub")
    a("s_branch L_done")

    a.label("L_ffn")
    W13 = F[0:9]; ZA, ZB = F[9], F[10]; HX = F[11]
    AD = f"v[{HX}:{HX+1}]"
    a(f"s_cmp_eq_u32 {WAVE}, 8"); a("s_cbranch_scc1 L_ffn_now13")
    a(f"v_lshrrev_b32 v{T[4]}, 3, {LANE}"); a(f"v_mul_u32_u24 v{T[4]}, 9, v{T[4]}")
    a(f"s_mul_i32 s3, {WAVE}, 72"); a(f"v_add_u32 {VF}, s3, v{T[4]}")
    a(f"v_mul_u32_u24 v{T[4]}, 9216, {VF}")
    a(f"v_and_b32 v{T[5]}, 3, {LANE}"); a(f"v_lshl_add_u32 v{T[4]}, v{T[5]}, 4, v{T[4]}")
    a(f"s_lshl_b32 s3, {ROLE}, 6"); a(f"v_add_u32 v{T[4]}, s3, v{T[4]}")
    a("s_mov_b32 s74, 0xf0f0f0f0"); a("s_mov_b32 s75, 0xf0f0f0f0")
    a(f"v_mov_b32 v{HX}, s16"); a(f"v_mov_b32 v{HX+1}, s17"); a(f"v_mov_b32 v{HX+2}, s18"); a(f"v_mov_b32 v{HX+3}, s19")
    a(f"v_cndmask_b32 v{HX}, v{HX}, v{HX+2}, s[74:75]"); a(f"v_cndmask_b32 v{HX+1}, v{HX+1}, v{HX+3}, s[74:75]")
    a(f"v_add_co_u32 v{HX}, vcc, v{HX}, v{T[4]}"); a(f"v_addc_co_u32 v{HX+1}, vcc, 0, v{HX+1}, vcc")
    a("s_movk_i32 s72, 9216"); a("s_mov_b32 s73, 0")
    for tt in range(9):
        if tt >= Ww: a(f"s_waitcnt vmcnt({Ww-1})")
        a(f"global_load_dwordx4 {v4(W13[tt])}, {AD}, off {wpol}")
        if tt < 8: a(f"v_lshl_add_u64 {AD}, s[72:73], 0, {AD}")
    a(f"v_lshlrev_b32 {VF}, 2, {VF}"); a(f"v_add_u32 {VF}, {L_H}, {VF}")
    a.label("L_ffn_now13")
    for i in range(4):
        if i >= EW: a(f"s_waitcnt vmcnt({Ww-1})"); gload(i, G[i])
    if EW:
        a(f"s_cmp_lg_u32 {WAVE}, 8"); a("s_cbranch_scc1 L_ffn_g")
        for i in range(min(EW, 4)): gload(i, G[i])
        a.label("L_ffn_g")
    a(f"v_lshrrev_b32 v{T[4]}, 4, {LANE}"); a(f"v_and_b32 v{T[5]}, 15, {LANE}")
    a(f"s_lshl_b32 s3, {WAVE}, 11"); a(f"s_add_u32 s3, s3, {Z2}")
    a(f"v_lshlrev_b32 {VKV}, 8, v{T[4]}"); a(f"v_lshl_add_u32 {VKV}, v{T[5]}, 4, {VKV}"); a(f"v_add_u32 {VKV}, s3, {VKV}")
    a(f"v_bfe_u32 {VL}, {LANE}, 3, 1"); a(f"v_lshlrev_b32 {VL}, 2, {VL}"); a(f"v_add_u32 {VL}, {VL}, v{T[4]}")
    a(f"v_and_b32 v{T[6]}, 7, {LANE}"); a(f"v_lshl_add_u32 {VL}, {VL}, 3, v{T[6]}")
    a(f"s_lshl_b32 s3, {WAVE}, 6"); a(f"v_add_u32 {VL}, s3, {VL}")
    a(f"v_lshlrev_b32 v{T[6]}, 1, {VL}"); a(f"v_lshlrev_b32 {VL}, 2, {VL}")
    a(f"buffer_load_ushort v{HX+2}, v{T[6]}, {sX}, 0 offen")
    part_addr(VM, True)
    a(f"v_bfe_u32 {VW}, {LANE}, 4, 1"); a(f"v_lshlrev_b32 {VW}, 2, {VW}"); a(f"s_lshl_b32 s3, {WAVE}, 3"); a(f"v_add_u32 {VW}, s3, {VW}")
    poll("L_p2", [f"buffer_load_dwordx4 {v4(ZA)}, {VKV}, {sWS}, 0 offen sc1",
                  f"buffer_load_dwordx4 {v4(ZB)}, {VKV}, {sWS}, 0 offen offset:1024 sc1"], [ZA, ZB], sleep2)
    stamp("got")
    for i in range(4): a(f"v_and_b32 v{ZA+i}, {TMASK}, v{ZA+i}"); a(f"v_and_b32 v{ZB+i}, {TMASK}, v{ZB+i}")
    for i in range(4): a(f"v_add_f32 v{ZA+i}, v{ZA+i}, v{ZB+i}")
    a(f"v_lshlrev_b32 v{HX+2}, 16, v{HX+2}")
    rows_scatter(*(f"v{ZA+i}" for i in range(4)))
    h = f"v{ZA}"; h2 = f"v{ZA+1}"
    rbf(h, h); a(f"v_add_f32 {h}, {h}, v{HX+2}"); rbf(h, h)
    a(f"ds_write_b32 {VL}, {h} offset:{L_H}")
    a(f"v_mul_f32 {h2}, {h}, {h}")
    allred16([h, h2])
    a(f"v_permlane16_swap_b32 {h}, {h2}"); a(f"v_add_f32 {h}, {h}, {h2}")
    a(f"v_mov_b32 {h2}, {h}"); a(f"v_permlane32_swap_b32 {h}, {h2}"); a(f"v_add_f32 {h}, {h}, {h2}")
    a("s_mov_b64 exec, 0x00010001")
    a(f"ds_write_b32 {VW}, {h} offset:{L_ST}")
    a("s_mov_b64 exec, -1")
    a(f"v_and_b32 v{T[7]}, 15, {LANE}"); a(f"v_lshlrev_b32 v{T[7]}, 3, v{T[7]}")
    a("s_waitcnt lgkmcnt(0)"); a("s_barrier")
    stamp("b5")
    a(f"s_cmp_eq_u32 {WAVE}, 8"); a("s_cbranch_scc1 L_ffn_b6")
    HV = [ZA + i for i in range(4)] + [ZB + i for i in range(4)] + [HX]
    a(f"ds_read_b64 v[{T[0]}:{T[1]}], v{T[7]} offset:{L_ST}")
    for i in range(4): a(f"ds_read2_b32 v[{HV[2*i]}:{HV[2*i+1]}], {VF} offset0:{2*i} offset1:{2*i+1}")
    a(f"ds_read_b32 v{HV[8]}, {VF} offset:32")
    mu, var = f"v{T[0]}", f"v{T[1]}"
    a("s_waitcnt lgkmcnt(5)")
    allred16([mu, var])
    a(f"v_mul_f32 {mu}, {f32(1/576)}, {mu}"); a(f"v_mul_f32 {var}, {f32(1/576)}, {var}")
    a(f"v_fma_f32 {var}, -{mu}, {mu}, {var}"); a(f"v_max_f32 {var}, 0, {var}")
    rbf(mu, mu); rbf(var, var)
    a(f"v_add_f32 {var}, {f32(1e-5)}, {var}"); rbf(var, var)
    a(f"v_sqrt_f32 {var}, {var}"); rbf(var, var)
    a(f"v_rcp_f32 {var}, {var}")
    a(f"v_mul_f32 {mu}, {mu}, {var}")
    a("s_waitcnt lgkmcnt(0)")
    for tt in range(9):
        a(f"v_fma_f32 v{HV[tt]}, v{HV[tt]}, {var}, -{mu}")
    for tt in range(9):
        a(f"v_cvt_pk_bf16_f32 v{HV[tt]}, v{HV[tt]}, v{HV[tt]}")
        selector(B[tt & 1], f"v{HV[tt]}")
        mfma(W13[tt], B[tt & 1], first=(tt == 0))
    setexec(TWO)
    a(f"ds_write_b128 {VM}, {v4(D)}")
    a("s_mov_b64 exec, -1")
    a.label("L_ffn_b6")
    a(f"v_lshrrev_b32 v{T[4]}, 4, {LANE}"); a(f"v_and_b32 v{T[5]}, 15, {LANE}"); a(f"v_lshlrev_b32 v{T[5]}, 4, v{T[5]}")
    a(f"v_lshl_add_u32 {VKV}, v{T[4]}, 10, v{T[5]}")
    a(f"s_mul_i32 s3, {ROLE}, 2304"); a(f"s_lshl_b32 s62, {WAVE}, 8"); a("s_add_u32 s3, s3, s62"); a(f"s_add_u32 s3, s3, {P3}")
    a(f"v_lshlrev_b32 {VW}, 7, v{T[4]}"); a(f"v_and_b32 v{T[6]}, 7, {LANE}")
    a(f"v_lshl_add_u32 {VW}, v{T[6]}, 4, {VW}"); a(f"v_add_u32 {VW}, s3, {VW}")
    a("s_mov_b32 s74, 0xff00ff00"); a("s_mov_b32 s75, 0xff00ff00")
    a("s_waitcnt lgkmcnt(0)"); a("s_barrier")
    stamp("b6")
    sum_parts(VKV, ZA, [ZB, Q, HX], 4, 256)
    rows_scatter(*(f"v{ZA+i}" for i in range(4)))
    e = [f"v{T[i]}" for i in range(4)]
    g, u, ot = f"v{ZA}", f"v{ZA+1}", f"v{ZA+2}"
    rbf(g, g)
    a(f"v_mov_b32_dpp {ot}, {g} row_ror:8 row_mask:0xf bank_mask:0xf")
    a(f"v_cndmask_b32 {u}, {ot}, {g}, s[74:75]"); a(f"v_cndmask_b32 {g}, {g}, {ot}, s[74:75]")
    a(f"v_mul_f32 {ot}, {f32(-1.4426950408889634)}, {g}"); a(f"v_exp_f32 {ot}, {ot}")
    a(f"v_add_f32 {ot}, 1.0, {ot}"); a(f"v_rcp_f32 {ot}, {ot}"); a(f"v_mul_f32 {g}, {g}, {ot}")
    rbf(g, g); a(f"v_mul_f32 {g}, {g}, {u}")
    a(f"v_cvt_pk_bf16_f32 {g}, {g}, {g}")
    for tt in range(4):
        bcast_sel(B[tt & 1], g, tt)
        mfma(G[tt], B[tt & 1], first=(tt == 0))
    for r in range(4): a(f"v_permlane32_swap_b32 v{D+r}, {e[r]}")
    for r in range(4): dpp("v_add_f32", f"v{D+r}", e[r], f"v{D+r}", "row_ror:8")
    for r in range(4): a(f"v_and_or_b32 v{D+r}, v{D+r}, {TMASK}, {VTAG}")
    a("s_mov_b64 exec, 0x00ff00ff")
    a(f"buffer_store_dwordx4 {v4(D)}, {VW}, {sWS}, 0 offen sc1")
    stamp("pub")
    a("s_branch L_done")

    a.label("L_red")
    PA_, HH = F[0], F[1]
    a(f"s_sub_u32 {ROLE}, {RID}, 216")
    a(f"v_and_b32 v{T[4]}, 3, {LANE}"); a(f"v_lshrrev_b32 v{T[5]}, 4, {LANE}")
    a(f"s_lshr_b32 s3, {ROLE}, 1"); a("s_lshl_b32 s3, s3, 5"); a(f"s_and_b32 s62, {ROLE}, 1"); a("s_lshl_b32 s62, s62, 2"); a("s_add_u32 s3, s3, s62")
    a(f"v_lshl_add_u32 {VL}, v{T[5]}, 3, v{T[4]}"); a(f"v_add_u32 {VL}, s3, {VL}"); a(f"v_lshlrev_b32 {VL}, 1, {VL}")
    a(f"v_lshl_add_u32 {VF}, v{T[5]}, 2, v{T[4]}"); a(f"v_mul_u32_u24 {VF}, 48, {VF}")
    a(f"s_lshl_b32 s3, {WAVE}, 2"); a(f"v_add_u32 {VM}, s3, {VF}")
    a(f"s_cmp_lg_u32 {WAVE}, 0"); a("s_cbranch_scc1 L_red_h3")
    a(f"buffer_load_ushort v{Q}, {VL}, {sX}, 0 offen")
    a(f"s_lshr_b32 s62, {ROLE}, 2"); a("s_lshl_b32 s62, s62, 11"); a(f"s_and_b32 s3, {ROLE}, 3"); a("s_lshl_b32 s3, s3, 6")
    a("s_add_u32 s3, s3, s62"); a(f"s_add_u32 s3, s3, {Z2}")
    a(f"v_bfe_u32 {VKV}, {LANE}, 2, 3"); a(f"v_lshlrev_b32 {VKV}, 8, {VKV}"); a(f"v_lshl_add_u32 {VKV}, v{T[4]}, 4, {VKV}")
    a(f"v_add_u32 {VKV}, s3, {VKV}")
    poll("L_p2r", [f"buffer_load_dwordx4 {v4(HH)}, {VKV}, {sWS}, 0 offen sc1"], [HH], 2)
    hv = [f"v{HH+i}" for i in range(4)]
    for i in range(4): a(f"v_and_b32 {hv[i]}, {TMASK}, {hv[i]}")
    rows_scatter(*hv)
    allred16(hv[:1], steps=(4, 8))
    a(f"v_mul_f32 {hv[0]}, 0.5, {hv[0]}")
    rbf(hv[0], hv[0]); a(f"v_lshlrev_b32 v{Q}, 16, v{Q}"); a(f"v_add_f32 {hv[0]}, {hv[0]}, v{Q}"); rbf(hv[0], hv[0])
    stamp("got")
    a.label("L_red_h3")
    a(f"v_lshrrev_b32 {VW}, 2, {LANE}"); a(f"s_lshl_b32 s3, {WAVE}, 4"); a(f"v_add_u32 {VW}, s3, {VW}")
    a(f"v_mul_u32_u24 {VW}, 2304, {VW}"); a(f"v_lshl_add_u32 {VW}, v{T[4]}, 4, {VW}")
    a(f"s_lshl_b32 s3, {ROLE}, 6"); a(f"s_add_u32 s3, s3, {P3}"); a(f"v_add_u32 {VW}, s3, {VW}")
    poll("L_p3", [f"buffer_load_dwordx4 {v4(PA_)}, {VW}, {sWS}, 0 offen sc1"], [PA_], sleep3)
    stamp("pub")
    pv = [f"v{PA_+i}" for i in range(4)]
    for i in range(4): a(f"v_and_b32 {pv[i]}, {TMASK}, {pv[i]}")
    rows_scatter(*pv)
    allred16(pv[:1], steps=(4, 8))
    setexec(0x000F000F000F000F)
    a(f"ds_write_b32 {VM}, {pv[0]} offset:{L_P}")
    a("s_waitcnt lgkmcnt(0)"); a("s_barrier")
    a(f"s_cmp_lg_u32 {WAVE}, 0"); a("s_cbranch_scc1 L_done")
    a(f"ds_read_b128 {v4(PA_)}, {VF} offset:{L_P}"); a(f"ds_read_b128 {v4(B[0])}, {VF} offset:{L_P+16}"); a(f"ds_read_b32 v{B[1]}, {VF} offset:{L_P+32}")
    a("s_waitcnt lgkmcnt(1)")
    for i in range(4): a(f"v_add_f32 {pv[i]}, {pv[i]}, v{B[0]+i}")
    a(f"v_add_f32 {pv[0]}, {pv[0]}, {pv[1]}"); a(f"v_add_f32 {pv[2]}, {pv[2]}, {pv[3]}")
    a("s_waitcnt lgkmcnt(0)")
    a(f"v_add_f32 {pv[0]}, {pv[0]}, v{B[1]}"); a(f"v_add_f32 {pv[0]}, {pv[0]}, {pv[2]}")
    rbf(pv[0], pv[0]); a(f"v_add_f32 {pv[0]}, {pv[0]}, {hv[0]}")
    a(f"v_cvt_pk_bf16_f32 {pv[0]}, {pv[0]}, {pv[0]}")
    a(f"buffer_store_short {pv[0]}, {VL}, {sOUT}, 0 offen")
    a(f"s_cmp_lg_u32 {ROLE}, 0"); a("s_cbranch_scc1 L_done")
    a("s_mov_b64 exec, 1")
    a(f"v_mov_b32 v{T[0]}, {EP1}"); a(f"v_mov_b32 v{T[1]}, {EPOCH}")
    a(f"buffer_store_dword v{T[0]}, v{T[1]}, {sWS}, 0 offen")

    a.label("L_done")
    if diag == 2:
        stamp("end")
        a("s_mov_b64 exec, 1"); a("s_waitcnt lgkmcnt(0)")
        a("s_mov_b32 s76, s24"); a("s_mov_b32 s77, s25"); a("s_movk_i32 s78, 256"); a("s_mov_b32 s79, 0x20000")
        a("s_not_b32 s3, s80"); a("v_mov_b32 v16, s3"); a("v_mov_b32 v17, 0")
        a("buffer_atomic_umax v16, v17, s[76:79], 0 offen sc1")
        a("v_mov_b32 v18, s80"); a("buffer_atomic_umax v18, v17, s[76:79], 0 offen offset:4 sc1")
        a("v_mov_b32 v19, s88"); a("buffer_atomic_umax v19, v17, s[76:79], 0 offen offset:8 sc1")
        a("v_mov_b32 v20, s94"); a("buffer_atomic_umax v20, v17, s[76:79], 0 offen offset:12 sc1")
        a(f"s_cmp_eq_u32 {WAVE}, 8"); a("s_cbranch_scc1 L_exit")
        a("v_mov_b32 v21, s82"); a("buffer_atomic_umax v21, v17, s[76:79], 0 offen offset:16 sc1")
        a("v_mov_b32 v22, s84"); a("buffer_atomic_umax v22, v17, s[76:79], 0 offen offset:20 sc1")
        a("v_mov_b32 v23, s86"); a("buffer_atomic_umax v23, v17, s[76:79], 0 offen offset:24 sc1")
    elif diag:
        stamp("end")
        a("s_mov_b64 exec, 1"); a("s_waitcnt lgkmcnt(0)")
        a(f"s_mul_i32 s3, {RID}, 9"); a(f"s_add_u32 s3, s3, {WAVE}"); a("s_lshl_b32 s3, s3, 5"); a(f"s_add_u32 s3, s3, {STAMP}")
        a("v_mov_b32 v28, s3")
        for i in range(8): a(f"v_mov_b32 v{16+i}, s{80+2*i}")
        a(f"buffer_store_dwordx4 v[16:19], v28, {sWS}, 0 offen"); a(f"buffer_store_dwordx4 v[20:23], v28, {sWS}, 0 offen offset:16")
    a.label("L_exit")
    a("s_endpgm")
    a.label("L_end")
    body = a.finalize()
    out = HEADER + "; Generated by gen.py: 256 workgroups (8 streaming waves + 1 helper wave), tagged hand-offs through d_ws.\n"
    if diag: out += "; stamps: " + " ".join(names) + "\n"
    out += "; @launch grid=(256,1,1) block=(576,1,1) lds=8192\n"
    out += '.amdgcn_target "amdgcn-amd-amdhsa--gfx950"\n.text\n' + f".globl {KNAME}\n.p2align 8\n.type {KNAME},@function\n"
    out += body
    out += f""".section .rodata,"a"
.p2align 6
.amdhsa_kernel {KNAME}
  .amdhsa_next_free_vgpr 168
  .amdhsa_next_free_sgpr 100
  .amdhsa_accum_offset 168
  .amdhsa_group_segment_fixed_size 0
  .amdhsa_kernarg_size 96
  .amdhsa_user_sgpr_count 2
  .amdhsa_user_sgpr_kernarg_segment_ptr 1
  .amdhsa_system_sgpr_workgroup_id_x 1
.end_amdhsa_kernel
"""
    return out

if __name__ == "__main__":
    kw = eval("dict(" + (sys.argv[2] if len(sys.argv) > 2 else "") + ")")
    open(sys.argv[1], "w").write(gen(**kw))
```

```python
import re
TRANS = ("v_exp_f32", "v_log_f32", "v_rcp_f32", "v_rsq_f32", "v_sqrt_f32", "v_sin_f32", "v_cos_f32")
BIG = 99

def regs_of(tok):
    tok = tok.strip()
    neg = tok.lstrip("-")
    if neg.startswith("abs(") and neg.endswith(")"): neg = neg[4:-1]
    if neg.startswith("|") and neg.endswith("|"): neg = neg[1:-1]
    m = re.fullmatch(r"([vsa])(\d+)", neg)
    if m: return [(m.group(1), int(m.group(2)))]
    m = re.fullmatch(r"([vsa])\[(\d+):(\d+)\]", neg)
    if m: return [(m.group(1), i) for i in range(int(m.group(2)), int(m.group(3)) + 1)]
    if neg == "vcc": return [("s", "vcc")]
    if neg == "exec": return [("s", "exec")]
    return []

class Ins:
    def __init__(self, text):
        self.text = text
        body = text.split(";")[0].strip()
        parts = body.split(None, 1)
        self.op = parts[0]
        rest = parts[1] if len(parts) > 1 else ""
        ops = [o.strip() for o in re.split(r",(?![^\[]*\])", rest)] if rest else []
        mods = ""
        if ops:
            last = ops[-1].split(None, 1)
            ops[-1] = last[0]
            mods = last[1] if len(last) > 1 else ""
        self.ops = ops; self.mods = mods
        op = self.op
        self.dpp = "_dpp" in op or re.search(r"\b(row_|quad_perm)", mods) is not None
        self.mfma = op.startswith("v_mfma")
        self.dot = op.startswith("v_dot")
        self.perml = op.startswith("v_permlane")
        self.valu = op.startswith("v_") and not self.mfma
        self.trans = any(op.startswith(t) for t in TRANS)
        self.vmem = op.startswith(("buffer_", "global_", "flat_"))
        self.ds = op.startswith("ds_")
        self.salu = op.startswith("s_")
        self.lane_read = op.startswith(("v_readfirstlane", "v_readlane"))
        R = [regs_of(o) for o in ops]
        W = []; S = []
        if self.valu or self.mfma:
            W = list(R[0]); S = [r for x in R[1:] for r in x]
            if self.perml: W += R[1]; S += R[0]
            if op.startswith(("v_fmac", "v_dot2c", "v_pk_fmac")): S += R[0]
            if op.startswith(("v_add_co", "v_addc_co", "v_sub_co")): W += R[1]; S = [r for x in R[2:] for r in x]
            if op.startswith("v_cndmask") and len(ops) == 3: S += [("s", "vcc")]
            if op.startswith("v_cmp") and len(ops) == 2: W = [("s", "vcc")]; S = [r for x in R for r in x]
        elif self.vmem:
            store = "store" in op or ("atomic" in op)
            if op.startswith("buffer_"):
                if "lds" in mods.split(): S = [r for x in R for r in x]
                elif store:
                    S = [r for x in R for r in x]
                    if "atomic" in op and "sc0" in mods.split(): W = list(R[0])
                else:
                    W = list(R[0]); S = [r for x in R[1:] for r in x]
                    if "d16" in op: S += R[0]
            else:
                if store: S = [r for x in R for r in x]
                else: W = list(R[0]); S = [r for x in R[1:] for r in x]
            self.wide_store = store and ("x3" in op or "x4" in op)
            self.store_data = (R[0] if op.startswith("buffer_") else R[1]) if store else []
        elif self.ds:
            if op.startswith(("ds_read", "ds_bpermute", "ds_permute", "ds_swizzle")) or "_rtn" in op:
                W = list(R[0]); S = [r for x in R[1:] for r in x]
            else: S = [r for x in R for r in x]
        elif self.salu:
            if op.startswith(("s_cmp", "s_cbranch", "s_branch", "s_waitcnt", "s_nop", "s_barrier", "s_sleep", "s_endpgm", "s_setprio", "s_bitcmp")):
                S = [r for x in R for r in x]
            elif R:
                W = list(R[0]); S = [r for x in R[1:] for r in x]
        self.W = W; self.S = S
        if self.mfma:
            self.A = R[1]; self.B = R[2]; self.C = R[3]
            assert "16x16x32" in op, "only the 4-pass MFMA is modelled"
        self.states = 1
        if op == "s_nop": self.states = int(ops[0], 0) + 1

class State:
    def __init__(self): self.ev = {}
    def copy(self):
        s = State(); s.ev = {k: dict(v) for k, v in self.ev.items()}; return s
    def age(self, n):
        for k in list(self.ev):
            d = self.ev[k]
            for e in list(d):
                d[e] += n
                if d[e] > 24: del d[e]
            if not d: del self.ev[k]
    def merge(self, o):
        ch = False
        for k, d in o.ev.items():
            m = self.ev.setdefault(k, {})
            for e, a in d.items():
                if e not in m or a < m[e]: m[e] = a; ch = True
        return ch
    def get(self, r, pred):
        d = self.ev.get(r)
        if not d: return BIG
        return min([a for e, a in d.items() if pred(e)] or [BIG])

def need(ins, st):
    n = 0
    def req(r, pred, w):
        nonlocal n
        a = st.get(r, pred)
        if a < w: n = max(n, w - a)
    isv = lambda e: e[0] in ("valu", "trans", "dot")
    vs = [r for r in ins.S if r[0] in "va"]; vw = [r for r in ins.W if r[0] in "va"]
    ss = [r for r in ins.S if r[0] == "s"]
    if ins.dpp or ins.perml:
        for r in vs: req(r, isv, 2)
    if ins.valu and not ins.trans:
        for r in vs: req(r, lambda e: e[0] == "trans", 1)
    if ins.lane_read:
        for r in vs: req(r, isv, 1)
    if ins.mfma:
        for r in vs: req(r, isv, 2)
        for r in ins.A + ins.B: req(r, lambda e: e[0] == "xdl", 8)
        for r in ins.C: req(r, lambda e: e[0] == "xdl" and e[1] != tuple(ins.C), 6)
        for r in vw: req(r, lambda e: e[0] == "xdl" and e[1] != tuple(ins.W), 8)
    else:
        for r in vs + vw: req(r, lambda e: e[0] == "xdl", 8)
    if ins.valu:
        for r in vw: req(r, lambda e: e[0] == "xdlC", 3)
        for r in vw: req(r, lambda e: e[0] == "wstore", 2)
        for r in ss: req(r, lambda e: e[0] == "vsgpr", 2)
    elif vw:
        for r in vw: req(r, lambda e: e[0] == "wstore", 1)
    if ins.vmem:
        for r in ss: req(r, lambda e: e[0] == "vsgpr", 5)
    if ins.dot:
        c = regs_of(ins.ops[3]) if len(ins.ops) > 3 else regs_of(ins.ops[0])
        ab = regs_of(ins.ops[1]) + regs_of(ins.ops[2])
        for r in ab: req(r, lambda e: e[0] == "dot", 3)
        for r in c + vw: req(r, lambda e: e[0] == "dot" and e[1] != ins.op, 3)
    else:
        for r in vs + vw: req(r, lambda e: e[0] == "dot", 3)
    return n

def apply(ins, st):
    st.age(ins.states)
    for r in ins.W:
        d = st.ev.setdefault(r, {})
        keep = {e: a for e, a in d.items() if e[0] in ("xdlC", "wstore")}
        d.clear(); d.update(keep)
        if r[0] in "va":
            if ins.mfma: d[("xdl", tuple(ins.W))] = 0
            elif ins.trans: d[("trans",)] = 0
            elif ins.dot: d[("dot", ins.op)] = 0
            elif ins.valu: d[("valu",)] = 0
        elif ins.valu: d[("vsgpr",)] = 0
    if ins.mfma:
        for r in ins.C: st.ev.setdefault(r, {})[("xdlC",)] = 0
    if ins.vmem and getattr(ins, "wide_store", False):
        for r in ins.store_data: st.ev.setdefault(r, {})[("wstore",)] = 0

class Asm:
    def __init__(self): self.items = []
    def __call__(self, text):
        for line in text.split("\n"):
            line = line.strip()
            if not line: continue
            if line.endswith(":") or line.startswith((".", ";")): self.items.append(line)
            else: self.items.append(Ins(line))
    def label(self, n): self.items.append(n + ":")
    def mark(self, *m): self.items.append(("mark",) + m)
    @staticmethod
    def size(ins):
        op = ins.op
        if ins.vmem or ins.ds or ins.mfma or ins.dpp or op.startswith(("s_load", "s_mem")): return 8
        lit = any(re.fullmatch(r"-?(0x[0-9a-fA-F]+|\d+)", o) and not (-16 <= int(o, 0) <= 64) for o in ins.ops)
        if op.startswith(("s_movk", "s_addk", "s_waitcnt", "s_nop", "s_sleep", "s_cbranch", "s_branch", "s_getreg", "s_setprio")): return 4
        if ins.valu and (len(ins.ops) >= 4 or op.startswith(("v_cvt_pk", "v_mul_hi", "v_mul_lo", "v_bfe", "v_readlane", "v_writelane")) or
                         (op.startswith("v_cmp") and ins.ops[0] != "vcc")): return 8
        return 8 if lit else 4
    def place_pads(self, spacing):
        out = []; cur = None; nopad = False; n = 0; since = 0; back = None
        for it in self.items:
            if isinstance(it, tuple):
                if it[1] == "chain":
                    cur, back, n, since = it[2], it[3], 0, 1 << 20
                elif it[1] == "end":
                    if cur and spacing:
                        for k in range(len(out) - 1, -1, -1):
                            if isinstance(out[k], Ins) and out[k].text == f"s_cbranch_execz {cur}_{n}":
                                out[k] = Ins(f"s_cbranch_execz {back}"); break
                    cur = None
                elif it[1] == "nopad": nopad = it[2]
                elif it[1] == "force" and since > 64: since = 1 << 20
                continue
            if isinstance(it, Ins):
                if cur and spacing and not nopad and since >= spacing:
                    out.append(f"{cur}_{n}:"); n += 1
                    out.append(Ins(f"s_cbranch_execz {cur}_{n}")); since = 4
                since += self.size(it)
            out.append(it)
        self.items = out
    def finalize(self):
        at_label = {}
        pads = {}
        for _ in range(6):
            st = State(); changed = False; dead = False
            for i, it in enumerate(self.items):
                if isinstance(it, str):
                    if it.endswith(":") and not it.startswith((".", ";")):
                        l = it[:-1]
                        if dead: st = State(); dead = False
                        if l in at_label: st.merge(at_label[l])
                    continue
                n = need(it, st)
                if n > pads.get(i, 0): pads[i] = n; changed = True
                st.age(pads.get(i, 0))
                apply(it, st)
                if it.op.startswith(("s_cbranch", "s_branch")):
                    l = it.ops[0]
                    if it.op == "s_cbranch_execz" and l.startswith(("P_", "L_warm")): continue
                    if at_label.setdefault(l, State()).merge(st): changed = True
                    if it.op == "s_branch": dead = True
                if it.op in ("s_endpgm", "s_setpc_b64"): dead = True
            if not changed: break
        out = []; nn = 0
        for i, it in enumerate(self.items):
            if isinstance(it, str): out.append(it); continue
            p = pads.get(i, 0)
            if p: out.append(f"    s_nop {p-1}"); nn += p
            out.append("    " + it.text)
        self.nops = nn
        return "\n".join(out) + "\n"
```

```python
import sys, struct
sys.path.insert(0, "work")
from asmlib import Asm

KNAME = "sequential_preLN__mha_block_cached__glu_gated_swiglu__decode_kernel"
HEADER = open("sequential_preLN__mha_block_cached__glu_gated_swiglu__decode.s.ref").read().split("; Override launch")[0]

def f32(x): return "0x%08x" % struct.unpack("<I", struct.pack("<f", x))[0]

EPOCH, O1, ML, Z2, P3, Q0, STAMP = 0, 0x10000, 0x30000, 0x32000, 0x40000, 0xa0000, 0x100000
Z2R, Z2S = 0x140000, 0x8000
KD = 0x3a000
XC, FAST = 0x38000, 0x200000
L_ST, L_MW, L_LW, L_Q, L_H, L_P = 0, 128, 160, 256, 512, 4096

def gen(Wn=4, nK=24, qsleep=16, EW=8, jB2=25, dyn=0, Ww=13, Wv=None, wqpol='nt', w2mode='first', tu=1, fast1=1, pads=224, now13=0, t2='red', SD2=0, SP2=2, SP3=0, adapt=None, jA=14, par=None, rep2=1, PD1=2, PD2=3, PD3=3, pub2x4=1, mpoll=1, tpos=0, pol="nt", wpol="nt", diag=0, codepf=2, sleep2=0, sleep3=0):
    a = Asm()
    LANE = "v0"; MASK = [4, 5, 6, 7]; Q = 8; D = 12; B = [16, 20]
    VKV, VW, VM, VL, VF, VG, VTAG = "v24", "v25", "v26", "v27", "v1", "v2", "v3"
    T = [28 + i for i in range(8)]
    S = 36
    SLOT0, NSLOT = 52, 29
    sK, sV, sWQ, sX, sWS, sG, sOUT = "s[32:35]", "s[36:39]", "s[40:43]", "s[44:47]", "s[48:51]", "s[52:55]", "s[56:59]"
    WAVE, HEAD, SPLIT, TAG = "s28", "s29", "s30", "s31"
    RID = "s79"; L_ROLE = 192
    assert not (dyn and EW)
    Wv = Wv or Wn
    if adapt: Wv = adapt[2]
    if par: Wn = Wv = max(par)
    SCALE, LOG2E, HI, TMASK, TLOW, ROLE, CNT, EP1 = "s64", "s65", "s66", "s67", "s68", "s69", "s70", "s71"
    v4 = lambda r: f"v[{r}:{r+3}]"
    stamps = []
    names = diag.split() if isinstance(diag, str) else ["start", "q", "kend", "vend", "tail", "got", "pub", "end"]
    def stamp(n):
        if diag and n in names:
            i = names.index(n); a(f"s_memrealtime s[{80+2*i}:{81+2*i}]")
    def rbf(dst, src):
        a(f"v_cvt_pk_bf16_f32 {dst}, {src}, {src}"); a(f"v_and_b32 {dst}, {HI}, {dst}")
    def dpp(op, d, s0, s1, ctl): a(f"{op}_dpp {d}, {s0}, {s1} {ctl} row_mask:0xf bank_mask:0xf")
    def allred16(regs, op="v_add_f32", steps=(8, 4, 2, 1)):
        for st in steps:
            for r in regs: dpp(op, r, r, r, f"row_ror:{st}")
    def allred_rows(r, t, op="v_add_f32"):
        a(f"v_mov_b32 {t}, {r}"); a(f"v_permlane16_swap_b32 {r}, {t}"); a(f"{op} {r}, {r}, {t}")
        a(f"v_mov_b32 {t}, {r}"); a(f"v_permlane32_swap_b32 {r}, {t}"); a(f"{op} {r}, {r}, {t}")
    def rows_scatter(r0, r1, r2, r3):
        a(f"v_permlane16_swap_b32 {r0}, {r1}"); a(f"v_permlane16_swap_b32 {r2}, {r3}")
        a(f"v_add_f32 {r0}, {r0}, {r1}"); a(f"v_add_f32 {r2}, {r2}, {r3}")
        a(f"v_permlane32_swap_b32 {r0}, {r2}"); a(f"v_add_f32 {r0}, {r0}, {r2}")
    def selector(b, src):
        for j in range(4): a(f"v_and_b32 v{b+j}, {src}, v{MASK[j]}")
    def mfma(A_, B_, first=False): a(f"v_mfma_f32_16x16x32_bf16 {v4(D)}, {v4(A_)}, {v4(B_)}, {'0' if first else v4(D)}")
    def setexec(m):
        a(f"s_mov_b32 exec_lo, {hex(m & 0xffffffff)}"); a(f"s_mov_b32 exec_hi, {hex(m >> 32)}")
    def tagcheck(quads, t0, t1, t2):
        tmp = []
        first = True
        for qd in quads:
            a(f"v_bitop3_b32 {t1}, v{qd}, v{qd+1}, {TAG} bitop3:0x7e")
            a(f"v_bitop3_b32 {t2}, v{qd+2}, v{qd+3}, {TAG} bitop3:0x7e")
            if first: a(f"v_or_b32 {t0}, {t1}, {t2}"); first = False
            else: a(f"v_or3_b32 {t0}, {t0}, {t1}, {t2}")
        a(f"v_and_b32 {t0}, {TLOW}, {t0}")
        a(f"v_cmp_ne_u32 vcc, 0, {t0}")
    def poll(name, loads, quads, sleep):
        if diag and "wts" in names and name in ("L_p1", "L_p2"): a("s_waitcnt vmcnt(0)"); stamp("wts")
        a.mark("force")
        a(f"s_mov_b32 {CNT}, 0x8000")
        a.mark("nopad", 1)
        n = len(loads)
        if not mpoll:
            a.label(name)
            for l in loads: a(l)
            a("s_waitcnt vmcnt(0)")
            tagcheck(quads, f"v{T[0]}", f"v{T[1]}", f"v{T[2]}")
            a(f"s_cbranch_vccz {name}_ok")
            if sleep: a(f"s_sleep {sleep}")
        else:
            M = [f"s[{4+2*i}:{5+2*i}]" for i in range(n)]
            for m in M: a(f"s_mov_b64 {m}, -1")
            a.label(name)
            for m, l in zip(M, loads):
                if n > 1: a(f"s_mov_b64 exec, {m}")
                a(l)
            for i, (m, qd) in enumerate(zip(M, quads)):
                if n > 1: a(f"s_mov_b64 exec, {m}")
                if i == 0: a("s_waitcnt vmcnt(0)")
                a(f"v_bitop3_b32 v{T[1]}, v{qd}, v{qd+1}, {TAG} bitop3:0x7e")
                a(f"v_bitop3_b32 v{T[2]}, v{qd+2}, v{qd+3}, {TAG} bitop3:0x7e")
                a(f"v_bitop3_b32 v{T[1]}, v{T[1]}, v{T[2]}, {TLOW} bitop3:0xa8")
                a(f"v_cmp_ne_u32 {m}, 0, v{T[1]}")
            if n == 1:
                a(f"s_and_b64 exec, {M[0]}, {M[0]}")
            else:
                a(f"s_or_b64 vcc, {M[0]}, {M[1]}")
                if n == 3: a(f"s_or_b64 vcc, vcc, {M[2]}")
            a(f"s_cbranch_scc0 {name}_ok")
            if sleep: a(f"s_sleep {sleep}")
        a(f"s_sub_u32 {CNT}, {CNT}, 1"); a(f"s_cmp_lg_u32 {CNT}, 0"); a(f"s_cbranch_scc1 {name}")
        a.label(name + "_ok")
        if mpoll: a("s_mov_b64 exec, -1")
        a.mark("nopad", 0)
        if diag and "polls" in names and name in ("L_p1", "L_p2", "L_p3"):
            i = names.index("polls"); a(f"s_sub_u32 s{80+2*i}, 0x8001, {CNT}")
    def ppoll(name, load, canon, bufs, sleep=0, space=0):
        if diag and "wts" in names and (name == "L_p1" or (name == "L_p2" and not SD2)): a("s_waitcnt vmcnt(0)"); stamp("wts")
        n = len(canon); depth = len(bufs)
        P = [f"s[{4+2*i}:{5+2*i}]" for i in range(n)]
        a.mark("force")
        a(f"s_mov_b32 {CNT}, 0x4000")
        a.mark("nopad", 1)
        for m in P: a(f"s_mov_b64 {m}, -1")
        for k in range(depth - 1):
            for i in range(n): a(load(i, bufs[k][i]))
            if space: a(f"s_sleep {space}")
        a.label(name)
        for k in range(depth):
            for i in range(n):
                a(f"s_or_b64 exec, {P[i]}, 1"); a(load(i, bufs[(k + depth - 1) % depth][i]))
            if space: a(f"s_sleep {space}")
            for i in range(n):
                qd = bufs[k][i]
                a(f"s_mov_b64 exec, {P[i]}")
                if i == 0: a(f"s_waitcnt vmcnt({n * (depth - 1)})")
                a(f"v_bitop3_b32 v{T[1]}, v{qd}, v{qd+1}, {TAG} bitop3:0x7e")
                a(f"v_bitop3_b32 v{T[2]}, v{qd+2}, v{qd+3}, {TAG} bitop3:0x7e")
                a(f"v_bitop3_b32 v{T[1]}, v{T[1]}, v{T[2]}, {TLOW} bitop3:0xa8")
                for r in range(4): a(f"v_and_b32 v{canon[i]+r}, {TMASK}, v{qd+r}")
                a(f"v_cmp_ne_u32 {P[i]}, 0, v{T[1]}")
            if diag and "h1" in names and name == "L_p2":
                h = [f"s{80+2*names.index(x)}" for x in ("h1", "h2", "h3", "m")]
                a(f"s_mov_b32 {h[2]}, {h[1]}"); a(f"s_mov_b32 {h[1]}, {h[0]}")
                a(f"s_memrealtime s[{h[0][1:]}:{int(h[0][1:])+1}]"); a("s_waitcnt lgkmcnt(0)")
                a(f"s_bcnt1_i32_b64 s3, {P[0]}"); a(f"s_bcnt1_i32_b64 s62, {P[1]}"); a("s_add_u32 s3, s3, s62"); a("s_lshr_b32 s3, s3, 4")
                a(f"s_lshl_b32 {h[3]}, {h[3]}, 4"); a(f"s_or_b32 {h[3]}, {h[3]}, s3"); a(f"s_and_b32 {h[3]}, {h[3]}, 0xffff")
            if n == 1: a(f"s_cmp_lg_u64 {P[0]}, 0")
            else:
                a(f"s_or_b64 vcc, {P[0]}, {P[1]}")
                if n == 3: a(f"s_or_b64 vcc, vcc, {P[2]}")
            a(f"s_cbranch_scc0 {name}_ok")
            if sleep: a(f"s_sleep {sleep}")
        a(f"s_sub_u32 {CNT}, {CNT}, 1"); a(f"s_cmp_lg_u32 {CNT}, 0"); a(f"s_cbranch_scc1 {name}")
        a.label(name + "_ok")
        a("s_mov_b64 exec, -1")
        a.mark("nopad", 0)
        if diag and "polls" in names and name in ("L_p1", "L_p2", "L_p3"):
            i = names.index("polls"); a(f"s_sub_u32 s{80+2*i}, 0x4001, {CNT}")
    def spoll(name, addr, regs, lanes, space):
        depth = len(regs)
        a.mark("force")
        a(f"s_mov_b32 {CNT}, 0x2000")
        a.mark("nopad", 1)
        a(f"s_mov_b64 exec, {hex(lanes)}"); a(f"s_mov_b64 s[4:5], {hex(lanes)}")
        ld = lambda r: f"buffer_load_dword v{r}, {addr}, {sWS}, 0 offen sc1"
        for k in range(depth - 1):
            a(ld(regs[k])); a(f"s_sleep {space}")
        a.label(name)
        for k in range(depth):
            a("s_or_b64 exec, s[4:5], 1"); a(ld(regs[(k + depth - 1) % depth]))
            a("s_mov_b64 exec, s[4:5]")
            a(f"s_sleep {space}")
            a(f"s_waitcnt vmcnt({depth - 1})")
            a(f"v_bitop3_b32 v{T[1]}, v{regs[k]}, {VTAG}, {TLOW} bitop3:0x28")
            a(f"v_cmp_ne_u32 s[4:5], 0, v{T[1]}")
            a("s_cmp_lg_u64 s[4:5], 0"); a(f"s_cbranch_scc0 {name}_ok")
        a(f"s_sub_u32 {CNT}, {CNT}, 1"); a(f"s_cmp_lg_u32 {CNT}, 0"); a(f"s_cbranch_scc1 {name}")
        a.label(name + "_ok")
        a("s_mov_b64 exec, -1")
        a.mark("nopad", 0)
    def mfma_chain(n, src_of, A_of, pre=None):
        src_of(0)
        for t in range(n):
            selector(B[t & 1], src_of.reg(t))
            if t + 1 < n: src_of(t + 1)
            if pre: pre(t)
            mfma(A_of(t), B[t & 1], first=(t == 0))

    a.label(KNAME)
    a("s_cmp_ge_u32 s2, 256"); a("s_cbranch_scc1 L_exit")
    if diag:
        for i in range(8): a(f"s_mov_b32 s{80+2*i}, 0")
    stamp("start")
    a("s_load_dwordx16 s[4:19], s[0:1], 0"); a("s_load_dwordx8 s[20:27], s[0:1], 64")
    a("v_lshrrev_b32 v1, 6, v0"); a("v_and_b32 v0, 63, v0")
    a(f"v_readfirstlane_b32 {WAVE}, v1")
    a(f"s_and_b32 {HEAD}, s2, 7"); a(f"s_lshl_b32 {HEAD}, {HEAD}, 2"); a("s_bfe_u32 s3, s2, 0x20003"); a(f"s_add_u32 {HEAD}, {HEAD}, s3")
    a(f"s_lshr_b32 {SPLIT}, s2, 5")
    a(f"v_lshlrev_b32 v{T[0]}, 4, {LANE}")
    a("s_movk_i32 s46, 1152"); a("s_mov_b32 s47, 0x20000")
    a(f"s_sub_u32 {WAVE}, {WAVE}, 1"); a("s_cbranch_scc1 L_helper")
    a(f"s_lshl_b32 s60, {HEAD}, 21"); a(f"s_lshl_b32 s61, {SPLIT}, 18"); a("s_add_u32 s62, s60, s61")
    a("s_mov_b32 s34, 0x40000"); a("s_mov_b32 s35, 0x20000"); a("s_mov_b32 s38, 0x40000"); a("s_mov_b32 s39, 0x20000")
    a(f"s_lshl_b32 s3, {WAVE}, 10"); a(f"v_add_u32 {VKV}, s3, v{T[0]}")
    a("s_mov_b32 s60, 0")
    if par: a("s_getreg_b32 s72, hwreg(HW_REG_XCC_ID, 0, 1)"); a("s_mov_b32 vcc_lo, s72"); a("s_mov_b32 vcc_hi, 0")
    a("s_waitcnt lgkmcnt(0)")
    a("s_add_u32 s32, s6, s62"); a("s_addc_u32 s33, s7, 0")

    def late_setup():
        a(f"s_load_dword {EP1}, s[26:27], {EPOCH}")
        a("s_mov_b32 s44, s4"); a("s_mov_b32 s45, s5"); a("s_mov_b32 s43, 0x20000")
        a("s_mov_b32 s48, s26"); a("s_mov_b32 s49, s27"); a("s_mov_b32 s50, 0x400000"); a("s_mov_b32 s51, 0x20000")
        a("s_mov_b32 s56, s22"); a("s_mov_b32 s57, s23"); a("s_movk_i32 s58, 1152"); a("s_mov_b32 s59, 0x20000")
        a(f"s_mov_b32 {SCALE}, {f32(128 ** -0.5)}"); a(f"s_mov_b32 {LOG2E}, {f32(1.4426950408889634)}")
        a(f"s_mov_b32 {HI}, 0xffff0000"); a(f"s_mov_b32 {TMASK}, 0xfffff000"); a(f"s_movk_i32 {TLOW}, 0xfff")
        a(f"v_and_b32 v{T[4]}, 1, {LANE}"); a(f"v_lshlrev_b32 v{T[4]}, 4, v{T[4]}")
        a(f"v_mov_b32 v{T[5]}, 0xffff"); a(f"v_lshlrev_b32 v{T[5]}, v{T[4]}, v{T[5]}")
        a(f"v_bfe_u32 v{T[4]}, {LANE}, 1, 2")
        for j in range(4):
            a(f"v_cmp_eq_u32 vcc, {j}, v{T[4]}"); a(f"v_cndmask_b32 v{MASK[j]}, 0, v{T[5]}, vcc")
        a("s_mov_b32 s96, s24"); a("s_mov_b32 s97, s25"); a("s_movk_i32 s98, 256"); a("s_mov_b32 s99, 0x20000")
        if not dyn:
            a("s_and_b32 s78, s2, 7"); a("s_mul_i32 s78, s78, 18"); a("s_lshr_b32 s3, s2, 3"); a("s_add_u32 s78, s78, s3")
            a("s_cmp_lt_u32 s2, 144"); a(f"s_cselect_b32 {RID}, s78, s2")
            role_setup()
    def role_setup():
        u = role_setup.n = getattr(role_setup, "n", 0) + 1
        a("s_mov_b32 s55, 0x20000")
        a(f"s_cmp_lt_u32 {RID}, 144"); a(f"s_cbranch_scc0 L_r1_{u}")
        a(f"s_mov_b32 {ROLE}, {RID}")
        a(f"s_mul_i32 s3, {ROLE}, {32*1152}"); a("s_add_u32 s52, s20, s3"); a("s_addc_u32 s53, s21, 0")
        a(f"s_mov_b32 s54, 0"); a("s_mov_b32 s63, 0x40000000")
        a(f"s_lshl_b32 s3, {WAVE}, 7")
        a(f"s_branch L_r2_{u}")
        a.label(f"L_r1_{u}")
        a(f"s_sub_u32 {ROLE}, {RID}, 144"); a(f"s_lshr_b32 {ROLE}, {ROLE}, 3")
        a(f"s_and_b32 s3, {RID}, 7"); a(f"s_mul_i32 s3, s3, {512*1152}"); a(f"s_lshl_b32 s62, {ROLE}, 7")
        a(f"s_sub_u32 s54, {512*1152}, s62"); a("s_add_u32 s3, s3, s62")
        a(f"s_cmp_lt_u32 {RID}, 216"); a("s_cselect_b32 s54, s54, 0"); a("s_cselect_b32 s3, s3, 0")
        a("s_add_u32 s52, s12, s3"); a("s_addc_u32 s53, s13, 0")
        a(f"s_mov_b32 s63, {32*1152}"); a(f"s_mul_i32 s3, {WAVE}, {64*1152}")
        a.label(f"L_r2_{u}")
        a("s_movk_i32 s76, 4608"); a("s_add_u32 s77, s63, s76")
        a(f"v_lshrrev_b32 v{T[4]}, 4, {LANE}"); a(f"v_bfe_u32 v{T[5]}, {LANE}, 3, 1"); a(f"v_lshl_add_u32 v{T[4]}, v{T[4]}, 3, v{T[5]}")
        a(f"v_mul_u32_u24 v{T[4]}, 1152, v{T[4]}")
        a(f"v_and_b32 v{T[5]}, 7, {LANE}"); a(f"v_lshl_add_u32 v{T[4]}, v{T[5]}, 4, v{T[4]}")
        a(f"v_add_u32 {VG}, s3, v{T[4]}")
    def touch_setup():
        a("s_lshr_b32 s3, s2, 3"); a("s_sub_u32 s62, s3, 9"); a("s_cmp_lt_u32 s3, 18"); a("s_cselect_b32 s62, s3, s62")
        a("s_mul_i32 s62, s62, 26"); a("s_sub_u32 s42, 576, s62"); a("s_min_u32 s42, s42, 26")
        a("s_mul_i32 s42, s42, 9216"); a(f"s_sub_u32 s42, s42, {9216-1152}")
        a("s_sub_u32 s3, s3, 18"); a("s_cmp_lt_u32 s3, 9"); a("s_cselect_b32 s42, 0, s42"); a("s_cselect_b32 s62, 0, s62")
        a("s_mul_i32 s62, s62, 9216"); a("s_and_b32 s3, s2, 7"); a("s_mul_i32 s3, s3, 1152"); a("s_add_u32 s62, s62, s3")
        a(f"s_bitcmp1_b32 {WAVE}, 0"); a("s_cselect_b32 s40, s18, s16"); a("s_cselect_b32 s41, s19, s17")
        a("s_add_u32 s40, s40, s62"); a("s_addc_u32 s41, s41, 0")
    def touch_lane(dst):
        a(f"s_lshr_b32 s3, {WAVE}, 1"); a("s_lshl_b32 s3, s3, 6"); a(f"v_add_u32 v{T[1]}, s3, {LANE}")
        a(f"s_mov_b32 s3, {-(-(1 << 32) // 9)}"); a(f"v_mul_hi_u32 v{T[2]}, v{T[1]}, s3")
        a(f"v_mul_u32_u24 v{T[3]}, 9, v{T[2]}"); a(f"v_sub_u32 v{T[1]}, v{T[1]}, v{T[3]}")
        a(f"v_mul_u32_u24 v{T[2]}, 9216, v{T[2]}"); a(f"v_lshl_add_u32 {dst}, v{T[1]}, 7, v{T[2]}")
    def gload(i, r):
        so = ("0", "s76", "s63", "s77")[i >> 1]
        a(f"buffer_load_dwordx4 {v4(r)}, {VG}, {sG}, {so} offen offset:{(i & 1) * 2304} {wpol}")
    def bcast_src(src):
        def f(t):
            d = f.reg(t)
            a(f"v_mov_b32_dpp {d}, {src} row_newbcast:{2*t} row_mask:0xf bank_mask:0x3")
            a(f"v_mov_b32_dpp {d}, {src} row_newbcast:{2*t+1} row_mask:0xf bank_mask:0xc")
        f.reg = lambda t: f"v{T[6 + (t & 1)]}"
        return f
    def part_addr(dst, two):
        a(f"s_lshl_b32 s3, {WAVE}, 9"); a(f"s_add_u32 s3, s3, {L_P}")
        a(f"v_lshrrev_b32 {dst}, 4, {LANE}"); a(f"v_lshlrev_b32 {dst}, 7, {dst}")
        a(f"v_and_b32 v{T[7]}, 7, {LANE}"); a(f"v_lshl_add_u32 {dst}, v{T[7]}, 4, {dst}"); a(f"v_add_u32 {dst}, s3, {dst}")
    def sum_parts(addr, dst, tmp, n, stride):
        regs = [dst] + tmp[:n-1]
        for i in range(n): a(f"ds_read_b128 {v4(regs[i])}, {addr} offset:{L_P + i * stride}")
        for i in range(1, n):
            a(f"s_waitcnt lgkmcnt({n-1-i})")
            for r in range(4): a(f"v_add_f32 v{dst+r}, v{dst+r}, v{regs[i]+r}")
    def tag_setup():
        a(f"s_add_u32 {EP1}, {EP1}, 1"); a(f"s_and_b32 {TAG}, {EP1}, 0xfff"); a(f"v_mov_b32 {VTAG}, {TAG}")

    order = []; free = list(range(NSLOT)); slot_of = {}
    def alloc(item):
        s = free.pop(0); slot_of[item] = SLOT0 + 4 * s; return slot_of[item]
    def release(item): free.append((slot_of[item] - SLOT0) // 4)
    def issue(item):
        k, i = item
        if k == "k" or k == "v":
            r = alloc(item)
            if item == ("v", 0): a("s_mov_b32 s60, 0")
            a(f"buffer_load_dwordx4 {v4(r)}, {VKV}, {sK if k == 'k' else sV}, s60 offen {pol}")
            a("s_addk_i32 s60, 0x2000")
        elif k == "t":
            a(f"buffer_load_dword v{S}, v{S}, s[40:43], 0 offen")
        elif k == "g":
            r = alloc(item)
            gload(i, r)
        order.append(item)
    known = [-1]
    def wait_idx(idx):
        if idx > known[0]:
            a(f"s_waitcnt vmcnt({len(order) - 1 - idx})"); known[0] = idx
    def wait_item(item): wait_idx(order.index(item))
    def landed(item): return item in order and order.index(item) <= known[0]

    PLAIN, TWO = 0x00FF00FF00FF00FF, 0xFF00FF0000FF00FF
    VP = VW
    def task_qfin():
        a("s_barrier")
        a(f"ds_read_b128 {v4(Q)}, v{T[0]} offset:{L_Q}")
        a("s_waitcnt lgkmcnt(0)")
        tag_setup()
        stamp("q")
    def task_kq(q):
        wait_item(("k", 4*q+3))
        for x in range(4):
            r = slot_of[("k", 4*q+x)]
            for i in range(4):
                a(f"v_dot2_f32_bf16 v{T[x]}, v{r+i}, v{Q+i}, {'0' if i == 0 else 'v%d' % T[x]}")
            release(("k", 4*q+x))
        allred16([f"v{T[x]}" for x in range(4)])
        a(f"v_cvt_pk_bf16_f32 v{T[4]}, v{T[0]}, v{T[1]}"); a(f"v_cvt_pk_bf16_f32 v{T[5]}, v{T[2]}, v{T[3]}")
        a(f"v_lshlrev_b32 v{T[0]}, 16, v{T[4]}"); a(f"v_and_b32 v{T[1]}, {HI}, v{T[4]}")
        a(f"v_lshlrev_b32 v{T[2]}, 16, v{T[5]}"); a(f"v_and_b32 v{T[3]}, {HI}, v{T[5]}")
        for x in range(4): a(f"v_mul_f32 v{T[x]}, {SCALE}, v{T[x]}")
        a(f"v_cvt_pk_bf16_f32 v{S+2*q}, v{T[0]}, v{T[1]}"); a(f"v_cvt_pk_bf16_f32 v{S+2*q+1}, v{T[2]}, v{T[3]}")
        a(f"v_max3_f32 {VM}, {VM}, v{T[0]}, v{T[1]}"); a(f"v_max3_f32 {VM}, {VM}, v{T[2]}, v{T[3]}")
    PA, PB = f"v{T[5]}", f"v{T[6]}"
    def prep_pv(j):
        if j % 2 == 0:
            a(f"v_lshlrev_b32 {PA}, 16, v{S+j//2}"); a(f"v_and_b32 {PB}, {HI}, v{S+j//2}")
            a(f"v_fma_f32 {PA}, {PA}, {LOG2E}, -{VF}"); a(f"v_fma_f32 {PB}, {PB}, {LOG2E}, -{VF}")
            a(f"v_exp_f32 {PA}, {PA}"); a(f"v_exp_f32 {PB}, {PB}")
        p = PA if j % 2 == 0 else PB
        a(f"v_cvt_pk_bf16_f32 v{T[0]}, {p}, {p}"); a(f"v_add_f32 {VL}, {VL}, {p}")
        selector(B[j & 1], f"v{T[0]}")
    def task_smax():
        allred_rows(VM, f"v{T[0]}", "v_max_f32"); rbf(VM, VM)
        a(f"s_lshl_b32 s3, {WAVE}, 2"); a(f"v_mov_b32 v{T[0]}, s3")
        a(f"ds_write_b32 v{T[0]}, {VM} offset:{L_MW}")
        a(f"v_mul_f32 {VF}, {LOG2E}, {VM}")
        stamp("kend")
        prep_pv(0)
    def wgmax(dst):
        a(f"v_mov_b32 v{T[0]}, 0")
        a(f"ds_read_b128 {v4(Q)}, v{T[0]} offset:{L_MW}"); a(f"ds_read_b128 v[{T[1]+1}:{T[1]+4}], v{T[0]} offset:{L_MW+16}")
        a("s_waitcnt lgkmcnt(0)")
        a(f"v_max3_f32 {dst}, v{Q}, v{Q+1}, v{Q+2}"); a(f"v_max3_f32 {dst}, {dst}, v{Q+3}, v{T[1]+1}")
        a(f"v_max3_f32 {dst}, {dst}, v{T[1]+2}, v{T[1]+3}"); a(f"v_max_f32 {dst}, {dst}, v{T[1]+4}")
    def task_pv(j):
        wait_item(("v", j))
        mfma(slot_of[("v", j)], B[j & 1], first=(j == 0)); release(("v", j))
        if j == jB2:
            assert j % 2 == 1
            a("s_waitcnt lgkmcnt(0)"); a("s_barrier")
            wgmax(f"v{T[1]}")
            a(f"v_sub_f32 {VM}, {VM}, v{T[1]}"); a(f"v_mul_f32 {VM}, {LOG2E}, {VM}"); a(f"v_exp_f32 {VM}, {VM}")
            a(f"v_mul_f32 {VF}, {LOG2E}, v{T[1]}")
            if tu: touch_lane(f"v{S}")
            a(f"v_mul_f32 {VL}, {VL}, {VM}")
            for r in range(4): a(f"v_mul_f32 v{D+r}, v{D+r}, {VM}")
        if j == 30:
            prep_pv(31)
            allred_rows(VL, f"v{T[0]}")
            a(f"s_lshl_b32 s3, {WAVE}, 2"); a(f"v_mov_b32 v{T[0]}, s3"); a(f"ds_write_b32 v{T[0]}, {VL} offset:{L_LW}")
            return
        if j < 31: prep_pv(j + 1)

    seq = [("k", i) for i in range(32)] + [("v", i) for i in range(32)] + [("g", i) for i in range(EW)]
    if tu: seq.insert(64 - tpos, ("t", 0))
    st = dict(q=False, kq=0, sm=False, pv=0)
    def run_ready(force=False):
        did = False; n = 0
        if not st["q"]: return False
        if st["kq"] < 8:
            it = ("k", 4 * st["kq"] + 3)
            if landed(it) or (force and it in order): task_kq(st["kq"]); st["kq"] += 1; did = True
            if st["kq"] == 8: task_smax(); st["sm"] = True
            return did
        while st["pv"] < 32 and n < 2 and (landed(("v", st["pv"])) or (force and not did and ("v", st["pv"]) in order)):
            task_pv(st["pv"]); st["pv"] += 1; n += 1; did = True
        return did
    for n, item in enumerate(seq):
        if n == (min(par) if par else Wn):
            a("s_add_u32 s36, s8, s62"); a("s_addc_u32 s37, s9, 0")
            late_setup()
            if tu: touch_setup()
            if par: a("s_mov_b32 vcc_lo, s72"); a("s_mov_b32 vcc_hi, 0")
            part_addr(VP, False)
            a(f"v_and_b32 v{T[0]}, 0xf0, v{T[0]}")
            a(f"v_mov_b32 {VM}, 0xff800000"); a(f"v_mov_b32 {VL}, 0")
        W = Wv if item[0] in "vgt" else Wn
        if item[0] in "kv":
            prev = [i for i, it in enumerate(order) if it[0] in "kv"]
            if adapt and item[0] == "v":
                if item[1] == jA - 1:
                    a(f"v_mov_b32 v{Q}, 0"); a(f"ds_read_b32 v{Q}, v{Q} offset:{L_ROLE+8}")
                if item[1] == jA:
                    a("s_waitcnt lgkmcnt(0)"); a(f"v_readfirstlane_b32 s72, v{Q}"); st["mode"] = True
                    if diag and "rank" in names: a(f"s_add_u32 s{80+2*names.index('rank')}, s72, 1")
                W = Wv if st.get("mode") else Wn
            if len(prev) >= W: wait_idx(prev[-W])
            if par and len(prev) >= min(par):
                u = f"L_pw{n}"
                a(f"s_cbranch_{'vccnz' if par[1] > par[0] else 'vccz'} {u}")
                a(f"s_waitcnt vmcnt({len(order) - 1 - prev[-min(par)]})")
                a.label(u)
            if adapt and st.get("mode") and item[0] == "v":
                u = f"L_aw{item[1]}"
                a(f"s_cmp_ge_u32 s72, {adapt[4]}"); a(f"s_cbranch_scc1 {u}")
                a(f"s_waitcnt vmcnt({len(order) - 1 - prev[-adapt[1]]})")
                if adapt[0] != adapt[1]:
                    a(f"s_cmp_ge_u32 s72, {adapt[3]}"); a(f"s_cbranch_scc1 {u}")
                    a(f"s_waitcnt vmcnt({len(order) - 1 - prev[-adapt[0]]})")
                a.label(u)
        while not free: assert run_ready(force=True)
        issue(item)
        if n == nK - 1: task_qfin(); st["q"] = True
        run_ready()
    while st["pv"] < 31: assert run_ready(force=True)
    setexec(PLAIN) if st["pv"] == 32 else None
    if st["pv"] == 31:
        task_pv(31); st["pv"] = 32; setexec(PLAIN)
    stamp("vend")
    a(f"ds_write_b128 {VP}, {v4(D)}")
    a("s_mov_b64 exec, -1")
    a("s_waitcnt lgkmcnt(0)"); stamp("oadd"); a("s_barrier")
    if dyn:
        a(f"v_mov_b32 v{T[0]}, 0"); a(f"ds_read_b32 v{T[0]}, v{T[0]} offset:{L_ROLE}")
        a("s_waitcnt lgkmcnt(0)"); a(f"v_readfirstlane_b32 {RID}, v{T[0]}")
        role_setup()
    if fast1:
        a(f"v_mov_b32 v{T[0]}, 0"); a(f"ds_read_b32 v{T[0]}, v{T[0]} offset:{L_ROLE+4}")
        a("s_waitcnt lgkmcnt(0)"); a(f"v_readfirstlane_b32 s61, v{T[0]}")
    else: a("s_mov_b32 s61, 0")
    a("s_barrier")
    for i in range(EW, 8): alloc(("g", i))
    G = [slot_of[("g", i)] for i in range(8)]
    F = [SLOT0 + 4 * s for s in free]
    assert len(F) >= 20
    a("s_branch L_tail")

    a.label("L_helper")
    a("s_setprio 3")
    a(f"s_mov_b32 {WAVE}, 8")
    a(f"s_lshl_b32 s63, {HEAD}, 8"); a(f"s_sub_u32 s42, {576*8192}, s63"); a("s_mov_b32 s43, 0x20000")
    a(f"v_lshrrev_b32 v{T[1]}, 4, {LANE}"); a(f"v_mul_u32_u24 v{T[2]}, 18, v{T[1]}")
    a(f"s_mul_i32 s3, {SPLIT}, 72"); a(f"v_add_u32 v{T[2]}, s3, v{T[2]}")
    a(f"v_and_b32 v{T[3]}, 0xf0, v{T[0]}"); a(f"v_lshl_add_u32 {VW}, v{T[2]}, 13, v{T[3]}")
    a(f"v_lshlrev_b32 v{T[2]}, 1, v{T[2]}")
    a("s_mov_b32 s61, 0")
    a("s_waitcnt lgkmcnt(0)")
    a("s_mov_b32 s44, s4"); a("s_mov_b32 s45, s5")
    a("s_add_u32 s40, s10, s63"); a("s_addc_u32 s41, s11, 0")
    x0, x1 = SLOT0, SLOT0 + 4
    WQ = [SLOT0 + 8 + 4 * i for i in range(18)]
    a(f"buffer_load_dwordx4 {v4(x0)}, v{T[0]}, {sX}, 0 offen"); a(f"buffer_load_dwordx4 {v4(x1)}, v{T[0]}, {sX}, 0 offen offset:1024")
    a(f"buffer_load_dwordx4 {v4(S)}, v{T[2]}, {sX}, 0 offen"); a(f"buffer_load_dwordx4 {v4(S+4)}, v{T[2]}, {sX}, 0 offen offset:16")
    a(f"buffer_load_dword v{S+8}, v{T[2]}, {sX}, 0 offen offset:32")
    for t in range(18):
        a(f"buffer_load_dwordx4 {v4(WQ[t])}, {VW}, {sWQ}, s61 offen {wqpol}"); a("s_addk_i32 s61, 0x2000")
    CPF = 1 if codepf > 1 else 0
    def codetouch():
        u = codetouch.n = getattr(codetouch, "n", 0) + 1
        a("s_getpc_b64 s[74:75]"); a.label(f"L_pc{u}")
        a(f"s_sub_u32 s74, s74, L_pc{u}-{KNAME}"); a("s_subb_u32 s75, s75, 0")
        a("s_lshr_b32 s3, s2, 3"); a("s_lshl_b32 s3, s3, 10")
        a(f"v_lshl_add_u32 v{T[5]}, {LANE}, 7, s3"); a(f"v_min_u32 v{T[5]}, L_end-{KNAME}-4, v{T[5]}")
        a("s_mov_b64 exec, 0xff"); a(f"global_load_dword v{T[5]}, v{T[5]}, s[74:75]"); a("s_mov_b64 exec, -1")
    late_setup()
    a("s_mov_b32 s35, 0x20000"); a("s_mov_b32 s39, 0x20000")
    a(f"v_mov_b32 v{B[0]}, 0"); a(f"v_lshlrev_b32 v{T[1]}, 2, {LANE}")
    a(f"ds_write_b32 v{T[1]}, v{B[0]} offset:{L_ST}")
    a(f"v_mov_b32 {VKV}, v{T[0]}")
    if CPF: codetouch()
    a(f"s_waitcnt vmcnt({18+CPF})")
    U = [B[0] + i for i in range(8)]
    for i in range(4):
        a(f"v_lshlrev_b32 v{U[2*i]}, 16, v{x0+i}"); a(f"v_and_b32 v{U[2*i+1]}, {HI}, v{x0+i}")
    U2 = [x0 + i for i in range(4)] + [Q + i for i in range(4)]
    for i in range(4): a(f"v_lshlrev_b32 v{U2[2*i]}, 16, v{x1+i}")
    for i in range(4): a(f"v_and_b32 v{U2[2*i+1]}, {HI}, v{x1+i}")
    sm = f"v{T[0]}"; t_ = f"v{T[1]}"; q2 = f"v{T[2]}"
    a(f"v_add_f32 {sm}, v{U[0]}, v{U[1]}")
    for r in U[2:] + U2: a(f"v_add_f32 {sm}, {sm}, v{r}")
    allred16([sm]); allred_rows(sm, t_)
    a(f"v_mul_f32 {sm}, {f32(1/576)}, {sm}")
    for r in U: a(f"v_sub_f32 v{r}, v{r}, {sm}")
    a(f"v_mul_f32 {q2}, v{U[0]}, v{U[0]}")
    for r in U[1:]: a(f"v_fmac_f32 {q2}, v{r}, v{r}")
    a("s_mov_b64 exec, 0xff")
    for r in U2: a(f"v_sub_f32 v{r}, v{r}, {sm}")
    for r in U2: a(f"v_fmac_f32 {q2}, v{r}, v{r}")
    a("s_mov_b64 exec, -1")
    allred16([q2]); allred_rows(q2, t_)
    a(f"v_mul_f32 {q2}, {f32(1/576)}, {q2}")
    rbf(sm, sm); rbf(q2, q2)
    a(f"v_add_f32 {q2}, {f32(1e-5)}, {q2}"); rbf(q2, q2)
    a(f"v_sqrt_f32 {q2}, {q2}"); rbf(q2, q2)
    a(f"v_rcp_f32 {q2}, {q2}")
    for i in range(9):
        lo, hi = f"v{T[3]}", f"v{T[4]}"
        a(f"v_lshlrev_b32 {lo}, 16, v{S+i}"); a(f"v_and_b32 {hi}, {HI}, v{S+i}")
        a(f"v_sub_f32 {lo}, {lo}, {sm}"); a(f"v_sub_f32 {hi}, {hi}, {sm}")
        a(f"v_cvt_pk_bf16_f32 v{S+i}, {lo}, {hi}")
        a(f"v_lshlrev_b32 {lo}, 16, v{S+i}"); a(f"v_and_b32 {hi}, {HI}, v{S+i}")
        a(f"v_mul_f32 {lo}, {lo}, {q2}"); a(f"v_mul_f32 {hi}, {hi}, {q2}")
        a(f"v_cvt_pk_bf16_f32 v{S+i}, {lo}, {hi}")
    a("s_mov_b32 s72, 0x01000100"); a("s_mov_b32 s73, 0x03020302")
    a("s_waitcnt lgkmcnt(0)")
    tag_setup()
    a(f"s_lshl_b32 s3, {HEAD}, 13"); a(f"s_add_u32 s3, s3, {Q0}"); a(f"v_add_u32 {VL}, s3, {VKV}")
    a(f"s_lshl_b32 s62, {SPLIT}, 10")
    a("s_mov_b32 s74, 0xff00ff00"); a("s_mov_b32 s75, 0xff00ff00")
    for t in range(18):
        b = B[t & 1]
        a(f"v_perm_b32 v{T[0]}, v{S+t//2}, v{S+t//2}, {'s73' if t & 1 else 's72'}")
        selector(b, f"v{T[0]}")
        a(f"s_waitcnt vmcnt({17-t+CPF})")
        mfma(WQ[t], b, first=(t == 0))
    a(f"v_mov_b32 v{B[0]+1}, {EP1}"); a(f"v_mov_b32 v{B[0]+3}, {EP1}")
    a(f"v_cndmask_b32 v{B[0]}, v{D}, v{D+2}, s[74:75]"); a(f"v_cndmask_b32 v{B[0]+2}, v{D+1}, v{D+3}, s[74:75]")
    a(f"buffer_store_dwordx4 {v4(B[0])}, {VL}, {sWS}, s62 offen sc1")
    stamp("qpub")
    if fast1:
        a("s_getreg_b32 s78, hwreg(HW_REG_XCC_ID, 0, 4)")
        a(f"s_lshl_b32 s3, {EP1}, 4"); a("s_or_b32 s3, s3, s78"); a(f"v_mov_b32 v{T[0]}, s3")
        a("s_and_b32 s3, s2, 7"); a("s_lshl_b32 s3, s3, 5"); a("s_lshr_b32 s62, s2, 3"); a("s_add_u32 s3, s3, s62")
        a("s_lshl_b32 s3, s3, 2"); a(f"s_add_u32 s3, s3, {XC}"); a(f"v_mov_b32 v{T[1]}, s3")
        a("s_mov_b64 exec, 1"); a(f"buffer_store_dword v{T[0]}, v{T[1]}, {sWS}, 0 offen sc1"); a("s_mov_b64 exec, -1")
        a(f"s_mov_b32 s61, {FAST}")
    a(f"v_lshrrev_b32 {VF}, 3, {LANE}"); a(f"v_lshlrev_b32 {VF}, 5, {VF}"); a(f"v_and_b32 v{T[1]}, 7, {LANE}"); a(f"v_lshl_add_u32 {VF}, v{T[1]}, 1, {VF}")
    a("s_movk_i32 s62, 0x1000")
    if qsleep: a(f"s_sleep {qsleep}")
    a(f"s_mov_b32 {CNT}, 0x8000")
    a.label("L_pq")
    for i in range(8): a(f"buffer_load_dwordx4 {v4(WQ[i])}, {VL}, {sWS}, {'0' if i < 4 else 's62'} offen offset:{(i & 3) * 1024} sc1")
    for i in range(8):
        a(f"s_waitcnt vmcnt({7-i})")
        a(f"v_bitop3_b32 v{T[1]}, v{WQ[i]+1}, v{WQ[i]+3}, {EP1} bitop3:0x7e")
        a(f"v_mov_b32 v{T[0]}, v{T[1]}" if i == 0 else f"v_or_b32 v{T[0]}, v{T[0]}, v{T[1]}")
    a(f"v_cmp_ne_u32 vcc, 0, v{T[0]}")
    a("s_cbranch_vccz L_pq_ok")
    a(f"s_sub_u32 {CNT}, {CNT}, 1"); a(f"s_cmp_lg_u32 {CNT}, 0"); a("s_cbranch_scc1 L_pq")
    a.label("L_pq_ok")
    if diag and "polls" in names:
        i = names.index("polls"); a(f"s_sub_u32 s{80+2*i}, 0x8001, {CNT}")
    for i in range(1, 8):
        a(f"v_add_f32 v{WQ[0]}, v{WQ[0]}, v{WQ[i]}"); a(f"v_add_f32 v{WQ[0]+2}, v{WQ[0]+2}, v{WQ[i]+2}")
    a(f"v_cvt_pk_bf16_f32 v{WQ[0]}, v{WQ[0]}, v{WQ[0]+2}")
    a(f"ds_write_b16 {VF}, v{WQ[0]} offset:{L_Q}"); a(f"ds_write_b16_d16_hi {VF}, v{WQ[0]} offset:{L_Q + 16}")
    a("s_waitcnt lgkmcnt(0)")
    if adapt:
        a(f"v_mov_b32 v{T[0]}, {adapt[3]}"); a(f"v_mov_b32 v{T[1]}, 0"); a(f"ds_write_b32 v{T[1]}, v{T[0]} offset:{L_ROLE+8}")
        a("s_waitcnt lgkmcnt(0)")
    stamp("qgot")
    a("s_barrier")
    a(f"v_mov_b32 v{T[0]}, {VKV}")
    if codepf: codetouch()
    if pads:
        a("s_mov_b64 exec, 0"); a("s_cbranch_execz P_pub_0")
        a.label("L_warm1")
        a(f"s_cmp_lt_u32 {RID}, 144"); a("s_cbranch_scc1 P_ffn_0")
        a(f"s_cmp_lt_u32 {RID}, 216"); a("s_cbranch_scc1 P_wo_0")
        a("s_branch P_red_0")
        a.label("L_warm2")
        a("s_mov_b64 exec, -1")
    a(f"s_lshl_b32 s3, {HEAD}, 3"); a(f"s_add_u32 s3, s3, {SPLIT}")
    a(f"s_lshl_b32 s62, s3, 9"); a(f"s_add_u32 s62, s62, {O1}"); a(f"v_add_u32 {VW}, s62, v{T[0]}")
    a("s_lshl_b32 s62, s3, 4"); a(f"s_add_u32 s62, s62, {ML}"); a(f"v_writelane_b32 {VW}, s62, 32")
    a(f"v_and_b32 {VKV}, 0x1f0, v{T[0]}"); a(f"v_lshrrev_b32 v{T[1]}, 5, {LANE}"); a(f"v_lshl_add_u32 {VKV}, v{T[1]}, 11, {VKV}")
    HT = [Q, B[0], B[1]]
    def half_sum():
        for r in range(4): a(f"v_mov_b32 v{T[r]}, v{D+r}")
        for r in range(4): a(f"v_permlane32_swap_b32 v{D+r}, v{T[r]}")
        for r in range(4): a(f"v_add_f32 v{D+r}, v{D+r}, v{T[r]}")
    a("s_barrier")
    if dyn:
        a(f"v_mov_b32 {VL}, 1"); a(f"v_mov_b32 {VF}, 0")
        a("s_mov_b64 exec, 1")
        a(f"buffer_atomic_add {VL}, {VF}, s[96:99], 0 offen sc0 sc1")
        a("s_mov_b64 exec, -1")
    if adapt:
        a("s_lshr_b32 s3, s2, 3"); a("s_lshl_b32 s3, s3, 7"); a(f"s_add_u32 s72, s3, {KD}")
        a("s_and_b32 s73, s2, 7"); a("s_lshl_b32 s3, s73, 2")
        a(f"v_mov_b32 v{S+4}, {EP1}"); a(f"v_mov_b32 v{S+5}, s3"); a(f"v_lshlrev_b32 v{S+6}, 2, {LANE}")
        a("s_mov_b64 exec, 0xff"); a(f"buffer_load_dword v{S+7}, v{S+6}, {sWS}, s72 offen sc1")
        a("s_mov_b64 exec, 1"); a(f"buffer_store_dword v{S+4}, v{S+5}, {sWS}, s72 offen sc1")
        a("s_mov_b64 exec, 0xff"); a("s_waitcnt vmcnt(1)")
        a(f"v_cmp_eq_u32 vcc, {EP1}, v{S+7}"); a("s_mov_b64 exec, -1")
        a("s_bcnt1_i32_b32 s3, vcc_lo")
        a(f"v_mov_b32 v{S+4}, s3"); a(f"v_mov_b32 v{S+5}, 0"); a(f"ds_write_b32 v{S+5}, v{S+4} offset:{L_ROLE+8}")
    if fast1:
        a("s_and_b32 s3, s2, 7"); a("s_lshl_b32 s3, s3, 7"); a(f"s_add_u32 s3, s3, {XC}")
        a(f"v_and_b32 v{S}, 31, {LANE}"); a(f"v_lshlrev_b32 v{S}, 2, v{S}")
        a(f"buffer_load_dword v{S}, v{S}, {sWS}, s3 offen sc1")
    wgmax(VM)
    if dyn:
        a("s_waitcnt vmcnt(0)")
        stamp("claim")
        a(f"v_readfirstlane_b32 {RID}, {VL}")
        a("s_mov_b64 exec, 1"); a(f"ds_write_b32 {VF}, {VL} offset:{L_ROLE}"); a("s_mov_b64 exec, -1")
        role_setup()
        a("s_waitcnt lgkmcnt(0)")
    if fast1:
        a("s_waitcnt vmcnt(0)")
        a(f"s_lshl_b32 s3, {EP1}, 4"); a("s_or_b32 s3, s3, s78")
        a(f"v_cmp_ne_u32 vcc, s3, v{S}")
        a("s_cmp_eq_u32 vcc_lo, 0"); a(f"s_cselect_b32 s3, {FAST}, 0")
        a(f"v_mov_b32 v{T[0]}, s3"); a(f"v_mov_b32 {VF}, 0"); a(f"ds_write_b32 {VF}, v{T[0]} offset:{L_ROLE+4}")
        a("s_waitcnt lgkmcnt(0)")
    a(f"v_mov_b32 {VF}, 0")
    a.mark("chain", "P_pub", "L_warm1")
    a("s_barrier")
    a(f"ds_read_b128 {v4(F[0])}, {VF} offset:{L_LW}"); a(f"ds_read_b128 {v4(F[1])}, {VF} offset:{L_LW+16}")
    stamp("b3")
    sum_parts(VKV, D, HT, 4, 512)
    for r in range(4): a(f"v_add_f32 v{F[0]+r}, v{F[0]+r}, v{F[1]+r}")
    half_sum()
    a(f"v_add_f32 v{F[0]}, v{F[0]}, v{F[0]+1}"); a(f"v_add_f32 v{F[0]+2}, v{F[0]+2}, v{F[0]+3}")
    a("s_mov_b32 exec_lo, 0"); a("s_mov_b32 exec_hi, 1")
    a(f"v_add_f32 v{D+1}, v{F[0]}, v{F[0]+2}"); a(f"v_mov_b32 v{D}, {VM}"); a(f"v_mov_b32 v{D+2}, {VM}"); a(f"v_mov_b32 v{D+3}, {VM}")
    a("s_mov_b32 exec_lo, -1")
    for i in range(4): a(f"v_and_or_b32 v{D+i}, v{D+i}, {TMASK}, {VTAG}")
    if fast1: a(f"buffer_store_dwordx4 {v4(D)}, {VW}, {sWS}, s61 offen")
    a(f"buffer_store_dwordx4 {v4(D)}, {VW}, {sWS}, 0 offen sc1")
    stamp("ostore")
    a("s_mov_b64 exec, -1")
    a("s_barrier")
    a("s_setprio 0")

    a.label("L_tail")
    stamp("tail")
    a(f"s_cmp_lt_u32 {RID}, 144"); a("s_cbranch_scc1 L_ffn")
    a(f"s_cmp_lt_u32 {RID}, 216"); a("s_cbranch_scc1 L_wo")
    if t2 == "red":
        a("s_and_b32 s3, s2, 7"); a(f"s_mul_i32 s3, s3, {576*1152}")
        a("s_lshr_b32 s62, s2, 3"); a("s_sub_u32 s62, s62, 27"); a(f"s_mul_i32 s62, s62, {1037*128}")
        a(f"s_sub_u32 s42, {576*1152}, s62"); a(f"s_min_u32 s42, s42, {1037*128}"); a("s_add_u32 s3, s3, s62")
        a("s_add_u32 s40, s20, s3"); a("s_addc_u32 s41, s21, 0")
        a(f"s_lshl_b32 s3, {WAVE}, 14"); a(f"v_lshl_add_u32 v{T[0]}, {LANE}, 7, s3"); a("s_movk_i32 s3, 0x2000")
        a(f"buffer_load_dword v{S+14}, v{T[0]}, s[40:43], 0 offen"); a(f"buffer_load_dword v{S+15}, v{T[0]}, s[40:43], s3 offen")
    a(f"s_cmp_lt_u32 {RID}, 252"); a("s_cbranch_scc1 L_red")
    a("s_branch L_done")
    a.mark("end")

    a.label("L_wo")
    a.mark("chain", "P_wo", "L_warm2")
    a(f"s_cmp_eq_u32 {WAVE}, 8"); a("s_cbranch_scc1 L_wo_pub")
    OA, OB, MLr = F[0], F[1], F[2]
    for i in range(EW, 8):
        if i - EW >= Ww: a(f"s_waitcnt vmcnt({Ww-1})")
        gload(i, G[i])
    a(f"s_and_b32 s3, {RID}, 7"); a("s_lshl_b32 s3, s3, 2"); a(f"s_lshr_b32 s62, {WAVE}, 1"); a("s_add_u32 s3, s3, s62")
    a(f"s_lshl_b32 s62, s3, 12"); a(f"s_and_b32 s60, {WAVE}, 1"); a("s_lshl_b32 s60, s60, 8"); a("s_add_u32 s62, s62, s60")
    a(f"s_add_u32 s62, s62, {O1}")
    a(f"v_lshrrev_b32 v{T[4]}, 4, {LANE}"); a(f"v_and_b32 v{T[5]}, 15, {LANE}")
    a(f"v_lshlrev_b32 {VKV}, 9, v{T[4]}"); a(f"v_lshl_add_u32 {VKV}, v{T[5]}, 4, {VKV}"); a(f"v_add_u32 {VKV}, s62, {VKV}")
    a("s_lshl_b32 s62, s3, 7"); a(f"s_add_u32 s62, s62, {ML}")
    a(f"v_bfe_u32 v{T[6]}, {LANE}, 3, 1"); a(f"v_lshl_add_u32 v{T[6]}, v{T[6]}, 2, v{T[4]}")
    a(f"v_lshlrev_b32 {VW}, 4, v{T[6]}"); a(f"v_add_u32 {VW}, s62, {VW}")
    part_addr(VM, True)
    a("s_mov_b32 s74, 0xff00ff00"); a("s_mov_b32 s75, 0xff00ff00")
    ld1 = lambda i, r: (f"buffer_load_dwordx4 {v4(r)}, {VW}, {sWS}, s61 offen sc1",
                        f"buffer_load_dwordx4 {v4(r)}, {VKV}, {sWS}, s61 offen sc1",
                        f"buffer_load_dwordx4 {v4(r)}, {VKV}, {sWS}, s61 offen offset:2048 sc1")[i]
    ppoll("L_p1", ld1, [MLr, OA, OB], [F[3+3*k:6+3*k] for k in range(PD1)])
    stamp("got")
    m1, l1, m2, l2, M, t = (f"v{T[i]}" for i in range(6))
    m1, l1 = f"v{MLr}", f"v{MLr+1}"
    a(f"v_mov_b32_dpp {m2}, {m1} row_ror:8 row_mask:0xf bank_mask:0xf"); a(f"v_mov_b32_dpp {l2}, {l1} row_ror:8 row_mask:0xf bank_mask:0xf")
    a(f"v_max_f32 {M}, {m1}, {m2}"); allred_rows(M, t, "v_max_f32")
    a(f"v_sub_f32 {m1}, {m1}, {M}"); a(f"v_sub_f32 {m2}, {m2}, {M}")
    a(f"v_mul_f32 {m1}, {LOG2E}, {m1}"); a(f"v_mul_f32 {m2}, {LOG2E}, {m2}")
    a(f"v_exp_f32 {m1}, {m1}"); a(f"v_exp_f32 {m2}, {m2}")
    a(f"v_mul_f32 {l1}, {l1}, {m1}"); a(f"v_fmac_f32 {l1}, {l2}, {m2}")
    a(f"v_cndmask_b32 {l2}, {m1}, {m2}, s[74:75]"); a(f"v_cndmask_b32 {m2}, {m2}, {m1}, s[74:75]")
    for i in range(4): a(f"v_mul_f32 v{OA+i}, v{OA+i}, {l2}")
    for i in range(4): a(f"v_fmac_f32 v{OA+i}, v{OB+i}, {m2}")
    allred_rows(l1, t)
    rows_scatter(*(f"v{OA+i}" for i in range(4)))
    a(f"v_rcp_f32 {l1}, {l1}")
    a(f"v_mul_f32 v{OA}, v{OA}, {l1}")
    a(f"v_cvt_pk_bf16_f32 v{OA}, v{OA}, v{OA}")
    mfma_chain(8, bcast_src(f"v{OA}"), lambda t: G[t])
    setexec(TWO)
    a(f"ds_write_b128 {VM}, {v4(D)}")
    a("s_waitcnt lgkmcnt(0)"); a("s_barrier")
    a("s_branch L_done")
    a.label("L_wo_pub")
    a(f"s_and_b32 s3, {RID}, 7"); a("s_lshl_b32 s3, s3, 8"); a(f"s_lshl_b32 s62, {ROLE}, 11"); a("s_add_u32 s3, s3, s62"); a(f"s_add_u32 s3, s3, {Z2R if rep2 else Z2}")
    a(f"v_lshrrev_b32 v{T[4]}, 4, {LANE}"); a(f"v_and_b32 v{T[5]}, 15, {LANE}"); a(f"v_lshlrev_b32 v{T[5]}, 4, v{T[5]}")
    a(f"v_lshl_add_u32 {VKV}, v{T[4]}, 10, v{T[5]}")
    a(f"v_lshl_add_u32 {VW}, v{T[4]}, {15 if rep2 else 2}, v{T[5]}"); a(f"v_add_u32 {VW}, s3, {VW}")
    a(f"s_mov_b32 s62, {4*Z2S}")
    a("s_barrier")
    sum_parts(VKV, D, HT, 4, 256)
    if rep2:
        for sw in ("32", "16"):
            for r in range(4): a(f"v_mov_b32 v{T[r]}, v{D+r}")
            for r in range(4): a(f"v_permlane{sw}_swap_b32 v{D+r}, v{T[r]}")
            for r in range(4): a(f"v_add_f32 v{D+r}, v{D+r}, v{T[r]}")
        for r in range(4): a(f"v_and_or_b32 v{D+r}, v{D+r}, {TMASK}, {VTAG}")
        a(f"buffer_store_dwordx4 {v4(D)}, {VW}, {sWS}, 0 offen sc1")
        a(f"buffer_store_dwordx4 {v4(D)}, {VW}, {sWS}, s62 offen sc1")
    elif pub2x4:
        for sw in ("32", "16"):
            for r in range(4): a(f"v_permlane{sw}_swap_b32 v{D+r}, v{T[r]}")
            for r in range(4): a(f"v_add_f32 v{D+r}, v{D+r}, v{T[r]}")
        a("s_mov_b64 exec, 0xffff")
        for r in range(4): a(f"v_and_or_b32 v{D+r}, v{D+r}, {TMASK}, {VTAG}")
        a(f"buffer_store_dwordx4 {v4(D)}, {VW}, {sWS}, 0 offen sc1")
    else:
        rows_scatter(*(f"v{D+i}" for i in range(4)))
        a(f"v_and_or_b32 v{D}, v{D}, {TMASK}, {VTAG}")
        a(f"buffer_store_dword v{D}, {VW}, {sWS}, 0 offen sc1")
    stamp("pub")
    a("s_branch L_done")

    a.mark("end")
    a.label("L_ffn")
    a.mark("chain", "P_ffn", "L_warm2")
    W13 = F[0:9]; ZA, ZB = F[9], F[10]; HX = F[11]
    AD = f"v[{HX}:{HX+1}]"
    a(f"s_mov_b32 s54, {32*1152}")
    if w2mode == "first":
        for i in range(4): gload(i, G[i])
    a(f"s_cmp_eq_u32 {WAVE}, 8"); a("s_cbranch_scc1 L_ffn_now13")
    a(f"v_lshrrev_b32 v{T[4]}, 3, {LANE}"); a(f"v_mul_u32_u24 v{T[4]}, 9, v{T[4]}")
    a(f"s_mul_i32 s3, {WAVE}, 72"); a(f"v_add_u32 {VF}, s3, v{T[4]}")
    a(f"v_mul_u32_u24 v{T[4]}, 9216, {VF}")
    a(f"v_and_b32 v{T[5]}, 3, {LANE}"); a(f"v_lshl_add_u32 v{T[4]}, v{T[5]}, 4, v{T[4]}")
    a(f"s_lshl_b32 s3, {ROLE}, 6"); a(f"v_add_u32 v{T[4]}, s3, v{T[4]}")
    a("s_mov_b32 s74, 0xf0f0f0f0"); a("s_mov_b32 s75, 0xf0f0f0f0")
    a(f"v_mov_b32 v{HX}, s16"); a(f"v_mov_b32 v{HX+1}, s17"); a(f"v_mov_b32 v{HX+2}, s18"); a(f"v_mov_b32 v{HX+3}, s19")
    a(f"v_cndmask_b32 v{HX}, v{HX}, v{HX+2}, s[74:75]"); a(f"v_cndmask_b32 v{HX+1}, v{HX+1}, v{HX+3}, s[74:75]")
    a(f"v_add_co_u32 v{HX}, vcc, v{HX}, v{T[4]}"); a(f"v_addc_co_u32 v{HX+1}, vcc, 0, v{HX+1}, vcc")
    a("s_movk_i32 s72, 9216"); a("s_mov_b32 s73, 0")
    for tt in range(9):
        if tt >= Ww: a(f"s_waitcnt vmcnt({Ww-1})")
        if not now13: a(f"global_load_dwordx4 {v4(W13[tt])}, {AD}, off {wpol}")
        if tt < 8: a(f"v_lshl_add_u64 {AD}, s[72:73], 0, {AD}")
    a(f"v_lshlrev_b32 {VF}, 2, {VF}"); a(f"v_add_u32 {VF}, {L_H}, {VF}")
    a.label("L_ffn_now13")
    if w2mode == "after":
        for i in range(4): gload(i, G[i])
    a(f"v_lshrrev_b32 v{T[4]}, 4, {LANE}"); a(f"v_and_b32 v{T[5]}, 15, {LANE}")
    def z2base():
        if rep2: a("s_and_b32 s62, s2, 7"); a("s_lshl_b32 s62, s62, 15"); a("s_add_u32 s3, s3, s62")
        a(f"s_add_u32 s3, s3, {Z2R if rep2 else Z2}")
    a(f"s_lshl_b32 s3, {WAVE}, 11"); z2base()
    a(f"v_lshlrev_b32 {VKV}, 8, v{T[4]}"); a(f"v_lshl_add_u32 {VKV}, v{T[5]}, 4, {VKV}"); a(f"v_add_u32 {VKV}, s3, {VKV}")
    a(f"v_bfe_u32 {VL}, {LANE}, 3, 1"); a(f"v_lshlrev_b32 {VL}, 2, {VL}"); a(f"v_add_u32 {VL}, {VL}, v{T[4]}")
    a(f"v_and_b32 v{T[6]}, 7, {LANE}"); a(f"v_lshl_add_u32 {VL}, {VL}, 3, v{T[6]}")
    a(f"s_lshl_b32 s3, {WAVE}, 6"); a(f"v_add_u32 {VL}, s3, {VL}")
    a(f"v_lshlrev_b32 v{T[6]}, 1, {VL}"); a(f"v_lshlrev_b32 {VL}, 2, {VL}")
    a(f"buffer_load_ushort v{HX+2}, v{T[6]}, {sX}, 0 offen")
    part_addr(VM, True)
    a(f"v_bfe_u32 {VW}, {LANE}, 4, 1"); a(f"v_lshlrev_b32 {VW}, 2, {VW}"); a(f"s_lshl_b32 s3, {WAVE}, 3"); a(f"v_add_u32 {VW}, s3, {VW}")
    VR, VO = f"v{S+1}", f"v{S+2}"
    a(f"v_lshrrev_b32 v{T[4]}, 4, {LANE}"); a(f"v_and_b32 v{T[5]}, 15, {LANE}"); a(f"v_lshlrev_b32 v{T[5]}, 4, v{T[5]}")
    a(f"v_lshl_add_u32 {VR}, v{T[4]}, 10, v{T[5]}")
    a(f"s_mul_i32 s3, {ROLE}, 2304"); a(f"s_lshl_b32 s62, {WAVE}, 8"); a("s_add_u32 s3, s3, s62"); a(f"s_add_u32 s3, s3, {P3}")
    a(f"v_lshlrev_b32 {VO}, 7, v{T[4]}"); a(f"v_and_b32 v{T[6]}, 7, {LANE}")
    a(f"v_lshl_add_u32 {VO}, v{T[6]}, 4, {VO}"); a(f"v_add_u32 {VO}, s3, {VO}")
    a("s_mov_b32 s74, 0xff00ff00"); a("s_mov_b32 s75, 0xff00ff00")
    a(f"v_and_b32 v{S+3}, 15, {LANE}"); a(f"v_lshlrev_b32 v{S+3}, 3, v{S+3}")
    if SD2:
        if diag and "wts" in names: a("s_waitcnt vmcnt(0)"); stamp("wts")
        a(f"s_lshl_b32 s3, {WAVE}, 11"); z2base()
        a(f"v_lshl_add_u32 v{S+4}, {LANE}, 7, s3")
        spoll("L_s2", f"v{S+4}", [S + 5 + k for k in range(SD2)], 0xffff, SP2)
    ld2 = lambda i, r: f"buffer_load_dwordx4 {v4(r)}, {VKV}, {sWS}, 0 offen offset:{1024*i} sc1"
    ppoll("L_p2", ld2, [ZA, ZB], [F[12+2*k:14+2*k] for k in range(PD2)], sleep2)
    stamp("got")
    for i in range(4): a(f"v_add_f32 v{ZA+i}, v{ZA+i}, v{ZB+i}")
    a(f"v_lshlrev_b32 v{HX+2}, 16, v{HX+2}")
    rows_scatter(*(f"v{ZA+i}" for i in range(4)))
    h = f"v{ZA}"; h2 = f"v{ZA+1}"
    rbf(h, h); a(f"v_add_f32 {h}, {h}, v{HX+2}"); rbf(h, h)
    a(f"ds_write_b32 {VL}, {h} offset:{L_H}")
    a(f"v_mul_f32 {h2}, {h}, {h}")
    allred16([h, h2])
    a(f"v_permlane16_swap_b32 {h}, {h2}"); a(f"v_add_f32 {h}, {h}, {h2}")
    a(f"v_mov_b32 {h2}, {h}"); a(f"v_permlane32_swap_b32 {h}, {h2}"); a(f"v_add_f32 {h}, {h}, {h2}")
    a("s_mov_b64 exec, 0x00010001")
    a(f"ds_write_b32 {VW}, {h} offset:{L_ST}")
    a("s_mov_b64 exec, -1")
    a("s_waitcnt lgkmcnt(0)"); a("s_barrier")
    stamp("b5")
    if w2mode == "late":
        for i in range(4): gload(i, G[i])
    a(f"s_cmp_eq_u32 {WAVE}, 8"); a("s_cbranch_scc1 L_ffn_b6")
    HV = [ZA + i for i in range(4)] + [ZB + i for i in range(4)] + [HX]
    a(f"ds_read_b64 v[{T[0]}:{T[1]}], v{S+3} offset:{L_ST}")
    for i in range(4): a(f"ds_read2_b32 v[{HV[2*i]}:{HV[2*i+1]}], {VF} offset0:{2*i} offset1:{2*i+1}")
    a(f"ds_read_b32 v{HV[8]}, {VF} offset:32")
    mu, var = f"v{T[0]}", f"v{T[1]}"
    a("s_waitcnt lgkmcnt(5)")
    allred16([mu, var])
    a(f"v_mul_f32 {mu}, {f32(1/576)}, {mu}"); a(f"v_mul_f32 {var}, {f32(1/576)}, {var}")
    a(f"v_fma_f32 {var}, -{mu}, {mu}, {var}"); a(f"v_max_f32 {var}, 0, {var}")
    rbf(mu, mu); rbf(var, var)
    a(f"v_add_f32 {var}, {f32(1e-5)}, {var}"); rbf(var, var)
    a(f"v_sqrt_f32 {var}, {var}"); rbf(var, var)
    a(f"v_rcp_f32 {var}, {var}")
    a(f"v_mul_f32 {mu}, {mu}, {var}")
    a("s_waitcnt lgkmcnt(0)")
    def hsrc(t):
        a(f"v_fma_f32 v{HV[t]}, v{HV[t]}, {var}, -{mu}"); a(f"v_cvt_pk_bf16_f32 v{HV[t]}, v{HV[t]}, v{HV[t]}")
    hsrc.reg = lambda t: f"v{HV[t]}"
    mfma_chain(9, hsrc, lambda t: W13[t])
    setexec(TWO)
    a(f"ds_write_b128 {VM}, {v4(D)}")
    a("s_mov_b64 exec, -1")
    a.label("L_ffn_b6")
    a("s_waitcnt lgkmcnt(0)"); a("s_barrier")
    stamp("b6")
    sum_parts(VR, ZA, [ZB, Q, HX], 4, 256)
    rows_scatter(*(f"v{ZA+i}" for i in range(4)))
    e = [f"v{T[i]}" for i in range(4)]
    g, u, ot = f"v{ZA}", f"v{ZA+1}", f"v{ZA+2}"
    rbf(g, g)
    a(f"v_mov_b32_dpp {ot}, {g} row_ror:8 row_mask:0xf bank_mask:0xf")
    a(f"v_cndmask_b32 {u}, {ot}, {g}, s[74:75]"); a(f"v_cndmask_b32 {g}, {g}, {ot}, s[74:75]")
    a(f"v_mul_f32 {ot}, {f32(-1.4426950408889634)}, {g}"); a(f"v_exp_f32 {ot}, {ot}")
    a(f"v_add_f32 {ot}, 1.0, {ot}"); a(f"v_rcp_f32 {ot}, {ot}"); a(f"v_mul_f32 {g}, {g}, {ot}")
    rbf(g, g); a(f"v_mul_f32 {g}, {g}, {u}")
    a(f"v_cvt_pk_bf16_f32 {g}, {g}, {g}")
    mfma_chain(4, bcast_src(g), lambda t: G[t], pre=(lambda t: a(f"s_waitcnt vmcnt({3-t})")) if w2mode == "late" else None)
    for r in range(4): a(f"v_permlane32_swap_b32 v{D+r}, {e[r]}")
    for r in range(4): dpp("v_add_f32", f"v{D+r}", e[r], f"v{D+r}", "row_ror:8")
    for r in range(4): a(f"v_and_or_b32 v{D+r}, v{D+r}, {TMASK}, {VTAG}")
    a("s_mov_b64 exec, 0x00ff00ff")
    a(f"buffer_store_dwordx4 {v4(D)}, {VO}, {sWS}, 0 offen sc1")
    stamp("pub")
    a("s_branch L_done")

    a.mark("end")
    a.label("L_red")
    a.mark("chain", "P_red", "L_warm2")
    PA_, HH = F[0], F[1]
    a(f"s_sub_u32 {ROLE}, {RID}, 216")
    a(f"v_and_b32 v{T[4]}, 3, {LANE}"); a(f"v_lshrrev_b32 v{T[5]}, 4, {LANE}")
    a(f"s_lshr_b32 s3, {ROLE}, 1"); a("s_lshl_b32 s3, s3, 5"); a(f"s_and_b32 s62, {ROLE}, 1"); a("s_lshl_b32 s62, s62, 2"); a("s_add_u32 s3, s3, s62")
    a(f"v_lshl_add_u32 {VL}, v{T[5]}, 3, v{T[4]}"); a(f"v_add_u32 {VL}, s3, {VL}"); a(f"v_lshlrev_b32 {VL}, 1, {VL}")
    a(f"v_lshl_add_u32 {VF}, v{T[5]}, 2, v{T[4]}"); a(f"v_mul_u32_u24 {VF}, 48, {VF}")
    a(f"s_lshl_b32 s3, {WAVE}, 2"); a(f"v_add_u32 {VM}, s3, {VF}")
    a(f"s_cmp_lg_u32 {WAVE}, 0"); a("s_cbranch_scc1 L_red_h3")
    a(f"buffer_load_ushort v{Q}, {VL}, {sX}, 0 offen")
    a(f"s_lshr_b32 s62, {ROLE}, 2"); a("s_lshl_b32 s62, s62, 11"); a(f"s_and_b32 s3, {ROLE}, 3"); a("s_lshl_b32 s3, s3, 6")
    a("s_add_u32 s3, s3, s62"); z2base()
    a(f"v_bfe_u32 {VKV}, {LANE}, 2, 3"); a(f"v_lshlrev_b32 {VKV}, 8, {VKV}"); a(f"v_lshl_add_u32 {VKV}, v{T[4]}, 4, {VKV}")
    a(f"v_add_u32 {VKV}, s3, {VKV}")
    poll("L_p2r", [f"buffer_load_dwordx4 {v4(HH)}, {VKV}, {sWS}, 0 offen sc1"], [HH], 2)
    hv = [f"v{HH+i}" for i in range(4)]
    for i in range(4): a(f"v_and_b32 {hv[i]}, {TMASK}, {hv[i]}")
    rows_scatter(*hv)
    allred16(hv[:1], steps=(4, 8))
    a(f"v_mul_f32 {hv[0]}, 0.5, {hv[0]}")
    rbf(hv[0], hv[0]); a(f"v_lshlrev_b32 v{Q}, 16, v{Q}"); a(f"v_add_f32 {hv[0]}, {hv[0]}, v{Q}"); rbf(hv[0], hv[0])
    stamp("got")
    a.label("L_red_h3")
    a(f"v_lshrrev_b32 {VW}, 2, {LANE}"); a(f"s_lshl_b32 s3, {WAVE}, 4"); a(f"v_add_u32 {VW}, s3, {VW}")
    a(f"v_mul_u32_u24 {VW}, 2304, {VW}"); a(f"v_lshl_add_u32 {VW}, v{T[4]}, 4, {VW}")
    a(f"s_lshl_b32 s3, {ROLE}, 6"); a(f"s_add_u32 s3, s3, {P3}"); a(f"v_add_u32 {VW}, s3, {VW}")
    ppoll("L_p3", lambda i, r: f"buffer_load_dwordx4 {v4(r)}, {VW}, {sWS}, 0 offen sc1", [PA_], [[F[2+k]] for k in range(PD3)], sleep3, SP3)
    stamp("pub")
    pv = [f"v{PA_+i}" for i in range(4)]
    rows_scatter(*pv)
    allred16(pv[:1], steps=(4, 8))
    setexec(0x000F000F000F000F)
    a(f"ds_write_b32 {VM}, {pv[0]} offset:{L_P}")
    a("s_waitcnt lgkmcnt(0)"); a("s_barrier")
    a(f"s_cmp_lg_u32 {WAVE}, 0"); a("s_cbranch_scc1 L_done")
    a(f"ds_read_b128 {v4(PA_)}, {VF} offset:{L_P}"); a(f"ds_read_b128 {v4(B[0])}, {VF} offset:{L_P+16}"); a(f"ds_read_b32 v{B[1]}, {VF} offset:{L_P+32}")
    a("s_waitcnt lgkmcnt(1)")
    for i in range(4): a(f"v_add_f32 {pv[i]}, {pv[i]}, v{B[0]+i}")
    a(f"v_add_f32 {pv[0]}, {pv[0]}, {pv[1]}"); a(f"v_add_f32 {pv[2]}, {pv[2]}, {pv[3]}")
    a("s_waitcnt lgkmcnt(0)")
    a(f"v_add_f32 {pv[0]}, {pv[0]}, v{B[1]}"); a(f"v_add_f32 {pv[0]}, {pv[0]}, {pv[2]}")
    rbf(pv[0], pv[0]); a(f"v_add_f32 {pv[0]}, {pv[0]}, {hv[0]}")
    a(f"v_cvt_pk_bf16_f32 {pv[0]}, {pv[0]}, {pv[0]}")
    a(f"buffer_store_short {pv[0]}, {VL}, {sOUT}, 0 offen")
    a(f"s_cmp_lg_u32 {ROLE}, 0"); a("s_cbranch_scc1 L_done")
    a("s_mov_b64 exec, 1")
    a(f"v_mov_b32 v{T[0]}, {EP1}"); a(f"v_mov_b32 v{T[1]}, {EPOCH}")
    a(f"buffer_store_dword v{T[0]}, v{T[1]}, {sWS}, 0 offen")

    a.mark("end")
    a.label("L_done")
    if diag == 2:
        stamp("end")
        a("s_mov_b64 exec, 1"); a("s_waitcnt lgkmcnt(0)")
        a("s_mov_b32 s76, s24"); a("s_mov_b32 s77, s25"); a("s_movk_i32 s78, 256"); a("s_mov_b32 s79, 0x20000")
        a("s_not_b32 s3, s80"); a("v_mov_b32 v16, s3"); a("v_mov_b32 v17, 0")
        a("buffer_atomic_umax v16, v17, s[76:79], 0 offen sc1")
        a("v_mov_b32 v18, s80"); a("buffer_atomic_umax v18, v17, s[76:79], 0 offen offset:4 sc1")
        a("v_mov_b32 v19, s88"); a("buffer_atomic_umax v19, v17, s[76:79], 0 offen offset:8 sc1")
        a("v_mov_b32 v20, s94"); a("buffer_atomic_umax v20, v17, s[76:79], 0 offen offset:12 sc1")
        a(f"s_cmp_eq_u32 {WAVE}, 8"); a("s_cbranch_scc1 L_exit")
        a("v_mov_b32 v21, s82"); a("buffer_atomic_umax v21, v17, s[76:79], 0 offen offset:16 sc1")
        a("v_mov_b32 v22, s84"); a("buffer_atomic_umax v22, v17, s[76:79], 0 offen offset:20 sc1")
        a("v_mov_b32 v23, s86"); a("buffer_atomic_umax v23, v17, s[76:79], 0 offen offset:24 sc1")
    elif diag:
        stamp("end")
        a("s_mov_b64 exec, 1"); a("s_waitcnt lgkmcnt(0)")
        a(f"s_mul_i32 s3, {RID}, 9"); a(f"s_add_u32 s3, s3, {WAVE}"); a("s_lshl_b32 s3, s3, 5"); a(f"s_add_u32 s3, s3, {STAMP}")
        a("v_mov_b32 v28, s3")
        for i in range(8): a(f"v_mov_b32 v{16+i}, s{80+2*i}")
        a(f"buffer_store_dwordx4 v[16:19], v28, {sWS}, 0 offen"); a(f"buffer_store_dwordx4 v[20:23], v28, {sWS}, 0 offen offset:16")
    a.label("L_exit")
    a("s_endpgm")
    a.label("L_end")
    a.place_pads(pads)
    body = a.finalize()
    out = HEADER + "; Generated by gen.py: 256 workgroups (8 streaming waves + 1 helper wave), tagged hand-offs through d_ws.\n"
    if diag: out += "; stamps: " + " ".join(names) + "\n"
    out += "; @launch grid=(256,1,1) block=(576,1,1) lds=8192\n"
    out += '.amdgcn_target "amdgcn-amd-amdhsa--gfx950"\n.text\n' + f".globl {KNAME}\n.p2align 8\n.type {KNAME},@function\n"
    out += body
    out += f""".section .rodata,"a"
.p2align 6
.amdhsa_kernel {KNAME}
  .amdhsa_next_free_vgpr 168
  .amdhsa_next_free_sgpr 100
  .amdhsa_accum_offset 168
  .amdhsa_group_segment_fixed_size 0
  .amdhsa_kernarg_size 96
  .amdhsa_user_sgpr_count 2
  .amdhsa_user_sgpr_kernarg_segment_ptr 1
  .amdhsa_system_sgpr_workgroup_id_x 1
.end_amdhsa_kernel
"""
    return out

if __name__ == "__main__":
    kw = eval("dict(" + (sys.argv[2] if len(sys.argv) > 2 else "") + ")")
    open(sys.argv[1], "w").write(gen(**kw))
```

```python
import sys, struct
sys.path.insert(0, "work")
from asmlib import Asm

KNAME = "sequential_preLN__mha_block_cached__glu_gated_swiglu__decode_kernel"
HEADER = open("sequential_preLN__mha_block_cached__glu_gated_swiglu__decode.s.ref").read().split("; Override launch")[0]

def f32(x): return "0x%08x" % struct.unpack("<I", struct.pack("<f", x))[0]

EPOCH, O1, ML, Z2, P3, Q0, STAMP = 0, 0x10000, 0x30000, 0x32000, 0x40000, 0xa0000, 0x100000
Z2R, Z2S = 0x140000, 0x8000
KD = 0x3a000
XC, FAST = 0x38000, 0x200000
L_ST, L_MW, L_LW, L_Q, L_H, L_P = 0, 128, 160, 256, 512, 4096

def gen(Wn=4, nK=18, qsleep=28, EW=8, jB2=21, dyn=0, Ww=13, Wv=None, wqpol='nt', w2mode='first', tu=3, fast1=1, pads=0, now13=0, Walt=None, W0=0, n0=0, gate=None, w2at='end', f2lds=1, cyc=0, rmaj=1, fill=4, t2='red', SD2=0, SP2=2, SP3=0, adapt=None, jA=14, par=None, rep2=1, PD1=1, PD2=1, PD3=1, pub2x4=1, mpoll=1, tpos=0, pol="nt", wpol="", diag=0, codepf=2, sleep2=0, sleep3=0):
    a = Asm()
    LANE = "v0"; MASK = [4, 5, 6, 7]; Q = 8; D = 12; B = [16, 20]
    VKV, VW, VM, VL, VF, VG, VTAG = "v24", "v25", "v26", "v27", "v1", "v2", "v3"
    T = [28 + i for i in range(8)]
    S = 36
    SLOT0, NSLOT = 52, 29
    sK, sV, sWQ, sX, sWS, sG, sOUT = "s[32:35]", "s[36:39]", "s[40:43]", "s[44:47]", "s[48:51]", "s[52:55]", "s[56:59]"
    WAVE, HEAD, SPLIT, TAG = "s28", "s29", "s30", "s31"
    RID = "s79"; L_ROLE = 192
    assert not (dyn and EW)
    Wv = Wv or Wn
    if adapt: Wv = adapt[2]
    if par: Wn = Wv = max(par)
    SCALE, LOG2E, HI, TMASK, TLOW, ROLE, CNT, EP1 = "s64", "s65", "s66", "s67", "s68", "s69", "s70", "s71"
    v4 = lambda r: f"v[{r}:{r+3}]"
    stamps = []
    names = diag.split() if isinstance(diag, str) else ["start", "q", "kend", "vend", "tail", "got", "pub", "end"]
    def stamp(n):
        if diag and n in names:
            i = names.index(n); a(f"{'s_memtime' if cyc else 's_memrealtime'} s[{80+2*i}:{81+2*i}]")
    def rbf(dst, src):
        a(f"v_cvt_pk_bf16_f32 {dst}, {src}, {src}"); a(f"v_and_b32 {dst}, {HI}, {dst}")
    def dpp(op, d, s0, s1, ctl): a(f"{op}_dpp {d}, {s0}, {s1} {ctl} row_mask:0xf bank_mask:0xf")
    def allred16(regs, op="v_add_f32", steps=(8, 4, 2, 1)):
        for st in steps:
            for r in regs: dpp(op, r, r, r, f"row_ror:{st}")
    def allred_rows(r, t, op="v_add_f32"):
        a(f"v_mov_b32 {t}, {r}"); a(f"v_permlane16_swap_b32 {r}, {t}"); a(f"{op} {r}, {r}, {t}")
        a(f"v_mov_b32 {t}, {r}"); a(f"v_permlane32_swap_b32 {r}, {t}"); a(f"{op} {r}, {r}, {t}")
    def rows_scatter(r0, r1, r2, r3):
        a(f"v_permlane16_swap_b32 {r0}, {r1}"); a(f"v_permlane16_swap_b32 {r2}, {r3}")
        a(f"v_add_f32 {r0}, {r0}, {r1}"); a(f"v_add_f32 {r2}, {r2}, {r3}")
        a(f"v_permlane32_swap_b32 {r0}, {r2}"); a(f"v_add_f32 {r0}, {r0}, {r2}")
    def selector(b, src):
        for j in range(4): a(f"v_and_b32 v{b+j}, {src}, v{MASK[j]}")
    def mfma(A_, B_, first=False, dst=None):
        d = v4(D if dst is None else dst)
        a(f"v_mfma_f32_16x16x32_bf16 {d}, {v4(A_)}, {v4(B_)}, {'0' if first else d}")
    def setexec(m):
        a(f"s_mov_b32 exec_lo, {hex(m & 0xffffffff)}"); a(f"s_mov_b32 exec_hi, {hex(m >> 32)}")
    def tagcheck(quads, t0, t1, t2):
        tmp = []
        first = True
        for qd in quads:
            a(f"v_bitop3_b32 {t1}, v{qd}, v{qd+1}, {TAG} bitop3:0x7e")
            a(f"v_bitop3_b32 {t2}, v{qd+2}, v{qd+3}, {TAG} bitop3:0x7e")
            if first: a(f"v_or_b32 {t0}, {t1}, {t2}"); first = False
            else: a(f"v_or3_b32 {t0}, {t0}, {t1}, {t2}")
        a(f"v_and_b32 {t0}, {TLOW}, {t0}")
        a(f"v_cmp_ne_u32 vcc, 0, {t0}")
    def poll(name, loads, quads, sleep):
        if diag and "wts" in names and name in ("L_p1", "L_p2"): a("s_waitcnt vmcnt(0)"); stamp("wts")
        a.mark("force")
        a(f"s_mov_b32 {CNT}, 0x8000")
        a.mark("nopad", 1)
        n = len(loads)
        if not mpoll:
            a.label(name)
            for l in loads: a(l)
            a("s_waitcnt vmcnt(0)")
            tagcheck(quads, f"v{T[0]}", f"v{T[1]}", f"v{T[2]}")
            a(f"s_cbranch_vccz {name}_ok")
            if sleep: a(f"s_sleep {sleep}")
        else:
            M = [f"s[{4+2*i}:{5+2*i}]" for i in range(n)]
            for m in M: a(f"s_mov_b64 {m}, -1")
            a.label(name)
            for m, l in zip(M, loads):
                if n > 1: a(f"s_mov_b64 exec, {m}")
                a(l)
            for i, (m, qd) in enumerate(zip(M, quads)):
                if n > 1: a(f"s_mov_b64 exec, {m}")
                if i == 0: a("s_waitcnt vmcnt(0)")
                a(f"v_bitop3_b32 v{T[1]}, v{qd}, v{qd+1}, {TAG} bitop3:0x7e")
                a(f"v_bitop3_b32 v{T[2]}, v{qd+2}, v{qd+3}, {TAG} bitop3:0x7e")
                a(f"v_bitop3_b32 v{T[1]}, v{T[1]}, v{T[2]}, {TLOW} bitop3:0xa8")
                a(f"v_cmp_ne_u32 {m}, 0, v{T[1]}")
            if n == 1:
                a(f"s_and_b64 exec, {M[0]}, {M[0]}")
            else:
                a(f"s_or_b64 vcc, {M[0]}, {M[1]}")
                if n == 3: a(f"s_or_b64 vcc, vcc, {M[2]}")
            a(f"s_cbranch_scc0 {name}_ok")
            if sleep: a(f"s_sleep {sleep}")
        a(f"s_sub_u32 {CNT}, {CNT}, 1"); a(f"s_cmp_lg_u32 {CNT}, 0"); a(f"s_cbranch_scc1 {name}")
        a.label(name + "_ok")
        if mpoll: a("s_mov_b64 exec, -1")
        a.mark("nopad", 0)
        if diag and "polls" in names and name in ("L_p1", "L_p2", "L_p3"):
            i = names.index("polls"); a(f"s_sub_u32 s{80+2*i}, 0x8001, {CNT}")
    def ppoll(name, load, canon, bufs, sleep=0, space=0, first=None):
        if diag and "wts" in names and name == "L_p1": a("s_waitcnt vmcnt(0)"); stamp("wts")
        n = len(canon); depth = len(bufs)
        P = [f"s[{4+2*i}:{5+2*i}]" for i in range(n)]
        a.mark("force")
        a(f"s_mov_b32 {CNT}, 0x4000")
        a.mark("nopad", 1)
        for m in P: a(f"s_mov_b64 {m}, -1")
        for k in range(depth - 1):
            for i in range(n): a(load(i, bufs[k][i]))
            if space: a(f"s_sleep {space}")
        if first:
            assert depth == 1
            for i in range(n): a(load(i, bufs[0][i]))
            a.mark("nopad", 0); first(n); a.mark("nopad", 1)
            a(f"s_branch {name}_chk")
            a.label(name + "_re")
        a.label(name)
        for k in range(depth):
            for i in range(n):
                a(f"s_or_b64 exec, {P[i]}, 1"); a(load(i, bufs[(k + depth - 1) % depth][i]))
            if space: a(f"s_sleep {space}")
            if first: a.label(name + "_chk")
            for i in range(n):
                qd = bufs[k][i]
                a(f"s_mov_b64 exec, {P[i]}")
                if i == 0: a(f"s_waitcnt vmcnt({n * (depth - 1)})")
                a(f"v_bitop3_b32 v{T[1]}, v{qd}, v{qd+1}, {TAG} bitop3:0x7e")
                a(f"v_bitop3_b32 v{T[2]}, v{qd+2}, v{qd+3}, {TAG} bitop3:0x7e")
                a(f"v_bitop3_b32 v{T[1]}, v{T[1]}, v{T[2]}, {TLOW} bitop3:0xa8")
                for r in range(4): a(f"v_and_b32 v{canon[i]+r}, {TMASK}, v{qd+r}")
                a(f"v_cmp_ne_u32 {P[i]}, 0, v{T[1]}")
            if diag and "h1" in names and name == "L_p2":
                h = [f"s{80+2*names.index(x)}" for x in ("h1", "h2", "h3", "m")]
                a(f"s_mov_b32 {h[2]}, {h[1]}"); a(f"s_mov_b32 {h[1]}, {h[0]}")
                a(f"s_memrealtime s[{h[0][1:]}:{int(h[0][1:])+1}]"); a("s_waitcnt lgkmcnt(0)")
                a(f"s_bcnt1_i32_b64 s3, {P[0]}"); a(f"s_bcnt1_i32_b64 s62, {P[1]}"); a("s_add_u32 s3, s3, s62"); a("s_lshr_b32 s3, s3, 4")
                a(f"s_lshl_b32 {h[3]}, {h[3]}, 4"); a(f"s_or_b32 {h[3]}, {h[3]}, s3"); a(f"s_and_b32 {h[3]}, {h[3]}, 0xffff")
            if n == 1: a(f"s_cmp_lg_u64 {P[0]}, 0")
            else:
                a(f"s_or_b64 vcc, {P[0]}, {P[1]}")
                if n == 3: a(f"s_or_b64 vcc, vcc, {P[2]}")
            a(f"s_cbranch_scc0 {name}_ok")
            if sleep: a(f"s_sleep {sleep}")
        a(f"s_sub_u32 {CNT}, {CNT}, 1"); a(f"s_cmp_lg_u32 {CNT}, 0"); a(f"s_cbranch_scc1 {name}")
        a.label(name + "_ok")
        a("s_mov_b64 exec, -1")
        a.mark("nopad", 0)
        if diag and "polls" in names and name in ("L_p1", "L_p2", "L_p3"):
            i = names.index("polls"); a(f"s_sub_u32 s{80+2*i}, 0x4001, {CNT}")
    def spoll(name, addr, regs, lanes, space):
        depth = len(regs)
        a.mark("force")
        a(f"s_mov_b32 {CNT}, 0x2000")
        a.mark("nopad", 1)
        a(f"s_mov_b64 exec, {hex(lanes)}"); a(f"s_mov_b64 s[4:5], {hex(lanes)}")
        ld = lambda r: f"buffer_load_dword v{r}, {addr}, {sWS}, 0 offen sc1"
        for k in range(depth - 1):
            a(ld(regs[k])); a(f"s_sleep {space}")
        a.label(name)
        for k in range(depth):
            a("s_or_b64 exec, s[4:5], 1"); a(ld(regs[(k + depth - 1) % depth]))
            a("s_mov_b64 exec, s[4:5]")
            a(f"s_sleep {space}")
            a(f"s_waitcnt vmcnt({depth - 1})")
            a(f"v_bitop3_b32 v{T[1]}, v{regs[k]}, {VTAG}, {TLOW} bitop3:0x28")
            a(f"v_cmp_ne_u32 s[4:5], 0, v{T[1]}")
            a("s_cmp_lg_u64 s[4:5], 0"); a(f"s_cbranch_scc0 {name}_ok")
        a(f"s_sub_u32 {CNT}, {CNT}, 1"); a(f"s_cmp_lg_u32 {CNT}, 0"); a(f"s_cbranch_scc1 {name}")
        a.label(name + "_ok")
        a("s_mov_b64 exec, -1")
        a.mark("nopad", 0)
    def mfma_chain(n, src_of, A_of, pre=None):
        src_of(0)
        for t in range(n):
            selector(B[t & 1], src_of.reg(t))
            if t + 1 < n: src_of(t + 1)
            if pre: pre(t)
            mfma(A_of(t), B[t & 1], first=(t == 0))

    a.label(KNAME)
    a("s_cmp_ge_u32 s2, 256"); a("s_cbranch_scc1 L_exit")
    if diag:
        for i in range(8): a(f"s_mov_b32 s{80+2*i}, 0")
    stamp("start")
    a("s_load_dwordx16 s[4:19], s[0:1], 0"); a("s_load_dwordx8 s[20:27], s[0:1], 64")
    a("v_lshrrev_b32 v1, 6, v0"); a("v_and_b32 v0, 63, v0")
    a(f"v_readfirstlane_b32 {WAVE}, v1")
    a(f"s_and_b32 {HEAD}, s2, 7"); a(f"s_lshl_b32 {HEAD}, {HEAD}, 2"); a("s_bfe_u32 s3, s2, 0x20003"); a(f"s_add_u32 {HEAD}, {HEAD}, s3")
    a(f"s_lshr_b32 {SPLIT}, s2, 5")
    a(f"v_lshlrev_b32 v{T[0]}, 4, {LANE}")
    a("s_movk_i32 s46, 1152"); a("s_mov_b32 s47, 0x20000")
    a(f"s_sub_u32 {WAVE}, {WAVE}, 1"); a("s_cbranch_scc1 L_helper")
    a(f"s_lshl_b32 s60, {HEAD}, 21"); a(f"s_lshl_b32 s61, {SPLIT}, 18"); a("s_add_u32 s62, s60, s61")
    a("s_mov_b32 s34, 0x40000"); a("s_mov_b32 s35, 0x20000"); a("s_mov_b32 s38, 0x40000"); a("s_mov_b32 s39, 0x20000")
    a(f"s_lshl_b32 s3, {WAVE}, 10"); a(f"v_add_u32 {VKV}, s3, v{T[0]}")
    a("s_mov_b32 s60, 0")
    if par: a("s_getreg_b32 s72, hwreg(HW_REG_XCC_ID, 0, 1)"); a("s_mov_b32 vcc_lo, s72"); a("s_mov_b32 vcc_hi, 0")
    a("s_waitcnt lgkmcnt(0)")
    stamp("karg")
    a("s_add_u32 s32, s6, s62"); a("s_addc_u32 s33, s7, 0")

    def late_setup():
        a(f"s_load_dword {EP1}, s[26:27], {EPOCH}")
        a("s_mov_b32 s44, s4"); a("s_mov_b32 s45, s5"); a("s_mov_b32 s43, 0x20000")
        a("s_mov_b32 s48, s26"); a("s_mov_b32 s49, s27"); a("s_mov_b32 s50, 0x400000"); a("s_mov_b32 s51, 0x20000")
        a("s_mov_b32 s56, s22"); a("s_mov_b32 s57, s23"); a("s_movk_i32 s58, 1152"); a("s_mov_b32 s59, 0x20000")
        a(f"s_mov_b32 {SCALE}, {f32(128 ** -0.5)}"); a(f"s_mov_b32 {LOG2E}, {f32(1.4426950408889634)}")
        a(f"s_mov_b32 {HI}, 0xffff0000"); a(f"s_mov_b32 {TMASK}, 0xfffff000"); a(f"s_movk_i32 {TLOW}, 0xfff")
        a(f"v_and_b32 v{T[4]}, 1, {LANE}"); a(f"v_lshlrev_b32 v{T[4]}, 4, v{T[4]}")
        a(f"v_mov_b32 v{T[5]}, 0xffff"); a(f"v_lshlrev_b32 v{T[5]}, v{T[4]}, v{T[5]}")
        a(f"v_bfe_u32 v{T[4]}, {LANE}, 1, 2")
        for j in range(4):
            a(f"v_cmp_eq_u32 vcc, {j}, v{T[4]}"); a(f"v_cndmask_b32 v{MASK[j]}, 0, v{T[5]}, vcc")
        a("s_mov_b32 s96, s24"); a("s_mov_b32 s97, s25"); a("s_movk_i32 s98, 256"); a("s_mov_b32 s99, 0x20000")
        if not dyn:
            a("s_and_b32 s78, s2, 7"); a("s_mul_i32 s78, s78, 18"); a("s_lshr_b32 s3, s2, 3"); a("s_add_u32 s78, s78, s3")
            a("s_cmp_lt_u32 s2, 144"); a(f"s_cselect_b32 {RID}, s78, s2")
            role_setup()
    def role_setup():
        u = role_setup.n = getattr(role_setup, "n", 0) + 1
        a("s_mov_b32 s55, 0x20000")
        a(f"s_cmp_lt_u32 {RID}, 144"); a(f"s_cbranch_scc0 L_r1_{u}")
        a(f"s_mov_b32 {ROLE}, {RID}")
        a(f"s_mul_i32 s3, {ROLE}, {32*1152}"); a("s_add_u32 s52, s20, s3"); a("s_addc_u32 s53, s21, 0")
        a(f"s_mov_b32 s54, 0"); a("s_mov_b32 s63, 0x40000000")
        a(f"s_lshl_b32 s3, {WAVE}, 7")
        a(f"s_branch L_r2_{u}")
        a.label(f"L_r1_{u}")
        a(f"s_sub_u32 {ROLE}, {RID}, 144"); a(f"s_lshr_b32 {ROLE}, {ROLE}, 3")
        a(f"s_and_b32 s3, {RID}, 7"); a(f"s_mul_i32 s3, s3, {512*1152}"); a(f"s_lshl_b32 s62, {ROLE}, 7")
        a(f"s_sub_u32 s54, {512*1152}, s62"); a("s_add_u32 s3, s3, s62")
        a(f"s_cmp_lt_u32 {RID}, 216"); a("s_cselect_b32 s54, s54, 0"); a("s_cselect_b32 s3, s3, 0")
        a("s_add_u32 s52, s12, s3"); a("s_addc_u32 s53, s13, 0")
        a(f"s_mov_b32 s63, {32*1152}"); a(f"s_mul_i32 s3, {WAVE}, {64*1152}")
        a.label(f"L_r2_{u}")
        a("s_movk_i32 s76, 4608"); a("s_add_u32 s77, s63, s76")
        a(f"v_lshrrev_b32 v{T[4]}, 4, {LANE}"); a(f"v_bfe_u32 v{T[5]}, {LANE}, 3, 1"); a(f"v_lshl_add_u32 v{T[4]}, v{T[4]}, 3, v{T[5]}")
        a(f"v_mul_u32_u24 v{T[4]}, 1152, v{T[4]}")
        a(f"v_and_b32 v{T[5]}, 7, {LANE}"); a(f"v_lshl_add_u32 v{T[4]}, v{T[5]}, 4, v{T[4]}")
        a(f"v_add_u32 {VG}, s3, v{T[4]}")
    def touch_setup():
        a("s_lshr_b32 s3, s2, 3"); a("s_sub_u32 s62, s3, 9"); a("s_cmp_lt_u32 s3, 18"); a("s_cselect_b32 s62, s3, s62")
        a("s_mul_i32 s62, s62, 26"); a("s_sub_u32 s42, 576, s62"); a("s_min_u32 s42, s42, 26")
        a("s_mul_i32 s42, s42, 9216"); a(f"s_sub_u32 s42, s42, {9216-1152}")
        a("s_sub_u32 s3, s3, 18"); a("s_cmp_lt_u32 s3, 9"); a("s_cselect_b32 s42, 0, s42"); a("s_cselect_b32 s62, 0, s62")
        a("s_mul_i32 s62, s62, 9216"); a("s_and_b32 s3, s2, 7"); a("s_mul_i32 s3, s3, 1152"); a("s_add_u32 s62, s62, s3")
        a(f"s_bitcmp1_b32 {WAVE}, 0"); a("s_cselect_b32 s40, s18, s16"); a("s_cselect_b32 s41, s19, s17")
        a("s_add_u32 s40, s40, s62"); a("s_addc_u32 s41, s41, 0")
        a("s_mov_b32 s15, s42"); a("s_mov_b32 s14, 0")
        if tu > 1:
            a("s_mov_b32 s14, s42")
            if tu == 2: a(f"s_bitcmp1_b32 {WAVE}, 0")
            else: a(f"s_cmp_ge_u32 {WAVE}, {tu - 1}")
            a("s_cselect_b32 s42, 0, s42"); a("s_cselect_b32 s14, s14, 0")
    def touch_lane(dst):
        a(f"s_lshr_b32 s3, {WAVE}, 1"); a("s_lshl_b32 s3, s3, 6"); a(f"v_add_u32 v{T[1]}, s3, {LANE}")
        a(f"s_mov_b32 s3, {-(-(1 << 32) // 9)}"); a(f"v_mul_hi_u32 v{T[2]}, v{T[1]}, s3")
        a(f"v_mul_u32_u24 v{T[3]}, 9, v{T[2]}"); a(f"v_sub_u32 v{T[1]}, v{T[1]}, v{T[3]}")
        a(f"v_mul_u32_u24 v{T[2]}, 9216, v{T[2]}"); a(f"v_lshl_add_u32 {dst}, v{T[1]}, 7, v{T[2]}")
    def gload(i, r):
        so = ("0", "s76", "s63", "s77")[i >> 1]
        a(f"buffer_load_dwordx4 {v4(r)}, {VG}, {sG}, {so} offen offset:{(i & 1) * 2304} {wpol}")
    def bcast_src(src):
        def f(t):
            d = f.reg(t)
            a(f"v_mov_b32_dpp {d}, {src} row_newbcast:{2*t} row_mask:0xf bank_mask:0x3")
            a(f"v_mov_b32_dpp {d}, {src} row_newbcast:{2*t+1} row_mask:0xf bank_mask:0xc")
        f.reg = lambda t: f"v{T[6 + (t & 1)]}"
        return f
    def part_addr(dst, two):
        a(f"s_lshl_b32 s3, {WAVE}, 9"); a(f"s_add_u32 s3, s3, {L_P}")
        a(f"v_lshrrev_b32 {dst}, 4, {LANE}"); a(f"v_lshlrev_b32 {dst}, 7, {dst}")
        a(f"v_and_b32 v{T[7]}, 7, {LANE}"); a(f"v_lshl_add_u32 {dst}, v{T[7]}, 4, {dst}"); a(f"v_add_u32 {dst}, s3, {dst}")
    def sum_parts(addr, dst, tmp, n, stride):
        regs = [dst] + tmp[:n-1]
        for i in range(n): a(f"ds_read_b128 {v4(regs[i])}, {addr} offset:{L_P + i * stride}")
        for i in range(1, n):
            a(f"s_waitcnt lgkmcnt({n-1-i})")
            for r in range(4): a(f"v_add_f32 v{dst+r}, v{dst+r}, v{regs[i]+r}")
    def tag_setup():
        a(f"s_add_u32 {EP1}, {EP1}, 1"); a(f"s_and_b32 {TAG}, {EP1}, 0xfff"); a(f"v_mov_b32 {VTAG}, {TAG}")

    order = []; free = list(range(NSLOT)); slot_of = {}
    def alloc(item):
        s = free.pop(0); slot_of[item] = SLOT0 + 4 * s; return slot_of[item]
    def release(item): free.append((slot_of[item] - SLOT0) // 4)
    def issue(item):
        k, i = item
        if k == "k" or k == "v":
            r = alloc(item)
            if item == ("v", 0): a("s_mov_b32 s60, 0")
            a(f"buffer_load_dwordx4 {v4(r)}, {VKV}, {sK if k == 'k' else sV}, s60 offen {pol}")
            a("s_addk_i32 s60, 0x2000")
        elif k == "t":
            if gate:
                a("s_waitcnt lgkmcnt(0)"); a(f"v_readfirstlane_b32 s3, v{Q}")
                a("s_cmp_eq_u32 s3, 0"); a("s_cselect_b32 s14, s15, s14"); a("s_cselect_b32 s42, 0, s42")
            a(f"buffer_load_dword v{S+12}, v{S}, s[40:43], 0 offen"); assert st["pv"] >= 25 or tpos
        elif k == "g":
            r = alloc(item)
            gload(i, r)
        order.append(item)
    known = [-1]
    def wait_idx(idx):
        if idx > known[0]:
            a(f"s_waitcnt vmcnt({len(order) - 1 - idx})"); known[0] = idx
    def wait_item(item): wait_idx(order.index(item))
    def landed(item): return item in order and order.index(item) <= known[0]

    PLAIN, TWO = 0x00FF00FF00FF00FF, 0xFF00FF0000FF00FF
    VP = VW
    def task_qfin():
        a("s_barrier")
        a(f"ds_read_b128 {v4(Q)}, v{T[0]} offset:{L_Q}")
        a("s_waitcnt lgkmcnt(0)")
        tag_setup()
        stamp("q")
    def task_kq(q):
        wait_item(("k", 4*q+3))
        for x in range(4):
            r = slot_of[("k", 4*q+x)]
            for i in range(4):
                a(f"v_dot2_f32_bf16 v{T[x]}, v{r+i}, v{Q+i}, {'0' if i == 0 else 'v%d' % T[x]}")
            release(("k", 4*q+x))
        allred16([f"v{T[x]}" for x in range(4)])
        a(f"v_cvt_pk_bf16_f32 v{T[4]}, v{T[0]}, v{T[1]}"); a(f"v_cvt_pk_bf16_f32 v{T[5]}, v{T[2]}, v{T[3]}")
        a(f"v_lshlrev_b32 v{T[0]}, 16, v{T[4]}"); a(f"v_and_b32 v{T[1]}, {HI}, v{T[4]}")
        a(f"v_lshlrev_b32 v{T[2]}, 16, v{T[5]}"); a(f"v_and_b32 v{T[3]}, {HI}, v{T[5]}")
        for x in range(4): a(f"v_mul_f32 v{T[x]}, {SCALE}, v{T[x]}")
        a(f"v_cvt_pk_bf16_f32 v{S+2*q}, v{T[0]}, v{T[1]}"); a(f"v_cvt_pk_bf16_f32 v{S+2*q+1}, v{T[2]}, v{T[3]}")
        a(f"v_max3_f32 {VM}, {VM}, v{T[0]}, v{T[1]}"); a(f"v_max3_f32 {VM}, {VM}, v{T[2]}, v{T[3]}")
    PA, PB = f"v{T[5]}", f"v{T[6]}"
    def prep_pv(j):
        if j % 2 == 0:
            a(f"v_lshlrev_b32 {PA}, 16, v{S+j//2}"); a(f"v_and_b32 {PB}, {HI}, v{S+j//2}")
            a(f"v_fma_f32 {PA}, {PA}, {LOG2E}, -{VF}"); a(f"v_fma_f32 {PB}, {PB}, {LOG2E}, -{VF}")
            a(f"v_exp_f32 {PA}, {PA}"); a(f"v_exp_f32 {PB}, {PB}")
        p = PA if j % 2 == 0 else PB
        a(f"v_cvt_pk_bf16_f32 v{T[0]}, {p}, {p}"); a(f"v_add_f32 {VL}, {VL}, {p}")
        selector(B[j & 1], f"v{T[0]}")
    def task_smax():
        allred_rows(VM, f"v{T[0]}", "v_max_f32"); rbf(VM, VM)
        a(f"s_lshl_b32 s3, {WAVE}, 2"); a(f"v_mov_b32 v{T[0]}, s3")
        a(f"ds_write_b32 v{T[0]}, {VM} offset:{L_MW}")
        a(f"v_mul_f32 {VF}, {LOG2E}, {VM}")
        stamp("kend")
        prep_pv(0)
    def wgmax(dst):
        a(f"v_mov_b32 v{T[0]}, 0")
        a(f"ds_read_b128 {v4(Q)}, v{T[0]} offset:{L_MW}"); a(f"ds_read_b128 v[{T[1]+1}:{T[1]+4}], v{T[0]} offset:{L_MW+16}")
        a("s_waitcnt lgkmcnt(0)")
        a(f"v_max3_f32 {dst}, v{Q}, v{Q+1}, v{Q+2}"); a(f"v_max3_f32 {dst}, {dst}, v{Q+3}, v{T[1]+1}")
        a(f"v_max3_f32 {dst}, {dst}, v{T[1]+2}, v{T[1]+3}"); a(f"v_max_f32 {dst}, {dst}, v{T[1]+4}")
    def task_pv(j):
        wait_item(("v", j))
        mfma(slot_of[("v", j)], B[j & 1], first=(j == 0)); release(("v", j))
        if j == jB2:
            assert j % 2 == 1
            a("s_waitcnt lgkmcnt(0)"); a("s_barrier")
            wgmax(f"v{T[1]}")
            a(f"v_sub_f32 {VM}, {VM}, v{T[1]}"); a(f"v_mul_f32 {VM}, {LOG2E}, {VM}"); a(f"v_exp_f32 {VM}, {VM}")
            a(f"v_mul_f32 {VF}, {LOG2E}, v{T[1]}")
            if tu: touch_lane(f"v{S}")
            a(f"v_mul_f32 {VL}, {VL}, {VM}")
            for r in range(4): a(f"v_mul_f32 v{D+r}, v{D+r}, {VM}")
        if j == 30:
            prep_pv(31)
            allred_rows(VL, f"v{T[0]}")
            a(f"s_lshl_b32 s3, {WAVE}, 2"); a(f"v_mov_b32 v{T[0]}, s3"); a(f"ds_write_b32 v{T[0]}, {VL} offset:{L_LW}")
            return
        if j < 31: prep_pv(j + 1)

    seq = [("k", i) for i in range(32)] + [("v", i) for i in range(32)] + [("g", i) for i in range(EW)]
    if tu: seq.insert(64 - tpos, ("t", 0))
    st = dict(q=False, kq=0, sm=False, pv=0)
    def run_ready(force=False):
        did = False; n = 0
        if not st["q"]: return False
        if st["kq"] < 8:
            it = ("k", 4 * st["kq"] + 3)
            if landed(it) or (force and it in order): task_kq(st["kq"]); st["kq"] += 1; did = True
            if st["kq"] == 8: task_smax(); st["sm"] = True
            return did
        while st["pv"] < 32 and n < 2 and (landed(("v", st["pv"])) or (force and not did and ("v", st["pv"]) in order)):
            task_pv(st["pv"]); st["pv"] += 1; n += 1; did = True
        return did
    for n, item in enumerate(seq):
        if n == (min(par) if par else (W0 or Wn)):
            a("s_add_u32 s36, s8, s62"); a("s_addc_u32 s37, s9, 0")
            late_setup()
            if tu: touch_setup()
            if par: a("s_mov_b32 vcc_lo, s72"); a("s_mov_b32 vcc_hi, 0")
            part_addr(VP, False)
            a(f"v_and_b32 v{T[0]}, 0xf0, v{T[0]}")
            a(f"v_mov_b32 {VM}, 0xff800000"); a(f"v_mov_b32 {VL}, 0")
        W = Wv if item[0] in "vgt" else Wn
        if n < n0: W = W0
        if Walt and n >= 8: W = Walt[n % len(Walt)]
        if item[0] in "kv":
            prev = [i for i, it in enumerate(order) if it[0] in "kv"]
            if adapt and item[0] == "v":
                if item[1] == jA - 1:
                    a(f"v_mov_b32 v{Q}, 0"); a(f"ds_read_b32 v{Q}, v{Q} offset:{L_ROLE+8}")
                if item[1] == jA:
                    a("s_waitcnt lgkmcnt(0)"); a(f"v_readfirstlane_b32 s72, v{Q}"); st["mode"] = True
                    if diag and "rank" in names: a(f"s_add_u32 s{80+2*names.index('rank')}, s72, 1")
                W = Wv if st.get("mode") else Wn
            if len(prev) >= W: wait_idx(prev[-W])
            if n == W: stamp("k0")
            if n == W + 4: stamp("k4")
            if par and len(prev) >= min(par):
                u = f"L_pw{n}"
                a(f"s_cbranch_{'vccnz' if par[1] > par[0] else 'vccz'} {u}")
                a(f"s_waitcnt vmcnt({len(order) - 1 - prev[-min(par)]})")
                a.label(u)
            if adapt and st.get("mode") and item[0] == "v":
                u = f"L_aw{item[1]}"
                a(f"s_cmp_ge_u32 s72, {adapt[4]}"); a(f"s_cbranch_scc1 {u}")
                a(f"s_waitcnt vmcnt({len(order) - 1 - prev[-adapt[1]]})")
                if adapt[0] != adapt[1]:
                    a(f"s_cmp_ge_u32 s72, {adapt[3]}"); a(f"s_cbranch_scc1 {u}")
                    a(f"s_waitcnt vmcnt({len(order) - 1 - prev[-adapt[0]]})")
                a.label(u)
        while not free: assert run_ready(force=True)
        if gate and item == ("v", 31): a(f"v_mov_b32 v{Q}, 0"); a(f"ds_read_b32 v{Q}, v{Q} offset:{L_ROLE+8}")
        issue(item)
        if n == nK - 1: task_qfin(); st["q"] = True
        run_ready()
    while st["pv"] < 31: assert run_ready(force=True)
    setexec(PLAIN) if st["pv"] == 32 else None
    if st["pv"] == 31:
        task_pv(31); st["pv"] = 32; setexec(PLAIN)
    stamp("vend")
    a(f"ds_write_b128 {VP}, {v4(D)}")
    a("s_mov_b64 exec, -1")
    a("s_waitcnt lgkmcnt(0)"); stamp("oadd"); a("s_barrier")
    if dyn:
        a(f"v_mov_b32 v{T[0]}, 0"); a(f"ds_read_b32 v{T[0]}, v{T[0]} offset:{L_ROLE}")
        a("s_waitcnt lgkmcnt(0)"); a(f"v_readfirstlane_b32 {RID}, v{T[0]}")
        role_setup()
    if fast1:
        a(f"v_mov_b32 v{T[0]}, 0"); a(f"ds_read_b32 v{T[0]}, v{T[0]} offset:{L_ROLE+4}")
        a("s_waitcnt lgkmcnt(0)"); a(f"v_readfirstlane_b32 s61, v{T[0]}")
    else: a("s_mov_b32 s61, 0")
    a("s_barrier")
    if tu > 1 or gate: a("s_mov_b32 s42, s14"); a(f"buffer_load_dword v{S+11}, v{S}, s[40:43], 0 offen")
    for i in range(EW, 8): alloc(("g", i))
    G = [slot_of[("g", i)] for i in range(8)]
    F = [SLOT0 + 4 * s for s in free]
    assert len(F) >= 20
    a("s_branch L_tail")

    a.label("L_helper")
    a("s_setprio 3")
    a(f"s_mov_b32 {WAVE}, 8")
    a(f"s_lshl_b32 s63, {HEAD}, 8"); a(f"s_sub_u32 s42, {576*8192}, s63"); a("s_mov_b32 s43, 0x20000")
    a(f"v_lshrrev_b32 v{T[1]}, 4, {LANE}"); a(f"v_mul_u32_u24 v{T[2]}, 18, v{T[1]}")
    a(f"s_mul_i32 s3, {SPLIT}, 72"); a(f"v_add_u32 v{T[2]}, s3, v{T[2]}")
    a(f"v_and_b32 v{T[3]}, 0xf0, v{T[0]}"); a(f"v_lshl_add_u32 {VW}, v{T[2]}, 13, v{T[3]}")
    a(f"v_lshlrev_b32 v{T[2]}, 1, v{T[2]}")
    a("s_mov_b32 s61, 0")
    a("s_waitcnt lgkmcnt(0)")
    a("s_mov_b32 s44, s4"); a("s_mov_b32 s45, s5")
    a("s_add_u32 s40, s10, s63"); a("s_addc_u32 s41, s11, 0")
    x0, x1 = SLOT0, SLOT0 + 4
    WQ = [SLOT0 + 8 + 4 * i for i in range(18)]
    a(f"buffer_load_dwordx4 {v4(x0)}, v{T[0]}, {sX}, 0 offen"); a(f"buffer_load_dwordx4 {v4(x1)}, v{T[0]}, {sX}, 0 offen offset:1024")
    a(f"buffer_load_dwordx4 {v4(S)}, v{T[2]}, {sX}, 0 offen"); a(f"buffer_load_dwordx4 {v4(S+4)}, v{T[2]}, {sX}, 0 offen offset:16")
    a(f"buffer_load_dword v{S+8}, v{T[2]}, {sX}, 0 offen offset:32")
    for t in range(18):
        a(f"buffer_load_dwordx4 {v4(WQ[t])}, {VW}, {sWQ}, s61 offen {wqpol}"); a("s_addk_i32 s61, 0x2000")
    CPF = 1 if codepf > 1 else 0
    def codetouch():
        u = codetouch.n = getattr(codetouch, "n", 0) + 1
        a("s_getpc_b64 s[74:75]"); a.label(f"L_pc{u}")
        a(f"s_sub_u32 s74, s74, L_pc{u}-{KNAME}"); a("s_subb_u32 s75, s75, 0")
        a("s_lshr_b32 s3, s2, 3"); a("s_lshl_b32 s3, s3, 10")
        a(f"v_lshl_add_u32 v{T[5]}, {LANE}, 7, s3"); a(f"v_min_u32 v{T[5]}, L_end-{KNAME}-4, v{T[5]}")
        a("s_mov_b64 exec, 0xff"); a(f"global_load_dword v{T[5]}, v{T[5]}, s[74:75]"); a("s_mov_b64 exec, -1")
    late_setup()
    a("s_mov_b32 s35, 0x20000"); a("s_mov_b32 s39, 0x20000")
    a(f"v_mov_b32 v{B[0]}, 0"); a(f"v_lshlrev_b32 v{T[1]}, 2, {LANE}")
    a(f"ds_write_b32 v{T[1]}, v{B[0]} offset:{L_ST}")
    a(f"v_mov_b32 {VKV}, v{T[0]}")
    if CPF: codetouch()
    a(f"s_waitcnt vmcnt({18+CPF})")
    U = [B[0] + i for i in range(8)]
    for i in range(4):
        a(f"v_lshlrev_b32 v{U[2*i]}, 16, v{x0+i}"); a(f"v_and_b32 v{U[2*i+1]}, {HI}, v{x0+i}")
    U2 = [x0 + i for i in range(4)] + [Q + i for i in range(4)]
    for i in range(4): a(f"v_lshlrev_b32 v{U2[2*i]}, 16, v{x1+i}")
    for i in range(4): a(f"v_and_b32 v{U2[2*i+1]}, {HI}, v{x1+i}")
    sm = f"v{T[0]}"; t_ = f"v{T[1]}"; q2 = f"v{T[2]}"
    a(f"v_add_f32 {sm}, v{U[0]}, v{U[1]}")
    for r in U[2:] + U2: a(f"v_add_f32 {sm}, {sm}, v{r}")
    allred16([sm]); allred_rows(sm, t_)
    a(f"v_mul_f32 {sm}, {f32(1/576)}, {sm}")
    for r in U: a(f"v_sub_f32 v{r}, v{r}, {sm}")
    a(f"v_mul_f32 {q2}, v{U[0]}, v{U[0]}")
    for r in U[1:]: a(f"v_fmac_f32 {q2}, v{r}, v{r}")
    a("s_mov_b64 exec, 0xff")
    for r in U2: a(f"v_sub_f32 v{r}, v{r}, {sm}")
    for r in U2: a(f"v_fmac_f32 {q2}, v{r}, v{r}")
    a("s_mov_b64 exec, -1")
    allred16([q2]); allred_rows(q2, t_)
    a(f"v_mul_f32 {q2}, {f32(1/576)}, {q2}")
    rbf(sm, sm); rbf(q2, q2)
    a(f"v_add_f32 {q2}, {f32(1e-5)}, {q2}"); rbf(q2, q2)
    a(f"v_sqrt_f32 {q2}, {q2}"); rbf(q2, q2)
    a(f"v_rcp_f32 {q2}, {q2}")
    for i in range(9):
        lo, hi = f"v{T[3]}", f"v{T[4]}"
        a(f"v_lshlrev_b32 {lo}, 16, v{S+i}"); a(f"v_and_b32 {hi}, {HI}, v{S+i}")
        a(f"v_sub_f32 {lo}, {lo}, {sm}"); a(f"v_sub_f32 {hi}, {hi}, {sm}")
        a(f"v_cvt_pk_bf16_f32 v{S+i}, {lo}, {hi}")
        a(f"v_lshlrev_b32 {lo}, 16, v{S+i}"); a(f"v_and_b32 {hi}, {HI}, v{S+i}")
        a(f"v_mul_f32 {lo}, {lo}, {q2}"); a(f"v_mul_f32 {hi}, {hi}, {q2}")
        a(f"v_cvt_pk_bf16_f32 v{S+i}, {lo}, {hi}")
    a("s_mov_b32 s72, 0x01000100"); a("s_mov_b32 s73, 0x03020302")
    a("s_waitcnt lgkmcnt(0)")
    tag_setup()
    a(f"s_lshl_b32 s3, {HEAD}, 13"); a(f"s_add_u32 s3, s3, {Q0}"); a(f"v_add_u32 {VL}, s3, {VKV}")
    a(f"s_lshl_b32 s62, {SPLIT}, 10")
    a("s_mov_b32 s74, 0xff00ff00"); a("s_mov_b32 s75, 0xff00ff00")
    for t in range(18):
        b = B[t & 1]
        a(f"v_perm_b32 v{T[0]}, v{S+t//2}, v{S+t//2}, {'s73' if t & 1 else 's72'}")
        selector(b, f"v{T[0]}")
        a(f"s_waitcnt vmcnt({17-t+CPF})")
        mfma(WQ[t], b, first=(t == 0))
    a(f"v_mov_b32 v{B[0]+1}, {EP1}"); a(f"v_mov_b32 v{B[0]+3}, {EP1}")
    a(f"v_cndmask_b32 v{B[0]}, v{D}, v{D+2}, s[74:75]"); a(f"v_cndmask_b32 v{B[0]+2}, v{D+1}, v{D+3}, s[74:75]")
    a(f"buffer_store_dwordx4 {v4(B[0])}, {VL}, {sWS}, s62 offen sc1")
    stamp("qpub")
    if fast1:
        a("s_getreg_b32 s78, hwreg(HW_REG_XCC_ID, 0, 4)")
        a(f"s_lshl_b32 s3, {EP1}, 4"); a("s_or_b32 s3, s3, s78"); a(f"v_mov_b32 v{T[0]}, s3")
        a("s_and_b32 s3, s2, 7"); a("s_lshl_b32 s3, s3, 5"); a("s_lshr_b32 s62, s2, 3"); a("s_add_u32 s3, s3, s62")
        a("s_lshl_b32 s3, s3, 2"); a(f"s_add_u32 s3, s3, {XC}"); a(f"v_mov_b32 v{T[1]}, s3")
        a("s_mov_b64 exec, 1"); a(f"buffer_store_dword v{T[0]}, v{T[1]}, {sWS}, 0 offen sc1"); a("s_mov_b64 exec, -1")
        a(f"s_mov_b32 s61, {FAST}")
    a(f"v_lshrrev_b32 {VF}, 3, {LANE}"); a(f"v_lshlrev_b32 {VF}, 5, {VF}"); a(f"v_and_b32 v{T[1]}, 7, {LANE}"); a(f"v_lshl_add_u32 {VF}, v{T[1]}, 1, {VF}")
    a("s_movk_i32 s62, 0x1000")
    if qsleep: a(f"s_sleep {qsleep}")
    a(f"s_mov_b32 {CNT}, 0x8000")
    a.label("L_pq")
    for i in range(8): a(f"buffer_load_dwordx4 {v4(WQ[i])}, {VL}, {sWS}, {'0' if i < 4 else 's62'} offen offset:{(i & 3) * 1024} sc1")
    for i in range(8):
        a(f"s_waitcnt vmcnt({7-i})")
        a(f"v_bitop3_b32 v{T[1]}, v{WQ[i]+1}, v{WQ[i]+3}, {EP1} bitop3:0x7e")
        a(f"v_mov_b32 v{T[0]}, v{T[1]}" if i == 0 else f"v_or_b32 v{T[0]}, v{T[0]}, v{T[1]}")
    a(f"v_cmp_ne_u32 vcc, 0, v{T[0]}")
    a("s_cbranch_vccz L_pq_ok")
    a(f"s_sub_u32 {CNT}, {CNT}, 1"); a(f"s_cmp_lg_u32 {CNT}, 0"); a("s_cbranch_scc1 L_pq")
    a.label("L_pq_ok")
    if diag and "polls" in names:
        i = names.index("polls"); a(f"s_sub_u32 s{80+2*i}, 0x8001, {CNT}")
    for i in range(1, 8):
        a(f"v_add_f32 v{WQ[0]}, v{WQ[0]}, v{WQ[i]}"); a(f"v_add_f32 v{WQ[0]+2}, v{WQ[0]+2}, v{WQ[i]+2}")
    a(f"v_cvt_pk_bf16_f32 v{WQ[0]}, v{WQ[0]}, v{WQ[0]+2}")
    a(f"ds_write_b16 {VF}, v{WQ[0]} offset:{L_Q}"); a(f"ds_write_b16_d16_hi {VF}, v{WQ[0]} offset:{L_Q + 16}")
    a("s_waitcnt lgkmcnt(0)")
    if adapt:
        a(f"v_mov_b32 v{T[0]}, {adapt[3]}"); a(f"v_mov_b32 v{T[1]}, 0"); a(f"ds_write_b32 v{T[1]}, v{T[0]} offset:{L_ROLE+8}")
        a("s_waitcnt lgkmcnt(0)")
    stamp("qgot")
    a("s_barrier")
    a(f"v_mov_b32 v{T[0]}, {VKV}")
    if codepf: codetouch()
    if pads:
        a("s_mov_b64 exec, 0"); a("s_cbranch_execz P_pub_0")
        a.label("L_warm1")
        a(f"s_cmp_lt_u32 {RID}, 144"); a("s_cbranch_scc1 P_ffn_0")
        a(f"s_cmp_lt_u32 {RID}, 216"); a("s_cbranch_scc1 P_wo_0")
        a("s_branch P_red_0")
        a.label("L_warm2")
        a("s_mov_b64 exec, -1")
    a(f"s_lshl_b32 s3, {HEAD}, 3"); a(f"s_add_u32 s3, s3, {SPLIT}")
    a(f"s_lshl_b32 s62, s3, 9"); a(f"s_add_u32 s62, s62, {O1}"); a(f"v_add_u32 {VW}, s62, v{T[0]}")
    a("s_lshl_b32 s62, s3, 4"); a(f"s_add_u32 s62, s62, {ML}"); a(f"v_writelane_b32 {VW}, s62, 32")
    a(f"v_and_b32 {VKV}, 0x1f0, v{T[0]}"); a(f"v_lshrrev_b32 v{T[1]}, 5, {LANE}"); a(f"v_lshl_add_u32 {VKV}, v{T[1]}, 11, {VKV}")
    HT = [Q, B[0], B[1]]
    def half_sum():
        for r in range(4): a(f"v_mov_b32 v{T[r]}, v{D+r}")
        for r in range(4): a(f"v_permlane32_swap_b32 v{D+r}, v{T[r]}")
        for r in range(4): a(f"v_add_f32 v{D+r}, v{D+r}, v{T[r]}")
    a("s_barrier")
    if dyn:
        a(f"v_mov_b32 {VL}, 1"); a(f"v_mov_b32 {VF}, 0")
        a("s_mov_b64 exec, 1")
        a(f"buffer_atomic_add {VL}, {VF}, s[96:99], 0 offen sc0 sc1")
        a("s_mov_b64 exec, -1")
    if adapt:
        a("s_lshr_b32 s3, s2, 3"); a("s_lshl_b32 s3, s3, 7"); a(f"s_add_u32 s72, s3, {KD}")
        a("s_and_b32 s73, s2, 7"); a("s_lshl_b32 s3, s73, 2")
        a(f"v_mov_b32 v{S+4}, {EP1}"); a(f"v_mov_b32 v{S+5}, s3"); a(f"v_lshlrev_b32 v{S+6}, 2, {LANE}")
        a("s_mov_b64 exec, 0xff"); a(f"buffer_load_dword v{S+7}, v{S+6}, {sWS}, s72 offen sc1")
        a("s_mov_b64 exec, 1"); a(f"buffer_store_dword v{S+4}, v{S+5}, {sWS}, s72 offen sc1")
        a("s_mov_b64 exec, 0xff"); a("s_waitcnt vmcnt(1)")
        a(f"v_cmp_eq_u32 vcc, {EP1}, v{S+7}"); a("s_mov_b64 exec, -1")
        a("s_bcnt1_i32_b32 s3, vcc_lo")
        a(f"v_mov_b32 v{S+4}, s3"); a(f"v_mov_b32 v{S+5}, 0"); a(f"ds_write_b32 v{S+5}, v{S+4} offset:{L_ROLE+8}")
    def groups_done():
        a("s_mov_b64 exec, 0xff"); a(f"buffer_load_dword v{S+7}, v{S+6}, {sWS}, 0 offen sc1"); a("s_waitcnt vmcnt(0)")
        a(f"v_bitop3_b32 v{S+7}, v{S+7}, {VTAG}, {TLOW} bitop3:0x28"); a(f"v_cmp_eq_u32 vcc, 0, v{S+7}"); a("s_mov_b64 exec, -1")
        a("s_bcnt1_i32_b32 s3, vcc_lo")
    if gate:
        assert rep2
        a("s_and_b32 s3, s2, 7"); a("s_lshl_b32 s3, s3, 15"); a(f"s_add_u32 s3, s3, {Z2R}"); a(f"v_lshl_add_u32 v{S+6}, {LANE}, 8, s3")
        groups_done()
        a(f"s_cmp_ge_u32 s3, {gate[0]}"); a("s_cselect_b32 s72, 1, 0")
        a(f"v_mov_b32 v{S+4}, s72"); a(f"v_mov_b32 v{S+5}, 0"); a(f"ds_write_b32 v{S+5}, v{S+4} offset:{L_ROLE+8}")
        if diag and "rank" in names: a(f"s_add_u32 s{80+2*names.index('rank')}, s3, 1")
    if fast1:
        a("s_and_b32 s3, s2, 7"); a("s_lshl_b32 s3, s3, 7"); a(f"s_add_u32 s3, s3, {XC}")
        a(f"v_and_b32 v{S}, 31, {LANE}"); a(f"v_lshlrev_b32 v{S}, 2, v{S}")
        a(f"buffer_load_dword v{S}, v{S}, {sWS}, s3 offen sc1")
    wgmax(VM)
    if dyn:
        a("s_waitcnt vmcnt(0)")
        stamp("claim")
        a(f"v_readfirstlane_b32 {RID}, {VL}")
        a("s_mov_b64 exec, 1"); a(f"ds_write_b32 {VF}, {VL} offset:{L_ROLE}"); a("s_mov_b64 exec, -1")
        role_setup()
        a("s_waitcnt lgkmcnt(0)")
    if fast1:
        a("s_waitcnt vmcnt(0)")
        a(f"s_lshl_b32 s3, {EP1}, 4"); a("s_or_b32 s3, s3, s78")
        a(f"v_cmp_ne_u32 vcc, s3, v{S}")
        a("s_cmp_eq_u32 vcc_lo, 0"); a(f"s_cselect_b32 s3, {FAST}, 0")
        a(f"v_mov_b32 v{T[0]}, s3"); a(f"v_mov_b32 {VF}, 0"); a(f"ds_write_b32 {VF}, v{T[0]} offset:{L_ROLE+4}")
        a("s_waitcnt lgkmcnt(0)")
    a(f"v_mov_b32 {VF}, 0")
    a.mark("chain", "P_pub", "L_warm1")
    a("s_barrier")
    a(f"ds_read_b128 {v4(F[0])}, {VF} offset:{L_LW}"); a(f"ds_read_b128 {v4(F[1])}, {VF} offset:{L_LW+16}")
    stamp("b3")
    sum_parts(VKV, D, HT, 4, 512)
    for r in range(4): a(f"v_add_f32 v{F[0]+r}, v{F[0]+r}, v{F[1]+r}")
    half_sum()
    a(f"v_add_f32 v{F[0]}, v{F[0]}, v{F[0]+1}"); a(f"v_add_f32 v{F[0]+2}, v{F[0]+2}, v{F[0]+3}")
    a("s_mov_b32 exec_lo, 0"); a("s_mov_b32 exec_hi, 1")
    a(f"v_add_f32 v{D+1}, v{F[0]}, v{F[0]+2}"); a(f"v_mov_b32 v{D}, {VM}"); a(f"v_mov_b32 v{D+2}, {VM}"); a(f"v_mov_b32 v{D+3}, {VM}")
    a("s_mov_b32 exec_lo, -1")
    for i in range(4): a(f"v_and_or_b32 v{D+i}, v{D+i}, {TMASK}, {VTAG}")
    if fast1: a(f"buffer_store_dwordx4 {v4(D)}, {VW}, {sWS}, s61 offen")
    a(f"buffer_store_dwordx4 {v4(D)}, {VW}, {sWS}, 0 offen sc1")
    stamp("ostore")
    a("s_mov_b64 exec, -1")
    if gate:
        a.mark("nopad", 1)
        a(f"s_sub_u32 s3, {RID}, 144"); a("s_cmp_lt_u32 s3, 72"); a("s_cbranch_scc1 L_gate_ok")
        a("s_cmp_lg_u32 s72, 0"); a("s_cbranch_scc1 L_gate_ok")
        a(f"s_mov_b32 {CNT}, 0x8000")
        a.label("L_gate")
        groups_done()
        a(f"s_cmp_ge_u32 s3, {gate[1]}"); a("s_cbranch_scc1 L_gate_ok")
        a("s_sleep 2")
        a(f"s_sub_u32 {CNT}, {CNT}, 1"); a(f"s_cmp_lg_u32 {CNT}, 0"); a("s_cbranch_scc1 L_gate")
        a.label("L_gate_ok")
        a.mark("nopad", 0)
    a("s_barrier")
    a("s_setprio 0")

    a.label("L_tail")
    stamp("tail")
    a(f"s_cmp_lt_u32 {RID}, 144"); a("s_cbranch_scc1 L_ffn")
    a(f"s_cmp_lt_u32 {RID}, 216"); a("s_cbranch_scc1 L_wo")
    if t2 == "red":
        a("s_and_b32 s3, s2, 7"); a(f"s_mul_i32 s3, s3, {576*1152}")
        a("s_lshr_b32 s62, s2, 3"); a("s_sub_u32 s62, s62, 27"); a(f"s_mul_i32 s62, s62, {1037*128}")
        a(f"s_sub_u32 s42, {576*1152}, s62"); a(f"s_min_u32 s42, s42, {1037*128}"); a("s_add_u32 s3, s3, s62")
        a("s_add_u32 s40, s20, s3"); a("s_addc_u32 s41, s21, 0")
        a(f"s_lshl_b32 s3, {WAVE}, 14"); a(f"v_lshl_add_u32 v{T[0]}, {LANE}, 7, s3"); a("s_movk_i32 s3, 0x2000")
        a(f"buffer_load_dword v{S+14}, v{T[0]}, s[40:43], 0 offen"); a(f"buffer_load_dword v{S+15}, v{T[0]}, s[40:43], s3 offen")
    a(f"s_cmp_lt_u32 {RID}, 252"); a("s_cbranch_scc1 L_red")
    a("s_branch L_done")
    a.mark("end")

    a.label("L_wo")
    a.mark("chain", "P_wo", "L_warm2")
    a(f"s_cmp_eq_u32 {WAVE}, 8"); a("s_cbranch_scc1 L_wo_pub")
    OA, OB, MLr = F[0], F[1], F[2]
    for i in range(EW, 8):
        if i - EW >= Ww: a(f"s_waitcnt vmcnt({Ww-1})")
        gload(i, G[i])
    a(f"s_and_b32 s3, {RID}, 7"); a("s_lshl_b32 s3, s3, 2"); a(f"s_lshr_b32 s62, {WAVE}, 1"); a("s_add_u32 s3, s3, s62")
    a(f"s_lshl_b32 s62, s3, 12"); a(f"s_and_b32 s60, {WAVE}, 1"); a("s_lshl_b32 s60, s60, 8"); a("s_add_u32 s62, s62, s60")
    a(f"s_add_u32 s62, s62, {O1}")
    a(f"v_lshrrev_b32 v{T[4]}, 4, {LANE}"); a(f"v_and_b32 v{T[5]}, 15, {LANE}")
    a(f"v_lshlrev_b32 {VKV}, 9, v{T[4]}"); a(f"v_lshl_add_u32 {VKV}, v{T[5]}, 4, {VKV}"); a(f"v_add_u32 {VKV}, s62, {VKV}")
    a("s_lshl_b32 s62, s3, 7"); a(f"s_add_u32 s62, s62, {ML}")
    a(f"v_bfe_u32 v{T[6]}, {LANE}, 3, 1"); a(f"v_lshl_add_u32 v{T[6]}, v{T[6]}, 2, v{T[4]}")
    a(f"v_lshlrev_b32 {VW}, 4, v{T[6]}"); a(f"v_add_u32 {VW}, s62, {VW}")
    part_addr(VM, True)
    a("s_mov_b32 s74, 0xff00ff00"); a("s_mov_b32 s75, 0xff00ff00")
    ld1 = lambda i, r: (f"buffer_load_dwordx4 {v4(r)}, {VW}, {sWS}, s61 offen sc1",
                        f"buffer_load_dwordx4 {v4(r)}, {VKV}, {sWS}, s61 offen sc1",
                        f"buffer_load_dwordx4 {v4(r)}, {VKV}, {sWS}, s61 offen offset:2048 sc1")[i]
    ppoll("L_p1", ld1, [MLr, OA, OB], [F[3+3*k:6+3*k] for k in range(PD1)])
    stamp("got")
    m1, l1, m2, l2, M, t = (f"v{T[i]}" for i in range(6))
    m1, l1 = f"v{MLr}", f"v{MLr+1}"
    a(f"v_mov_b32_dpp {m2}, {m1} row_ror:8 row_mask:0xf bank_mask:0xf"); a(f"v_mov_b32_dpp {l2}, {l1} row_ror:8 row_mask:0xf bank_mask:0xf")
    a(f"v_max_f32 {M}, {m1}, {m2}"); allred_rows(M, t, "v_max_f32")
    a(f"v_sub_f32 {m1}, {m1}, {M}"); a(f"v_sub_f32 {m2}, {m2}, {M}")
    a(f"v_mul_f32 {m1}, {LOG2E}, {m1}"); a(f"v_mul_f32 {m2}, {LOG2E}, {m2}")
    a(f"v_exp_f32 {m1}, {m1}"); a(f"v_exp_f32 {m2}, {m2}")
    a(f"v_mul_f32 {l1}, {l1}, {m1}"); a(f"v_fmac_f32 {l1}, {l2}, {m2}")
    a(f"v_cndmask_b32 {l2}, {m1}, {m2}, s[74:75]"); a(f"v_cndmask_b32 {m2}, {m2}, {m1}, s[74:75]")
    for i in range(4): a(f"v_mul_f32 v{OA+i}, v{OA+i}, {l2}")
    for i in range(4): a(f"v_fmac_f32 v{OA+i}, v{OB+i}, {m2}")
    allred_rows(l1, t)
    rows_scatter(*(f"v{OA+i}" for i in range(4)))
    a(f"v_rcp_f32 {l1}, {l1}")
    a(f"v_mul_f32 v{OA}, v{OA}, {l1}")
    a(f"v_cvt_pk_bf16_f32 v{OA}, v{OA}, v{OA}")
    stamp("f2a")
    mfma_chain(8, bcast_src(f"v{OA}"), lambda t: G[t])
    stamp("f3a")
    setexec(TWO)
    a(f"ds_write_b128 {VM}, {v4(D)}")
    a("s_waitcnt lgkmcnt(0)"); a("s_barrier")
    a("s_branch L_done")
    a.label("L_wo_pub")
    a(f"s_and_b32 s3, {RID}, 7"); a("s_lshl_b32 s3, s3, 8"); a(f"s_lshl_b32 s62, {ROLE}, 11"); a("s_add_u32 s3, s3, s62"); a(f"s_add_u32 s3, s3, {Z2R if rep2 else Z2}")
    a(f"v_lshrrev_b32 v{T[4]}, 4, {LANE}"); a(f"v_and_b32 v{T[5]}, 15, {LANE}"); a(f"v_lshlrev_b32 v{T[5]}, 4, v{T[5]}")
    a(f"v_lshl_add_u32 {VKV}, v{T[4]}, 10, v{T[5]}")
    a(f"v_lshl_add_u32 {VW}, v{T[4]}, {15 if rep2 else 2}, v{T[5]}"); a(f"v_add_u32 {VW}, s3, {VW}")
    a(f"s_mov_b32 s62, {4*Z2S}")
    a("s_barrier")
    stamp("b6")
    sum_parts(VKV, D, HT, 4, 256)
    if rep2:
        for sw in ("32", "16"):
            for r in range(4): a(f"v_mov_b32 v{T[r]}, v{D+r}")
            for r in range(4): a(f"v_permlane{sw}_swap_b32 v{D+r}, v{T[r]}")
            for r in range(4): a(f"v_add_f32 v{D+r}, v{D+r}, v{T[r]}")
        for r in range(4): a(f"v_and_or_b32 v{D+r}, v{D+r}, {TMASK}, {VTAG}")
        a(f"buffer_store_dwordx4 {v4(D)}, {VW}, {sWS}, 0 offen sc1")
        a(f"buffer_store_dwordx4 {v4(D)}, {VW}, {sWS}, s62 offen sc1")
    elif pub2x4:
        for sw in ("32", "16"):
            for r in range(4): a(f"v_permlane{sw}_swap_b32 v{D+r}, v{T[r]}")
            for r in range(4): a(f"v_add_f32 v{D+r}, v{D+r}, v{T[r]}")
        a("s_mov_b64 exec, 0xffff")
        for r in range(4): a(f"v_and_or_b32 v{D+r}, v{D+r}, {TMASK}, {VTAG}")
        a(f"buffer_store_dwordx4 {v4(D)}, {VW}, {sWS}, 0 offen sc1")
    else:
        rows_scatter(*(f"v{D+i}" for i in range(4)))
        a(f"v_and_or_b32 v{D}, v{D}, {TMASK}, {VTAG}")
        a(f"buffer_store_dword v{D}, {VW}, {sWS}, 0 offen sc1")
    stamp("pub")
    a("s_branch L_done")

    a.mark("end")
    a.label("L_ffn")
    a.mark("chain", "P_ffn", "L_warm2")
    W13 = F[0:8]; ZA, ZB = F[9], F[10]; HX = F[11]
    AD = f"v[{HX}:{HX+1}]"
    a(f"s_mov_b32 s54, {32*1152}")
    G2 = G + [F[8], F[14], F[15], F[16]]
    def w2loads(tag):
        a(f"s_cmp_ge_u32 {WAVE}, 4"); a(f"s_cbranch_scc1 L_w2{tag}")
        for t in range(4):
            for b in range(3):
                so = (("0", "s76"), ("0", "s76"), ("s12", "s13"))[b][t >> 1]
                a(f"buffer_load_dwordx4 {v4(G2[4*b+t])}, {VG}, {sG}, {so} offen offset:{(t & 1) * 2304 + 512 * b} {wpol}")
        a.label(f"L_w2{tag}")
    a(f"s_cmp_eq_u32 {WAVE}, 0"); a("s_cselect_b32 s12, 0, 0x40000000"); a("s_add_u32 s13, s12, s76")
    a(f"v_lshrrev_b32 v{T[4]}, 4, {LANE}"); a(f"v_bfe_u32 v{T[5]}, {LANE}, 3, 1"); a(f"v_lshl_add_u32 v{T[6]}, v{T[4]}, 3, v{T[5]}")
    a(f"s_lshl_b32 s3, {WAVE}, 6"); a(f"v_add_u32 v{T[6]}, s3, v{T[6]}"); a(f"v_mul_u32_u24 v{T[6]}, 9216, v{T[6]}")
    a(f"v_and_b32 v{T[7]}, 3, {LANE}"); a(f"v_lshl_add_u32 v{T[6]}, v{T[7]}, 4, v{T[6]}")
    a(f"s_lshl_b32 s62, {ROLE}, 6"); a(f"v_add_u32 v{T[6]}, s62, v{T[6]}")
    a("s_mov_b32 s74, 0xf0f0f0f0"); a("s_mov_b32 s75, 0xf0f0f0f0")
    a(f"v_mov_b32 v{HX}, s16"); a(f"v_mov_b32 v{HX+1}, s17"); a(f"v_mov_b32 v{HX+2}, s18"); a(f"v_mov_b32 v{HX+3}, s19")
    a(f"v_cndmask_b32 v{HX}, v{HX}, v{HX+2}, s[74:75]"); a(f"v_cndmask_b32 v{HX+1}, v{HX+1}, v{HX+3}, s[74:75]")
    a(f"v_add_co_u32 v{HX}, vcc, v{HX}, v{T[6]}"); a(f"v_addc_co_u32 v{HX+1}, vcc, 0, v{HX+1}, vcc")
    a(f"s_movk_i32 s72, {2*9216}"); a("s_mov_b32 s73, 0"); a(f"s_mov_b32 s10, {26*9216}"); a("s_mov_b32 s11, 0")
    for tt in range(8):
        if not now13: a(f"global_load_dwordx4 {v4(W13[tt])}, {AD}, off {wpol}")
        if tt < 7: a(f"v_lshl_add_u64 {AD}, {'s[10:11]' if tt == 3 else 's[72:73]'}, 0, {AD}")
    a(f"v_lshl_add_u32 {VL}, v{T[5]}, 2, v{T[4]}"); a(f"v_and_b32 v{T[6]}, 7, {LANE}"); a(f"v_lshl_add_u32 {VL}, {VL}, 3, v{T[6]}")
    a(f"v_add_u32 {VL}, s3, {VL}"); a(f"v_lshlrev_b32 {VL}, 1, {VL}")
    a(f"buffer_load_ushort v{HX+2}, {VL}, {sX}, 0 offen")
    def z2base():
        if rep2: a("s_and_b32 s62, s2, 7"); a("s_lshl_b32 s62, s62, 15"); a("s_add_u32 s3, s3, s62")
        a(f"s_add_u32 s3, s3, {Z2R if rep2 else Z2}")
    a(f"v_and_b32 v{T[5]}, 15, {LANE}")
    a(f"s_lshl_b32 s3, {WAVE}, 11"); z2base()
    a(f"v_lshlrev_b32 {VKV}, 8, v{T[4]}"); a(f"v_lshl_add_u32 {VKV}, v{T[5]}, 4, {VKV}"); a(f"v_add_u32 {VKV}, s3, {VKV}")
    part_addr(VM, True)
    a(f"v_bfe_u32 {VW}, {LANE}, 4, 1"); a(f"v_lshlrev_b32 {VW}, 2, {VW}"); a(f"s_lshl_b32 s3, {WAVE}, 3"); a(f"v_add_u32 {VW}, s3, {VW}")
    VR, VO, VS, V8 = (f"v{S+i}" for i in (1, 2, 3, 8)); E = S + 4
    a(f"v_and_b32 {V8}, 31, {LANE}"); a(f"v_lshlrev_b32 {V8}, 4, {V8}")
    a(f"v_lshrrev_b32 {VR}, 5, {LANE}"); a(f"v_lshl_add_u32 {VR}, {VR}, 11, {V8}")
    if rmaj:
        a(f"s_lshl_b32 s3, {ROLE}, 6"); a(f"s_mul_i32 s62, {WAVE}, {4*9216}"); a("s_add_u32 s3, s3, s62"); a(f"s_add_u32 s3, s3, {P3}")
        a(f"v_bfe_u32 {VO}, {LANE}, 2, 1"); a(f"v_lshl_add_u32 {VO}, v{T[4]}, 1, {VO}"); a(f"v_mul_u32_u24 {VO}, 9216, {VO}")
        a(f"v_and_b32 v{T[7]}, 3, {LANE}"); a(f"v_lshl_add_u32 {VO}, v{T[7]}, 4, {VO}"); a(f"v_add_u32 {VO}, s3, {VO}")
    else:
        a(f"s_mul_i32 s3, {ROLE}, 2304"); a(f"s_lshl_b32 s62, {WAVE}, 8"); a("s_add_u32 s3, s3, s62"); a(f"s_add_u32 s3, s3, {P3}")
        a(f"v_lshlrev_b32 {VO}, 7, v{T[4]}"); a(f"v_lshl_add_u32 {VO}, v{T[6]}, 4, {VO}"); a(f"v_add_u32 {VO}, s3, {VO}")
    a("s_mov_b32 s74, 0xff00ff00"); a("s_mov_b32 s75, 0xff00ff00")
    a("s_mov_b32 s72, 0xffff0000"); a("s_mov_b32 s73, 0xffff0000")
    a(f"v_lshlrev_b32 {VS}, 3, v{T[5]}")
    def colsums(n):
        a(f"v_mov_b32 v{T[0]}, 0x3f803f80"); selector(B[0], f"v{T[0]}")
        for t in range(8):
            a(f"s_waitcnt vmcnt({n + 1 + 7 - t})")
            mfma(W13[t], B[0], first=(t == 0), dst=Q)
        stamp("wts")
        for r in range(4): a(f"v_permlane32_swap_b32 v{Q+r}, v{B[1]+r}")
        for r in range(4): dpp("v_add_f32", f"v{E+r}", f"v{B[1]+r}", f"v{Q+r}", "row_ror:8")
        if w2at == "after": a("s_waitcnt vmcnt(0)"); w2loads("a"); a("s_branch L_p2_re")
    ld2 = lambda i, r: f"buffer_load_dwordx4 {v4(r)}, {VKV}, {sWS}, 0 offen offset:{1024*i} sc1"
    if f2lds:
        VX, VY = f"v{S+9}", f"v{S+10}"
        a(f"s_lshl_b32 s3, {WAVE}, 8"); a(f"s_add_u32 s3, s3, {L_H}")
        a(f"v_and_b32 {VX}, 1, {LANE}"); a(f"v_lshl_add_u32 {VX}, v{T[4]}, 1, {VX}"); a(f"v_lshlrev_b32 {VX}, 5, {VX}")
        a(f"v_bfe_u32 v{T[7]}, {LANE}, 1, 3"); a(f"v_lshl_add_u32 {VX}, v{T[7]}, 2, {VX}"); a(f"v_add_u32 {VX}, s3, {VX}")
        a(f"v_lshrrev_b32 {VY}, 3, {LANE}"); a(f"v_lshl_add_u32 {VY}, {VY}, 5, s3")
    ppoll("L_p2", ld2, [ZA, ZB], [F[12:14]], sleep2, first=colsums)
    stamp("got")
    if w2at == "got": w2loads("g")
    for i in range(4): a(f"v_add_f32 v{ZA+i}, v{ZA+i}, v{ZB+i}")
    a(f"v_lshlrev_b32 v{HX+2}, 16, v{HX+2}")
    rows_scatter(*(f"v{ZA+i}" for i in range(4)))
    h, h2, hd = f"v{ZA}", f"v{ZA+1}", f"v{ZA+2}"
    rbf(h, h); a(f"v_add_f32 {h}, {h}, v{HX+2}")
    a(f"v_cvt_pk_bf16_f32 {hd}, {h}, {h}"); a(f"v_and_b32 {h}, {HI}, {hd}")
    stat = [lambda st=st, r=r: dpp("v_add_f32", r, r, r, f"row_ror:{st}") for st in (8, 4, 2, 1) for r in (h, h2)]
    def f2pre(t):
        if t < fill and not f2lds: stat[t]()
        if t == 4 and w2at == "mid": w2loads("m")
    if f2lds:
        a(f"ds_write_b32 {VX}, {hd}")
        a(f"ds_read_b128 {v4(ZB)}, {VY}"); a(f"ds_read_b128 {v4(Q)}, {VY} offset:16")
        a(f"v_mul_f32 {h2}, {h}, {h}")
        for f_ in stat: f_()
        fill = 8
        def lsrc(t):
            if t == 0: a("s_waitcnt lgkmcnt(1)")
            if t == 4: a("s_waitcnt lgkmcnt(0)")
        lsrc.reg = lambda t: f"v{(ZB if t < 4 else Q) + t % 4}"
        lsrc(0); selector(B[0], lsrc.reg(0))
        for t in range(8):
            if t < 7: lsrc(t + 1); selector(B[(t + 1) & 1], lsrc.reg(t + 1))
            f2pre(t)
            mfma(W13[t], B[t & 1], first=(t == 0))
    else:
        a(f"v_mul_f32 {h2}, {h}, {h}")
        mfma_chain(8, bcast_src(hd), lambda t: W13[t], pre=f2pre)
    if w2at == "end": w2loads("e")
    stamp("f2a")
    for f_ in stat[fill:]: f_()
    a(f"v_permlane16_swap_b32 {h}, {h2}"); a(f"v_add_f32 {h}, {h}, {h2}")
    a(f"v_mov_b32 {h2}, {h}"); a(f"v_permlane32_swap_b32 {h}, {h2}"); a(f"v_add_f32 {h}, {h}, {h2}")
    for r in range(4): a(f"v_permlane32_swap_b32 v{D+r}, v{E+r}")
    a("s_mov_b64 exec, 0x00010001")
    a(f"ds_write_b32 {VW}, {h} offset:{L_ST}")
    a("s_mov_b64 exec, -1")
    for r in range(4): a(f"v_add_f32_dpp v{D+r}, v{E+r}, v{D+r} row_ror:8 row_mask:0x3 bank_mask:0xf")
    setexec(PLAIN)
    a(f"ds_write_b128 {VM}, {v4(D)}")
    a("s_mov_b64 exec, -1")
    a("s_waitcnt lgkmcnt(0)"); a("s_barrier")
    stamp("b6")
    a(f"s_cmp_ge_u32 {WAVE}, 4"); a("s_cbranch_scc1 L_done")
    mu, var = f"v{T[0]}", f"v{T[1]}"
    a(f"ds_read_b64 v[{T[0]}:{T[1]}], {VS} offset:{L_ST}")
    RD = [ZA, ZB, Q, HX, E]
    for i in range(4): a(f"ds_read_b128 {v4(RD[i])}, {VR} offset:{L_P + 512*i}")
    a(f"ds_read_b128 {v4(RD[4])}, {V8} offset:{L_P + 512*8}")
    if w2at == "b6": w2loads("b")
    a("s_waitcnt lgkmcnt(5)")
    adds = [lambda i=i, r=r: a(f"v_add_f32 v{ZA+r}, v{ZA+r}, v{RD[i]+r}" if i < 4 else f"v_fmac_f32 v{ZA+r}, 0.5, v{RD[i]+r}") for i in range(1, 5) for r in range(4)]
    dpp("v_add_f32", mu, mu, mu, "row_ror:8"); dpp("v_add_f32", var, var, var, "row_ror:8")
    a("s_waitcnt lgkmcnt(3)")
    for k, st in enumerate((4, 2, 1)):
        adds[k](); dpp("v_add_f32", mu, mu, mu, f"row_ror:{st}"); dpp("v_add_f32", var, var, var, f"row_ror:{st}")
    adds[3]()
    a("s_waitcnt lgkmcnt(2)")
    chain = [f"v_mul_f32 {mu}, {f32(1/576)}, {mu}", f"v_mul_f32 {var}, {f32(1/576)}, {var}", f"v_fma_f32 {var}, -{mu}, {mu}, {var}",
             f"v_cvt_pk_bf16_f32 {mu}, {mu}, {mu}", f"v_max_f32 {var}, 0, {var}", f"v_and_b32 {mu}, {HI}, {mu}",
             f"v_cvt_pk_bf16_f32 {var}, {var}, {var}", f"v_cndmask_b32 {mu}, -1.0, {mu}, s[72:73]", f"v_and_b32 {var}, {HI}, {var}",
             f"v_add_f32 {var}, {f32(1e-5)}, {var}", f"v_cvt_pk_bf16_f32 {var}, {var}, {var}", f"v_and_b32 {var}, {HI}, {var}"]
    for k in range(12):
        if k == 4: a("s_waitcnt lgkmcnt(1)")
        if k == 8: a("s_waitcnt lgkmcnt(0)")
        adds[4 + k](); a(chain[k])
    stamp("f3a")
    a(f"v_sqrt_f32 {var}, {var}")
    for r in range(4): a(f"v_mul_f32 v{ZA+r}, v{ZA+r}, -{mu}")
    rbf(var, var)
    a(f"v_permlane16_swap_b32 v{ZA}, v{ZA+1}"); a(f"v_permlane16_swap_b32 v{ZA+2}, v{ZA+3}")
    a(f"v_rcp_f32 {var}, {var}")
    a(f"v_add_f32 v{ZA}, v{ZA}, v{ZA+1}"); a(f"v_add_f32 v{ZA+2}, v{ZA+2}, v{ZA+3}")
    a(f"v_permlane32_swap_b32 v{ZA}, v{ZA+2}"); a(f"v_add_f32 v{ZA}, v{ZA}, v{ZA+2}")
    e = [f"v{T[i]}" for i in range(4)]
    g, u, ot = f"v{ZA}", f"v{ZA+1}", f"v{ZA+2}"
    a(f"v_mul_f32 {g}, {g}, {var}")
    rbf(g, g)
    a(f"v_mov_b32_dpp {ot}, {g} row_ror:8 row_mask:0xf bank_mask:0xf")
    a(f"v_cndmask_b32 {u}, {ot}, {g}, s[74:75]"); a(f"v_cndmask_b32 {g}, {g}, {ot}, s[74:75]")
    a(f"v_mul_f32 {ot}, {f32(-1.4426950408889634)}, {g}"); a(f"v_exp_f32 {ot}, {ot}")
    a(f"v_add_f32 {ot}, 1.0, {ot}"); a(f"v_rcp_f32 {ot}, {ot}"); a(f"v_mul_f32 {g}, {g}, {ot}")
    rbf(g, g); a(f"v_mul_f32 {g}, {g}, {u}")
    a(f"v_cvt_pk_bf16_f32 {g}, {g}, {g}")
    stamp("f3b")
    ACC = [D, Q, E]
    src = bcast_src(g); src(0)
    for t in range(4):
        selector(B[t & 1], src.reg(t))
        if t < 3: src(t + 1)
        for b in range(3):
            a(f"s_waitcnt vmcnt({11 - 3*t - b})")
            mfma(G2[4*b+t], B[t & 1], first=(t == 0), dst=ACC[b])
    stamp("f3c")
    a(f"s_mov_b32 s10, {16*9216 if rmaj else 1024}"); a(f"s_mov_b32 s11, {32*9216 if rmaj else 2048}")
    for b in range(3):
        if b == 2: a(f"s_cmp_lg_u32 {WAVE}, 0"); a("s_cbranch_scc1 L_done")
        d = ACC[b]
        if b: a("s_mov_b64 exec, -1")
        for r in range(4): a(f"v_permlane32_swap_b32 v{d+r}, {e[r]}")
        for r in range(4): dpp("v_add_f32", f"v{d+r}", e[r], f"v{d+r}", "row_ror:8")
        for r in range(4): a(f"v_and_or_b32 v{d+r}, v{d+r}, {TMASK}, {VTAG}")
        a("s_mov_b64 exec, 0x00ff00ff")
        a(f"buffer_store_dwordx4 {v4(d)}, {VO}, {sWS}, {('0', 's10', 's11')[b]} offen sc1")
        if b == 1: stamp("pub")
    stamp("pub")
    a("s_branch L_done")

    a.mark("end")
    a.label("L_red")
    a.mark("chain", "P_red", "L_warm2")
    PA_, HH = F[0], F[1]
    a(f"s_sub_u32 {ROLE}, {RID}, 216")
    a(f"v_and_b32 v{T[4]}, 3, {LANE}"); a(f"v_lshrrev_b32 v{T[5]}, 4, {LANE}")
    a(f"s_lshr_b32 s3, {ROLE}, 1"); a("s_lshl_b32 s3, s3, 5"); a(f"s_and_b32 s62, {ROLE}, 1"); a("s_lshl_b32 s62, s62, 2"); a("s_add_u32 s3, s3, s62")
    a(f"v_lshl_add_u32 {VL}, v{T[5]}, 3, v{T[4]}"); a(f"v_add_u32 {VL}, s3, {VL}"); a(f"v_lshlrev_b32 {VL}, 1, {VL}")
    a(f"v_lshl_add_u32 {VF}, v{T[5]}, 2, v{T[4]}"); a(f"v_mul_u32_u24 {VF}, 48, {VF}")
    a(f"s_lshl_b32 s3, {WAVE}, 2"); a(f"v_add_u32 {VM}, s3, {VF}")
    a(f"s_cmp_lg_u32 {WAVE}, 0"); a("s_cbranch_scc1 L_red_h3")
    a(f"buffer_load_ushort v{Q}, {VL}, {sX}, 0 offen")
    a(f"s_lshr_b32 s62, {ROLE}, 2"); a("s_lshl_b32 s62, s62, 11"); a(f"s_and_b32 s3, {ROLE}, 3"); a("s_lshl_b32 s3, s3, 6")
    a("s_add_u32 s3, s3, s62"); z2base()
    a(f"v_bfe_u32 {VKV}, {LANE}, 2, 3"); a(f"v_lshlrev_b32 {VKV}, 8, {VKV}"); a(f"v_lshl_add_u32 {VKV}, v{T[4]}, 4, {VKV}")
    a(f"v_add_u32 {VKV}, s3, {VKV}")
    poll("L_p2r", [f"buffer_load_dwordx4 {v4(HH)}, {VKV}, {sWS}, 0 offen sc1"], [HH], 2)
    hv = [f"v{HH+i}" for i in range(4)]
    for i in range(4): a(f"v_and_b32 {hv[i]}, {TMASK}, {hv[i]}")
    rows_scatter(*hv)
    allred16(hv[:1], steps=(4, 8))
    a(f"v_mul_f32 {hv[0]}, 0.5, {hv[0]}")
    rbf(hv[0], hv[0]); a(f"v_lshlrev_b32 v{Q}, 16, v{Q}"); a(f"v_add_f32 {hv[0]}, {hv[0]}, v{Q}"); rbf(hv[0], hv[0])
    stamp("got")
    a.label("L_red_h3")
    if rmaj:
        a(f"s_mul_i32 s3, {ROLE}, 9216"); a(f"s_lshl_b32 s62, {WAVE}, 10"); a("s_add_u32 s3, s3, s62"); a(f"s_add_u32 s3, s3, {P3}")
        a(f"v_lshl_add_u32 {VW}, {LANE}, 4, s3")
    else:
        a(f"v_lshrrev_b32 {VW}, 2, {LANE}"); a(f"s_lshl_b32 s3, {WAVE}, 4"); a(f"v_add_u32 {VW}, s3, {VW}")
        a(f"v_mul_u32_u24 {VW}, 2304, {VW}"); a(f"v_lshl_add_u32 {VW}, v{T[4]}, 4, {VW}")
        a(f"s_lshl_b32 s3, {ROLE}, 6"); a(f"s_add_u32 s3, s3, {P3}"); a(f"v_add_u32 {VW}, s3, {VW}")
    ppoll("L_p3", lambda i, r: f"buffer_load_dwordx4 {v4(r)}, {VW}, {sWS}, 0 offen sc1", [PA_], [[F[2+k]] for k in range(PD3)], sleep3, SP3)
    stamp("pub")
    pv = [f"v{PA_+i}" for i in range(4)]
    rows_scatter(*pv)
    allred16(pv[:1], steps=(4, 8))
    setexec(0x000F000F000F000F)
    a(f"ds_write_b32 {VM}, {pv[0]} offset:{L_P}")
    a("s_waitcnt lgkmcnt(0)"); a("s_barrier")
    a(f"s_cmp_lg_u32 {WAVE}, 0"); a("s_cbranch_scc1 L_done")
    a(f"ds_read_b128 {v4(PA_)}, {VF} offset:{L_P}"); a(f"ds_read_b128 {v4(B[0])}, {VF} offset:{L_P+16}"); a(f"ds_read_b32 v{B[1]}, {VF} offset:{L_P+32}")
    a("s_waitcnt lgkmcnt(1)")
    for i in range(4): a(f"v_add_f32 {pv[i]}, {pv[i]}, v{B[0]+i}")
    a(f"v_add_f32 {pv[0]}, {pv[0]}, {pv[1]}"); a(f"v_add_f32 {pv[2]}, {pv[2]}, {pv[3]}")
    a("s_waitcnt lgkmcnt(0)")
    a(f"v_add_f32 {pv[0]}, {pv[0]}, v{B[1]}"); a(f"v_add_f32 {pv[0]}, {pv[0]}, {pv[2]}")
    rbf(pv[0], pv[0]); a(f"v_add_f32 {pv[0]}, {pv[0]}, {hv[0]}")
    a(f"v_cvt_pk_bf16_f32 {pv[0]}, {pv[0]}, {pv[0]}")
    a(f"buffer_store_short {pv[0]}, {VL}, {sOUT}, 0 offen")
    a(f"s_cmp_lg_u32 {ROLE}, 0"); a("s_cbranch_scc1 L_done")
    a("s_mov_b64 exec, 1")
    a(f"v_mov_b32 v{T[0]}, {EP1}"); a(f"v_mov_b32 v{T[1]}, {EPOCH}")
    a(f"buffer_store_dword v{T[0]}, v{T[1]}, {sWS}, 0 offen")

    a.mark("end")
    a.label("L_done")
    if diag == 2:
        stamp("end")
        a("s_mov_b64 exec, 1"); a("s_waitcnt lgkmcnt(0)")
        a("s_mov_b32 s76, s24"); a("s_mov_b32 s77, s25"); a("s_movk_i32 s78, 256"); a("s_mov_b32 s79, 0x20000")
        a("s_not_b32 s3, s80"); a("v_mov_b32 v16, s3"); a("v_mov_b32 v17, 0")
        a("buffer_atomic_umax v16, v17, s[76:79], 0 offen sc1")
        a("v_mov_b32 v18, s80"); a("buffer_atomic_umax v18, v17, s[76:79], 0 offen offset:4 sc1")
        a("v_mov_b32 v19, s88"); a("buffer_atomic_umax v19, v17, s[76:79], 0 offen offset:8 sc1")
        a("v_mov_b32 v20, s94"); a("buffer_atomic_umax v20, v17, s[76:79], 0 offen offset:12 sc1")
        a(f"s_cmp_eq_u32 {WAVE}, 8"); a("s_cbranch_scc1 L_exit")
        a("v_mov_b32 v21, s82"); a("buffer_atomic_umax v21, v17, s[76:79], 0 offen offset:16 sc1")
        a("v_mov_b32 v22, s84"); a("buffer_atomic_umax v22, v17, s[76:79], 0 offen offset:20 sc1")
        a("v_mov_b32 v23, s86"); a("buffer_atomic_umax v23, v17, s[76:79], 0 offen offset:24 sc1")
    elif diag:
        stamp("end")
        a("s_mov_b64 exec, 1"); a("s_waitcnt lgkmcnt(0)")
        a(f"s_mul_i32 s3, {RID}, 9"); a(f"s_add_u32 s3, s3, {WAVE}"); a("s_lshl_b32 s3, s3, 5"); a(f"s_add_u32 s3, s3, {STAMP}")
        a("v_mov_b32 v28, s3")
        for i in range(8): a(f"v_mov_b32 v{16+i}, s{80+2*i}")
        a(f"buffer_store_dwordx4 v[16:19], v28, {sWS}, 0 offen"); a(f"buffer_store_dwordx4 v[20:23], v28, {sWS}, 0 offen offset:16")
    a.label("L_exit")
    a("s_endpgm")
    a.label("L_end")
    a.place_pads(pads)
    body = a.finalize()
    out = HEADER + "; Generated by gen.py: 256 workgroups (8 streaming waves + 1 helper wave), tagged hand-offs through d_ws.\n"
    if diag: out += "; stamps: " + " ".join(names) + "\n"
    out += "; @launch grid=(256,1,1) block=(576,1,1) lds=9216\n"
    out += '.amdgcn_target "amdgcn-amd-amdhsa--gfx950"\n.text\n' + f".globl {KNAME}\n.p2align 8\n.type {KNAME},@function\n"
    out += body
    out += f""".section .rodata,"a"
.p2align 6
.amdhsa_kernel {KNAME}
  .amdhsa_next_free_vgpr 168
  .amdhsa_next_free_sgpr 100
  .amdhsa_accum_offset 168
  .amdhsa_group_segment_fixed_size 0
  .amdhsa_kernarg_size 96
  .amdhsa_user_sgpr_count 2
  .amdhsa_user_sgpr_kernarg_segment_ptr 1
  .amdhsa_system_sgpr_workgroup_id_x 1
.end_amdhsa_kernel
"""
    return out

if __name__ == "__main__":
    kw = eval("dict(" + (sys.argv[2] if len(sys.argv) > 2 else "") + ")")
    open(sys.argv[1], "w").write(gen(**kw))
```

```python
import sys, struct
sys.path.insert(0, "work")
from asmlib import Asm

KNAME = "sequential_preLN__mha_block_cached__glu_gated_swiglu__decode_kernel"
HEADER = open("sequential_preLN__mha_block_cached__glu_gated_swiglu__decode.s.ref").read().split("; Override launch")[0]

def f32(x): return "0x%08x" % struct.unpack("<I", struct.pack("<f", x))[0]

EPOCH, O1, ML, Z2, P3, Q0, STAMP = 0, 0x10000, 0x30000, 0x32000, 0x40000, 0xa0000, 0x100000
Z2R, Z2S = 0x140000, 0x8000
KD = 0x3a000
XC, FAST = 0x38000, 0x200000
L_ST, L_MW, L_LW, L_Q, L_H, L_P = 0, 128, 160, 256, 512, 4096

def gen(Wn=4, nK=18, qsleep=32, EW=8, jB2=21, dyn=0, Ww=13, Wv=None, wqpol='nt', w2mode='first', tu=3, fast1=1, pads=0, now13=0, delta=0, qfast=0, qsl2=0, skipz=1, trim=1, thr=None, nA=24, nE=64, amp=0, Walt=None, W0=0, n0=0, gate=None, w2at='end', f2lds=1, cyc=0, rmaj=1, fill=4, t2='red', SD2=0, SP2=2, SP3=0, adapt=None, jA=14, par=None, rep2=1, PD1=1, PD2=1, PD3=1, pub2x4=1, mpoll=1, tpos=0, pol="nt", wpol="", diag=0, codepf=2, sleep2=0, sleep3=0):
    a = Asm()
    LANE = "v0"; MASK = [4, 5, 6, 7]; Q = 8; D = 12; B = [16, 20]
    VKV, VW, VM, VL, VF, VG, VTAG = "v24", "v25", "v26", "v27", "v1", "v2", "v3"
    T = [28 + i for i in range(8)]
    S = 36
    SLOT0, NSLOT = 52, 29
    sK, sV, sWQ, sX, sWS, sG, sOUT = "s[32:35]", "s[36:39]", "s[40:43]", "s[44:47]", "s[48:51]", "s[52:55]", "s[56:59]"
    WAVE, HEAD, SPLIT, TAG = "s28", "s29", "s30", "s31"
    RID = "s79"; L_ROLE = 192
    assert not (dyn and EW)
    Wv = Wv or Wn
    if adapt: Wv = adapt[2]
    if par: Wn = Wv = max(par)
    SCALE, LOG2E, HI, TMASK, TLOW, ROLE, CNT, EP1 = "s64", "s65", "s66", "s67", "s68", "s69", "s70", "s71"
    v4 = lambda r: f"v[{r}:{r+3}]"
    stamps = []
    names = diag.split() if isinstance(diag, str) else ["start", "q", "kend", "vend", "tail", "got", "pub", "end"]
    def stamp(n):
        if diag and n in names:
            i = names.index(n); a(f"{'s_memtime' if cyc else 's_memrealtime'} s[{80+2*i}:{81+2*i}]")
    def rbf(dst, src):
        a(f"v_cvt_pk_bf16_f32 {dst}, {src}, {src}"); a(f"v_and_b32 {dst}, {HI}, {dst}")
    def dpp(op, d, s0, s1, ctl): a(f"{op}_dpp {d}, {s0}, {s1} {ctl} row_mask:0xf bank_mask:0xf")
    def allred16(regs, op="v_add_f32", steps=(8, 4, 2, 1)):
        for st in steps:
            for r in regs: dpp(op, r, r, r, f"row_ror:{st}")
    def allred_rows(r, t, op="v_add_f32"):
        a(f"v_mov_b32 {t}, {r}"); a(f"v_permlane16_swap_b32 {r}, {t}"); a(f"{op} {r}, {r}, {t}")
        a(f"v_mov_b32 {t}, {r}"); a(f"v_permlane32_swap_b32 {r}, {t}"); a(f"{op} {r}, {r}, {t}")
    def rows_scatter(r0, r1, r2, r3):
        a(f"v_permlane16_swap_b32 {r0}, {r1}"); a(f"v_permlane16_swap_b32 {r2}, {r3}")
        a(f"v_add_f32 {r0}, {r0}, {r1}"); a(f"v_add_f32 {r2}, {r2}, {r3}")
        a(f"v_permlane32_swap_b32 {r0}, {r2}"); a(f"v_add_f32 {r0}, {r0}, {r2}")
    def selector(b, src):
        for j in range(4): a(f"v_and_b32 v{b+j}, {src}, v{MASK[j]}")
    def mfma(A_, B_, first=False, dst=None):
        d = v4(D if dst is None else dst)
        a(f"v_mfma_f32_16x16x32_bf16 {d}, {v4(A_)}, {v4(B_)}, {'0' if first else d}")
    def setexec(m):
        a(f"s_mov_b32 exec_lo, {hex(m & 0xffffffff)}"); a(f"s_mov_b32 exec_hi, {hex(m >> 32)}")
    def tagcheck(quads, t0, t1, t2):
        tmp = []
        first = True
        for qd in quads:
            a(f"v_bitop3_b32 {t1}, v{qd}, v{qd+1}, {TAG} bitop3:0x7e")
            a(f"v_bitop3_b32 {t2}, v{qd+2}, v{qd+3}, {TAG} bitop3:0x7e")
            if first: a(f"v_or_b32 {t0}, {t1}, {t2}"); first = False
            else: a(f"v_or3_b32 {t0}, {t0}, {t1}, {t2}")
        a(f"v_and_b32 {t0}, {TLOW}, {t0}")
        a(f"v_cmp_ne_u32 vcc, 0, {t0}")
    def poll(name, loads, quads, sleep):
        if diag and "wts" in names and name in ("L_p1", "L_p2"): a("s_waitcnt vmcnt(0)"); stamp("wts")
        a.mark("force")
        a(f"s_mov_b32 {CNT}, 0x8000")
        a.mark("nopad", 1)
        n = len(loads)
        if not mpoll:
            a.label(name)
            for l in loads: a(l)
            a("s_waitcnt vmcnt(0)")
            tagcheck(quads, f"v{T[0]}", f"v{T[1]}", f"v{T[2]}")
            a(f"s_cbranch_vccz {name}_ok")
            if sleep: a(f"s_sleep {sleep}")
        else:
            M = [f"s[{4+2*i}:{5+2*i}]" for i in range(n)]
            for m in M: a(f"s_mov_b64 {m}, -1")
            a.label(name)
            for m, l in zip(M, loads):
                if n > 1: a(f"s_mov_b64 exec, {m}")
                a(l)
            for i, (m, qd) in enumerate(zip(M, quads)):
                if n > 1: a(f"s_mov_b64 exec, {m}")
                if i == 0: a("s_waitcnt vmcnt(0)")
                a(f"v_bitop3_b32 v{T[1]}, v{qd}, v{qd+1}, {TAG} bitop3:0x7e")
                a(f"v_bitop3_b32 v{T[2]}, v{qd+2}, v{qd+3}, {TAG} bitop3:0x7e")
                a(f"v_bitop3_b32 v{T[1]}, v{T[1]}, v{T[2]}, {TLOW} bitop3:0xa8")
                a(f"v_cmp_ne_u32 {m}, 0, v{T[1]}")
            if n == 1:
                a(f"s_and_b64 exec, {M[0]}, {M[0]}")
            else:
                a(f"s_or_b64 vcc, {M[0]}, {M[1]}")
                if n == 3: a(f"s_or_b64 vcc, vcc, {M[2]}")
            a(f"s_cbranch_scc0 {name}_ok")
            if sleep: a(f"s_sleep {sleep}")
        a(f"s_sub_u32 {CNT}, {CNT}, 1"); a(f"s_cmp_lg_u32 {CNT}, 0"); a(f"s_cbranch_scc1 {name}")
        a.label(name + "_ok")
        if mpoll: a("s_mov_b64 exec, -1")
        a.mark("nopad", 0)
        if diag and "polls" in names and name in ("L_p1", "L_p2", "L_p3"):
            i = names.index("polls"); a(f"s_sub_u32 s{80+2*i}, 0x8001, {CNT}")
    def ppoll(name, load, canon, bufs, sleep=0, space=0, first=None):
        if diag and "wts" in names and name == "L_p1": a("s_waitcnt vmcnt(0)"); stamp("wts")
        n = len(canon); depth = len(bufs)
        P = [f"s[{4+2*i}:{5+2*i}]" for i in range(n)]
        a.mark("force")
        a(f"s_mov_b32 {CNT}, 0x4000")
        a.mark("nopad", 1)
        for m in P: a(f"s_mov_b64 {m}, -1")
        for k in range(depth - 1):
            for i in range(n): a(load(i, bufs[k][i]))
            if space: a(f"s_sleep {space}")
        if first:
            assert depth == 1
            for i in range(n): a(load(i, bufs[0][i]))
            a.mark("nopad", 0); first(n); a.mark("nopad", 1)
            a(f"s_branch {name}_chk")
            a.label(name + "_re")
        a.label(name)
        for k in range(depth):
            for i in range(n):
                a(f"s_or_b64 exec, {P[i]}, 1"); a(load(i, bufs[(k + depth - 1) % depth][i]))
            if space: a(f"s_sleep {space}")
            if first: a.label(name + "_chk")
            for i in range(n):
                qd = bufs[k][i]
                a(f"s_mov_b64 exec, {P[i]}")
                if i == 0: a(f"s_waitcnt vmcnt({n * (depth - 1)})")
                if n > 1 and skipz: a(f"s_cbranch_execz {name}_z{k}{i}")
                a(f"v_bitop3_b32 v{T[1]}, v{qd}, v{qd+1}, {TAG} bitop3:0x7e")
                a(f"v_bitop3_b32 v{T[2]}, v{qd+2}, v{qd+3}, {TAG} bitop3:0x7e")
                a(f"v_bitop3_b32 v{T[1]}, v{T[1]}, v{T[2]}, {TLOW} bitop3:0xa8")
                for r in range(4): a(f"v_and_b32 v{canon[i]+r}, {TMASK}, v{qd+r}")
                a(f"v_cmp_ne_u32 {P[i]}, 0, v{T[1]}")
                if n > 1 and skipz: a.label(f"{name}_z{k}{i}")
            if diag and "h1" in names and name == "L_p2":
                h = [f"s{80+2*names.index(x)}" for x in ("h1", "h2", "h3", "m")]
                a(f"s_mov_b32 {h[2]}, {h[1]}"); a(f"s_mov_b32 {h[1]}, {h[0]}")
                a(f"s_memrealtime s[{h[0][1:]}:{int(h[0][1:])+1}]"); a("s_waitcnt lgkmcnt(0)")
                a(f"s_bcnt1_i32_b64 s3, {P[0]}"); a(f"s_bcnt1_i32_b64 s62, {P[1]}"); a("s_add_u32 s3, s3, s62"); a("s_lshr_b32 s3, s3, 4")
                a(f"s_lshl_b32 {h[3]}, {h[3]}, 4"); a(f"s_or_b32 {h[3]}, {h[3]}, s3"); a(f"s_and_b32 {h[3]}, {h[3]}, 0xffff")
            if n == 1: a(f"s_cmp_lg_u64 {P[0]}, 0")
            else:
                a(f"s_or_b64 vcc, {P[0]}, {P[1]}")
                if n == 3: a(f"s_or_b64 vcc, vcc, {P[2]}")
            a(f"s_cbranch_scc0 {name}_ok")
            if sleep: a(f"s_sleep {sleep}")
        a(f"s_sub_u32 {CNT}, {CNT}, 1"); a(f"s_cmp_lg_u32 {CNT}, 0"); a(f"s_cbranch_scc1 {name}")
        a.label(name + "_ok")
        a("s_mov_b64 exec, -1")
        a.mark("nopad", 0)
        if diag and "polls" in names and name in ("L_p1", "L_p2", "L_p3"):
            i = names.index("polls"); a(f"s_sub_u32 s{80+2*i}, 0x4001, {CNT}")
    def spoll(name, addr, regs, lanes, space):
        depth = len(regs)
        a.mark("force")
        a(f"s_mov_b32 {CNT}, 0x2000")
        a.mark("nopad", 1)
        a(f"s_mov_b64 exec, {hex(lanes)}"); a(f"s_mov_b64 s[4:5], {hex(lanes)}")
        ld = lambda r: f"buffer_load_dword v{r}, {addr}, {sWS}, 0 offen sc1"
        for k in range(depth - 1):
            a(ld(regs[k])); a(f"s_sleep {space}")
        a.label(name)
        for k in range(depth):
            a("s_or_b64 exec, s[4:5], 1"); a(ld(regs[(k + depth - 1) % depth]))
            a("s_mov_b64 exec, s[4:5]")
            a(f"s_sleep {space}")
            a(f"s_waitcnt vmcnt({depth - 1})")
            a(f"v_bitop3_b32 v{T[1]}, v{regs[k]}, {VTAG}, {TLOW} bitop3:0x28")
            a(f"v_cmp_ne_u32 s[4:5], 0, v{T[1]}")
            a("s_cmp_lg_u64 s[4:5], 0"); a(f"s_cbranch_scc0 {name}_ok")
        a(f"s_sub_u32 {CNT}, {CNT}, 1"); a(f"s_cmp_lg_u32 {CNT}, 0"); a(f"s_cbranch_scc1 {name}")
        a.label(name + "_ok")
        a("s_mov_b64 exec, -1")
        a.mark("nopad", 0)
    def mfma_chain(n, src_of, A_of, pre=None):
        src_of(0)
        for t in range(n):
            selector(B[t & 1], src_of.reg(t))
            if t + 1 < n: src_of(t + 1)
            if pre: pre(t)
            mfma(A_of(t), B[t & 1], first=(t == 0))

    a.label(KNAME)
    a("s_cmp_ge_u32 s2, 256"); a("s_cbranch_scc1 L_exit")
    if diag:
        for i in range(8): a(f"s_mov_b32 s{80+2*i}, 0")
    stamp("start")
    if amp: a("s_memrealtime s[92:93]")
    a("s_load_dwordx16 s[4:19], s[0:1], 0"); a("s_load_dwordx8 s[20:27], s[0:1], 64")
    a("v_lshrrev_b32 v1, 6, v0"); a("v_and_b32 v0, 63, v0")
    a(f"v_readfirstlane_b32 {WAVE}, v1")
    a(f"s_and_b32 {HEAD}, s2, 7"); a(f"s_lshl_b32 {HEAD}, {HEAD}, 2"); a("s_bfe_u32 s3, s2, 0x20003"); a(f"s_add_u32 {HEAD}, {HEAD}, s3")
    a(f"s_lshr_b32 {SPLIT}, s2, 5")
    a(f"v_lshlrev_b32 v{T[0]}, 4, {LANE}")
    a("s_movk_i32 s46, 1152"); a("s_mov_b32 s47, 0x20000")
    a(f"s_sub_u32 {WAVE}, {WAVE}, 1"); a("s_cbranch_scc1 L_helper")
    a(f"s_lshl_b32 s60, {HEAD}, 21"); a(f"s_lshl_b32 s61, {SPLIT}, 18"); a("s_add_u32 s62, s60, s61")
    a("s_mov_b32 s34, 0x40000"); a("s_mov_b32 s35, 0x20000"); a("s_mov_b32 s38, 0x40000"); a("s_mov_b32 s39, 0x20000")
    a(f"s_lshl_b32 s3, {WAVE}, 10"); a(f"v_add_u32 {VKV}, s3, v{T[0]}")
    a("s_mov_b32 s60, 0")
    if par: a("s_getreg_b32 s72, hwreg(HW_REG_XCC_ID, 0, 1)"); a("s_mov_b32 vcc_lo, s72"); a("s_mov_b32 vcc_hi, 0")
    a("s_waitcnt lgkmcnt(0)")
    stamp("karg")
    a("s_add_u32 s32, s6, s62"); a("s_addc_u32 s33, s7, 0")

    def late_setup():
        a(f"s_load_dword {EP1}, s[26:27], {EPOCH}")
        a("s_mov_b32 s44, s4"); a("s_mov_b32 s45, s5"); a("s_mov_b32 s43, 0x20000")
        a("s_mov_b32 s48, s26"); a("s_mov_b32 s49, s27"); a("s_mov_b32 s50, 0x400000"); a("s_mov_b32 s51, 0x20000")
        a("s_mov_b32 s56, s22"); a("s_mov_b32 s57, s23"); a("s_movk_i32 s58, 1152"); a("s_mov_b32 s59, 0x20000")
        a(f"s_mov_b32 {SCALE}, {f32(128 ** -0.5)}"); a(f"s_mov_b32 {LOG2E}, {f32(1.4426950408889634)}")
        a(f"s_mov_b32 {HI}, 0xffff0000"); a(f"s_mov_b32 {TMASK}, 0xfffff000"); a(f"s_movk_i32 {TLOW}, 0xfff")
        a(f"v_and_b32 v{T[4]}, 1, {LANE}"); a(f"v_lshlrev_b32 v{T[4]}, 4, v{T[4]}")
        a(f"v_mov_b32 v{T[5]}, 0xffff"); a(f"v_lshlrev_b32 v{T[5]}, v{T[4]}, v{T[5]}")
        a(f"v_bfe_u32 v{T[4]}, {LANE}, 1, 2")
        for j in range(4):
            a(f"v_cmp_eq_u32 vcc, {j}, v{T[4]}"); a(f"v_cndmask_b32 v{MASK[j]}, 0, v{T[5]}, vcc")
        a("s_mov_b32 s96, s24"); a("s_mov_b32 s97, s25"); a("s_movk_i32 s98, 256"); a("s_mov_b32 s99, 0x20000")
        if not dyn:
            a("s_and_b32 s78, s2, 7"); a("s_mul_i32 s78, s78, 18"); a("s_lshr_b32 s3, s2, 3"); a("s_add_u32 s78, s78, s3")
            a("s_cmp_lt_u32 s2, 144"); a(f"s_cselect_b32 {RID}, s78, s2")
            role_setup()
    def role_setup():
        u = role_setup.n = getattr(role_setup, "n", 0) + 1
        a("s_mov_b32 s55, 0x20000")
        a(f"s_cmp_lt_u32 {RID}, 144"); a(f"s_cbranch_scc0 L_r1_{u}")
        a(f"s_mov_b32 {ROLE}, {RID}")
        a(f"s_mul_i32 s3, {ROLE}, {32*1152}"); a("s_add_u32 s52, s20, s3"); a("s_addc_u32 s53, s21, 0")
        a(f"s_mov_b32 s54, 0"); a("s_mov_b32 s63, 0x40000000")
        a(f"s_lshl_b32 s3, {WAVE}, 7")
        a(f"s_branch L_r2_{u}")
        a.label(f"L_r1_{u}")
        a(f"s_sub_u32 {ROLE}, {RID}, 144"); a(f"s_lshr_b32 {ROLE}, {ROLE}, 3")
        a(f"s_and_b32 s3, {RID}, 7"); a(f"s_mul_i32 s3, s3, {512*1152}"); a(f"s_lshl_b32 s62, {ROLE}, 7")
        a(f"s_sub_u32 s54, {512*1152}, s62"); a("s_add_u32 s3, s3, s62")
        a(f"s_cmp_lt_u32 {RID}, 216"); a("s_cselect_b32 s54, s54, 0"); a("s_cselect_b32 s3, s3, 0")
        a("s_add_u32 s52, s12, s3"); a("s_addc_u32 s53, s13, 0")
        a(f"s_mov_b32 s63, {32*1152}"); a(f"s_mul_i32 s3, {WAVE}, {64*1152}")
        a.label(f"L_r2_{u}")
        a("s_movk_i32 s76, 4608"); a("s_add_u32 s77, s63, s76")
        a(f"v_lshrrev_b32 v{T[4]}, 4, {LANE}"); a(f"v_bfe_u32 v{T[5]}, {LANE}, 3, 1"); a(f"v_lshl_add_u32 v{T[4]}, v{T[4]}, 3, v{T[5]}")
        a(f"v_mul_u32_u24 v{T[4]}, 1152, v{T[4]}")
        a(f"v_and_b32 v{T[5]}, 7, {LANE}"); a(f"v_lshl_add_u32 v{T[4]}, v{T[5]}, 4, v{T[4]}")
        a(f"v_add_u32 {VG}, s3, v{T[4]}")
    def touch_setup():
        a("s_lshr_b32 s3, s2, 3"); a("s_sub_u32 s62, s3, 9"); a("s_cmp_lt_u32 s3, 18"); a("s_cselect_b32 s62, s3, s62")
        a("s_mul_i32 s62, s62, 26"); a("s_sub_u32 s42, 576, s62"); a("s_min_u32 s42, s42, 26")
        a("s_mul_i32 s42, s42, 9216"); a(f"s_sub_u32 s42, s42, {9216-1152}")
        a("s_sub_u32 s3, s3, 18"); a("s_cmp_lt_u32 s3, 9"); a("s_cselect_b32 s42, 0, s42"); a("s_cselect_b32 s62, 0, s62")
        a("s_mul_i32 s62, s62, 9216"); a("s_and_b32 s3, s2, 7"); a("s_mul_i32 s3, s3, 1152"); a("s_add_u32 s62, s62, s3")
        a(f"s_bitcmp1_b32 {WAVE}, 0"); a("s_cselect_b32 s40, s18, s16"); a("s_cselect_b32 s41, s19, s17")
        a("s_add_u32 s40, s40, s62"); a("s_addc_u32 s41, s41, 0")
        a("s_mov_b32 s15, s42"); a("s_mov_b32 s14, 0")
        if tu > 1:
            a("s_mov_b32 s14, s42")
            if tu == 2: a(f"s_bitcmp1_b32 {WAVE}, 0")
            else: a(f"s_cmp_ge_u32 {WAVE}, {tu - 1}")
            a("s_cselect_b32 s42, 0, s42"); a("s_cselect_b32 s14, s14, 0")
    def touch_lane(dst):
        a(f"s_lshr_b32 s3, {WAVE}, 1"); a("s_lshl_b32 s3, s3, 6"); a(f"v_add_u32 v{T[1]}, s3, {LANE}")
        a(f"s_mov_b32 s3, {-(-(1 << 32) // 9)}"); a(f"v_mul_hi_u32 v{T[2]}, v{T[1]}, s3")
        a(f"v_mul_u32_u24 v{T[3]}, 9, v{T[2]}"); a(f"v_sub_u32 v{T[1]}, v{T[1]}, v{T[3]}")
        a(f"v_mul_u32_u24 v{T[2]}, 9216, v{T[2]}"); a(f"v_lshl_add_u32 {dst}, v{T[1]}, 7, v{T[2]}")
    def gload(i, r):
        so = ("0", "s76", "s63", "s77")[i >> 1]
        a(f"buffer_load_dwordx4 {v4(r)}, {VG}, {sG}, {so} offen offset:{(i & 1) * 2304} {wpol}")
    def bcast_src(src):
        def f(t):
            d = f.reg(t)
            a(f"v_mov_b32_dpp {d}, {src} row_newbcast:{2*t} row_mask:0xf bank_mask:0x3")
            a(f"v_mov_b32_dpp {d}, {src} row_newbcast:{2*t+1} row_mask:0xf bank_mask:0xc")
        f.reg = lambda t: f"v{T[6 + (t & 1)]}"
        return f
    def part_addr(dst, two):
        a(f"s_lshl_b32 s3, {WAVE}, 9"); a(f"s_add_u32 s3, s3, {L_P}")
        a(f"v_lshrrev_b32 {dst}, 4, {LANE}"); a(f"v_lshlrev_b32 {dst}, 7, {dst}")
        a(f"v_and_b32 v{T[7]}, 7, {LANE}"); a(f"v_lshl_add_u32 {dst}, v{T[7]}, 4, {dst}"); a(f"v_add_u32 {dst}, s3, {dst}")
    def sum_parts(addr, dst, tmp, n, stride):
        regs = [dst] + tmp[:n-1]
        for i in range(n): a(f"ds_read_b128 {v4(regs[i])}, {addr} offset:{L_P + i * stride}")
        for i in range(1, n):
            a(f"s_waitcnt lgkmcnt({n-1-i})")
            for r in range(4): a(f"v_add_f32 v{dst+r}, v{dst+r}, v{regs[i]+r}")
    def tag_setup():
        a(f"s_add_u32 {EP1}, {EP1}, 1"); a(f"s_and_b32 {TAG}, {EP1}, 0xfff"); a(f"v_mov_b32 {VTAG}, {TAG}")

    order = []; free = list(range(NSLOT)); slot_of = {}
    def alloc(item):
        s = free.pop(0); slot_of[item] = SLOT0 + 4 * s; return slot_of[item]
    def release(item): free.append((slot_of[item] - SLOT0) // 4)
    def issue(item):
        k, i = item
        if k == "k" or k == "v":
            r = alloc(item)
            if item == ("v", 0): a("s_mov_b32 s60, 0")
            a(f"buffer_load_dwordx4 {v4(r)}, {VKV}, {sK if k == 'k' else sV}, s60 offen {pol}")
            a("s_addk_i32 s60, 0x2000")
        elif k == "t":
            if gate:
                a("s_waitcnt lgkmcnt(0)"); a(f"v_readfirstlane_b32 s3, v{Q}")
                a("s_cmp_eq_u32 s3, 0"); a("s_cselect_b32 s14, s15, s14"); a("s_cselect_b32 s42, 0, s42")
            a(f"buffer_load_dword v{S+12}, v{S}, s[40:43], 0 offen"); assert st["pv"] >= 25 or tpos
        elif k == "g":
            r = alloc(item)
            gload(i, r)
        order.append(item)
    known = [-1]
    def wait_idx(idx):
        if idx > known[0]:
            a(f"s_waitcnt vmcnt({len(order) - 1 - idx})"); known[0] = idx
    def wait_item(item): wait_idx(order.index(item))
    def landed(item): return item in order and order.index(item) <= known[0]

    PLAIN, TWO = 0x00FF00FF00FF00FF, 0xFF00FF0000FF00FF
    VP = VW
    def task_qfin():
        a("s_barrier")
        a(f"ds_read_b128 {v4(Q)}, v{T[0]} offset:{L_Q}")
        a("s_waitcnt lgkmcnt(0)")
        tag_setup()
        stamp("q")
    def task_kq(q):
        wait_item(("k", 4*q+3))
        for x in range(4):
            r = slot_of[("k", 4*q+x)]
            for i in range(4):
                a(f"v_dot2_f32_bf16 v{T[x]}, v{r+i}, v{Q+i}, {'0' if i == 0 else 'v%d' % T[x]}")
            release(("k", 4*q+x))
        allred16([f"v{T[x]}" for x in range(4)])
        a(f"v_cvt_pk_bf16_f32 v{T[4]}, v{T[0]}, v{T[1]}"); a(f"v_cvt_pk_bf16_f32 v{T[5]}, v{T[2]}, v{T[3]}")
        a(f"v_lshlrev_b32 v{T[0]}, 16, v{T[4]}"); a(f"v_and_b32 v{T[1]}, {HI}, v{T[4]}")
        a(f"v_lshlrev_b32 v{T[2]}, 16, v{T[5]}"); a(f"v_and_b32 v{T[3]}, {HI}, v{T[5]}")
        for x in range(4): a(f"v_mul_f32 v{T[x]}, {SCALE}, v{T[x]}")
        a(f"v_cvt_pk_bf16_f32 v{S+2*q}, v{T[0]}, v{T[1]}"); a(f"v_cvt_pk_bf16_f32 v{S+2*q+1}, v{T[2]}, v{T[3]}")
        a(f"v_max3_f32 {VM}, {VM}, v{T[0]}, v{T[1]}"); a(f"v_max3_f32 {VM}, {VM}, v{T[2]}, v{T[3]}")
    PA, PB = f"v{T[5]}", f"v{T[6]}"
    def prep_pv(j):
        if j % 2 == 0:
            a(f"v_lshlrev_b32 {PA}, 16, v{S+j//2}"); a(f"v_and_b32 {PB}, {HI}, v{S+j//2}")
            a(f"v_fma_f32 {PA}, {PA}, {LOG2E}, -{VF}"); a(f"v_fma_f32 {PB}, {PB}, {LOG2E}, -{VF}")
            a(f"v_exp_f32 {PA}, {PA}"); a(f"v_exp_f32 {PB}, {PB}")
        p = PA if j % 2 == 0 else PB
        a(f"v_cvt_pk_bf16_f32 v{T[0]}, {p}, {p}"); a(f"v_add_f32 {VL}, {VL}, {p}")
        selector(B[j & 1], f"v{T[0]}")
    def task_smax():
        allred_rows(VM, f"v{T[0]}", "v_max_f32"); rbf(VM, VM)
        a(f"s_lshl_b32 s3, {WAVE}, 2"); a(f"v_mov_b32 v{T[0]}, s3")
        a(f"ds_write_b32 v{T[0]}, {VM} offset:{L_MW}")
        a(f"v_mul_f32 {VF}, {LOG2E}, {VM}")
        stamp("kend")
        prep_pv(0)
    def wgmax(dst):
        a(f"v_mov_b32 v{T[0]}, 0")
        a(f"ds_read_b128 {v4(Q)}, v{T[0]} offset:{L_MW}"); a(f"ds_read_b128 v[{T[1]+1}:{T[1]+4}], v{T[0]} offset:{L_MW+16}")
        a("s_waitcnt lgkmcnt(0)")
        a(f"v_max3_f32 {dst}, v{Q}, v{Q+1}, v{Q+2}"); a(f"v_max3_f32 {dst}, {dst}, v{Q+3}, v{T[1]+1}")
        a(f"v_max3_f32 {dst}, {dst}, v{T[1]+2}, v{T[1]+3}"); a(f"v_max_f32 {dst}, {dst}, v{T[1]+4}")
    def task_pv(j):
        wait_item(("v", j))
        mfma(slot_of[("v", j)], B[j & 1], first=(j == 0)); release(("v", j))
        if j == jB2:
            assert j % 2 == 1
            a("s_waitcnt lgkmcnt(0)"); a("s_barrier")
            wgmax(f"v{T[1]}")
            a(f"v_sub_f32 {VM}, {VM}, v{T[1]}"); a(f"v_mul_f32 {VM}, {LOG2E}, {VM}"); a(f"v_exp_f32 {VM}, {VM}")
            a(f"v_mul_f32 {VF}, {LOG2E}, v{T[1]}")
            if tu: touch_lane(f"v{S}")
            a(f"v_mul_f32 {VL}, {VL}, {VM}")
            for r in range(4): a(f"v_mul_f32 v{D+r}, v{D+r}, {VM}")
        if j == 30:
            prep_pv(31)
            allred_rows(VL, f"v{T[0]}")
            a(f"s_lshl_b32 s3, {WAVE}, 2"); a(f"v_mov_b32 v{T[0]}, s3"); a(f"ds_write_b32 v{T[0]}, {VL} offset:{L_LW}")
            return
        if j < 31: prep_pv(j + 1)

    seq = [("k", i) for i in range(32)] + [("v", i) for i in range(32)] + [("g", i) for i in range(EW)]
    if tu: seq.insert(64 - tpos, ("t", 0))
    st = dict(q=False, kq=0, sm=False, pv=0)
    def run_ready(force=False):
        did = False; n = 0
        if not st["q"]: return False
        if st["kq"] < 8:
            it = ("k", 4 * st["kq"] + 3)
            if landed(it) or (force and it in order): task_kq(st["kq"]); st["kq"] += 1; did = True
            if st["kq"] == 8: task_smax(); st["sm"] = True
            return did
        while st["pv"] < 32 and n < 2 and (landed(("v", st["pv"])) or (force and not did and ("v", st["pv"]) in order)):
            task_pv(st["pv"]); st["pv"] += 1; n += 1; did = True
        return did
    for n, item in enumerate(seq):
        if n == (min(par) if par else (W0 or Wn)):
            a("s_add_u32 s36, s8, s62"); a("s_addc_u32 s37, s9, 0")
            late_setup()
            if tu: touch_setup()
            if par: a("s_mov_b32 vcc_lo, s72"); a("s_mov_b32 vcc_hi, 0")
            part_addr(VP, False)
            a(f"v_and_b32 v{T[0]}, 0xf0, v{T[0]}")
            a(f"v_mov_b32 {VM}, 0xff800000"); a(f"v_mov_b32 {VL}, 0")
        W = Wv if item[0] in "vgt" else Wn
        if n < n0: W = W0
        if Walt and n >= 8: W = Walt[n % len(Walt)]
        if item[0] in "kv":
            prev = [i for i, it in enumerate(order) if it[0] in "kv"]
            if adapt and item[0] == "v":
                if item[1] == jA - 1:
                    a(f"v_mov_b32 v{Q}, 0"); a(f"ds_read_b32 v{Q}, v{Q} offset:{L_ROLE+8}")
                if item[1] == jA:
                    a("s_waitcnt lgkmcnt(0)"); a(f"v_readfirstlane_b32 s72, v{Q}"); st["mode"] = True
                    if diag and "rank" in names: a(f"s_add_u32 s{80+2*names.index('rank')}, s72, 1")
                W = Wv if st.get("mode") else Wn
            if thr and n == nA - 1:
                a(f"v_mov_b32 v{T[7]}, 0"); a(f"ds_read_b32 v{T[7]}, v{T[7]} offset:{L_ROLE+8}")
                a("s_waitcnt lgkmcnt(0)"); a(f"v_readfirstlane_b32 s72, v{T[7]}")
                if diag and "rank" in names: a(f"s_add_u32 s{80+2*names.index('rank')}, s72, 1")
            if len(prev) >= W: wait_idx(prev[-W])
            if thr and nA <= n < nE:
                u = f"L_th{n}"; used = False; cur = W
                for below, pat in reversed(thr):
                    w_ = pat[n % len(pat)]
                    if w_ >= cur: continue
                    a(f"s_cmp_ge_u32 s72, {below}"); a(f"s_cbranch_scc1 {u}")
                    a(f"s_waitcnt vmcnt({len(order) - 1 - prev[-w_]})"); used = True; cur = w_
                if used: a.label(u)
            if n == W: stamp("k0")
            if n == W + 4: stamp("k4")
            if par and len(prev) >= min(par):
                u = f"L_pw{n}"
                a(f"s_cbranch_{'vccnz' if par[1] > par[0] else 'vccz'} {u}")
                a(f"s_waitcnt vmcnt({len(order) - 1 - prev[-min(par)]})")
                a.label(u)
            if adapt and st.get("mode") and item[0] == "v":
                u = f"L_aw{item[1]}"
                a(f"s_cmp_ge_u32 s72, {adapt[4]}"); a(f"s_cbranch_scc1 {u}")
                a(f"s_waitcnt vmcnt({len(order) - 1 - prev[-adapt[1]]})")
                if adapt[0] != adapt[1]:
                    a(f"s_cmp_ge_u32 s72, {adapt[3]}"); a(f"s_cbranch_scc1 {u}")
                    a(f"s_waitcnt vmcnt({len(order) - 1 - prev[-adapt[0]]})")
                a.label(u)
        while not free: assert run_ready(force=True)
        if gate and item == ("v", 31): a(f"v_mov_b32 v{Q}, 0"); a(f"ds_read_b32 v{Q}, v{Q} offset:{L_ROLE+8}")
        issue(item)
        if n == nK - 1: task_qfin(); st["q"] = True
        run_ready()
    while st["pv"] < 31: assert run_ready(force=True)
    setexec(PLAIN) if st["pv"] == 32 else None
    if st["pv"] == 31:
        task_pv(31); st["pv"] = 32; setexec(PLAIN)
    stamp("vend")
    a(f"ds_write_b128 {VP}, {v4(D)}")
    a("s_mov_b64 exec, -1")
    a("s_waitcnt lgkmcnt(0)"); stamp("oadd"); a("s_barrier")
    if dyn:
        a(f"v_mov_b32 v{T[0]}, 0"); a(f"ds_read_b32 v{T[0]}, v{T[0]} offset:{L_ROLE}")
        a("s_waitcnt lgkmcnt(0)"); a(f"v_readfirstlane_b32 {RID}, v{T[0]}")
        role_setup()
    if fast1:
        a(f"v_mov_b32 v{T[0]}, 0"); a(f"ds_read_b32 v{T[0]}, v{T[0]} offset:{L_ROLE+4}")
        a("s_waitcnt lgkmcnt(0)"); a(f"v_readfirstlane_b32 s61, v{T[0]}")
    else: a("s_mov_b32 s61, 0")
    a("s_barrier")
    if tu > 1 or gate: a("s_mov_b32 s42, s14"); a(f"buffer_load_dword v{S+11}, v{S}, s[40:43], 0 offen")
    for i in range(EW, 8): alloc(("g", i))
    G = [slot_of[("g", i)] for i in range(8)]
    F = [SLOT0 + 4 * s for s in free]
    assert len(F) >= 20
    a("s_branch L_tail")

    a.label("L_helper")
    a("s_setprio 3")
    a(f"s_mov_b32 {WAVE}, 8")
    a(f"s_lshl_b32 s63, {HEAD}, 8"); a(f"s_sub_u32 s42, {576*8192}, s63"); a("s_mov_b32 s43, 0x20000")
    a(f"v_lshrrev_b32 v{T[1]}, 4, {LANE}"); a(f"v_mul_u32_u24 v{T[2]}, 18, v{T[1]}")
    a(f"s_mul_i32 s3, {SPLIT}, 72"); a(f"v_add_u32 v{T[2]}, s3, v{T[2]}")
    a(f"v_and_b32 v{T[3]}, 0xf0, v{T[0]}"); a(f"v_lshl_add_u32 {VW}, v{T[2]}, 13, v{T[3]}")
    a(f"v_lshlrev_b32 v{T[2]}, 1, v{T[2]}")
    a("s_mov_b32 s61, 0")
    a("s_waitcnt lgkmcnt(0)")
    a("s_mov_b32 s44, s4"); a("s_mov_b32 s45, s5")
    a("s_add_u32 s40, s10, s63"); a("s_addc_u32 s41, s11, 0")
    x0, x1 = SLOT0, SLOT0 + 4
    WQ = [SLOT0 + 8 + 4 * i for i in range(18)]
    a(f"buffer_load_dwordx4 {v4(x0)}, v{T[0]}, {sX}, 0 offen"); a(f"buffer_load_dwordx4 {v4(x1)}, v{T[0]}, {sX}, 0 offen offset:1024")
    a(f"buffer_load_dwordx4 {v4(S)}, v{T[2]}, {sX}, 0 offen"); a(f"buffer_load_dwordx4 {v4(S+4)}, v{T[2]}, {sX}, 0 offen offset:16")
    a(f"buffer_load_dword v{S+8}, v{T[2]}, {sX}, 0 offen offset:32")
    for t in range(18):
        a(f"buffer_load_dwordx4 {v4(WQ[t])}, {VW}, {sWQ}, s61 offen {wqpol}"); a("s_addk_i32 s61, 0x2000")
    CPF = 1 if codepf > 1 else 0
    def codetouch():
        u = codetouch.n = getattr(codetouch, "n", 0) + 1
        a("s_getpc_b64 s[74:75]"); a.label(f"L_pc{u}")
        a(f"s_sub_u32 s74, s74, L_pc{u}-{KNAME}"); a("s_subb_u32 s75, s75, 0")
        a("s_lshr_b32 s3, s2, 3"); a("s_lshl_b32 s3, s3, 10")
        a(f"v_lshl_add_u32 v{T[5]}, {LANE}, 7, s3"); a(f"v_min_u32 v{T[5]}, L_end-{KNAME}-4, v{T[5]}")
        a("s_mov_b64 exec, 0xff"); a(f"global_load_dword v{T[5]}, v{T[5]}, s[74:75]"); a("s_mov_b64 exec, -1")
    late_setup()
    a("s_mov_b32 s35, 0x20000"); a("s_mov_b32 s39, 0x20000")
    a(f"v_mov_b32 v{B[0]}, 0"); a(f"v_lshlrev_b32 v{T[1]}, 2, {LANE}")
    a(f"ds_write_b32 v{T[1]}, v{B[0]} offset:{L_ST}")
    a(f"v_mov_b32 {VKV}, v{T[0]}")
    if CPF: codetouch()
    a(f"s_waitcnt vmcnt({18+CPF})")
    U = [B[0] + i for i in range(8)]
    for i in range(4):
        a(f"v_lshlrev_b32 v{U[2*i]}, 16, v{x0+i}"); a(f"v_and_b32 v{U[2*i+1]}, {HI}, v{x0+i}")
    U2 = [x0 + i for i in range(4)] + [Q + i for i in range(4)]
    for i in range(4): a(f"v_lshlrev_b32 v{U2[2*i]}, 16, v{x1+i}")
    for i in range(4): a(f"v_and_b32 v{U2[2*i+1]}, {HI}, v{x1+i}")
    sm = f"v{T[0]}"; t_ = f"v{T[1]}"; q2 = f"v{T[2]}"
    a(f"v_add_f32 {sm}, v{U[0]}, v{U[1]}")
    for r in U[2:] + U2: a(f"v_add_f32 {sm}, {sm}, v{r}")
    allred16([sm]); allred_rows(sm, t_)
    a(f"v_mul_f32 {sm}, {f32(1/576)}, {sm}")
    for r in U: a(f"v_sub_f32 v{r}, v{r}, {sm}")
    a(f"v_mul_f32 {q2}, v{U[0]}, v{U[0]}")
    for r in U[1:]: a(f"v_fmac_f32 {q2}, v{r}, v{r}")
    a("s_mov_b64 exec, 0xff")
    for r in U2: a(f"v_sub_f32 v{r}, v{r}, {sm}")
    for r in U2: a(f"v_fmac_f32 {q2}, v{r}, v{r}")
    a("s_mov_b64 exec, -1")
    allred16([q2]); allred_rows(q2, t_)
    a(f"v_mul_f32 {q2}, {f32(1/576)}, {q2}")
    rbf(sm, sm); rbf(q2, q2)
    a(f"v_add_f32 {q2}, {f32(1e-5)}, {q2}"); rbf(q2, q2)
    a(f"v_sqrt_f32 {q2}, {q2}"); rbf(q2, q2)
    a(f"v_rcp_f32 {q2}, {q2}")
    for i in range(9):
        lo, hi = f"v{T[3]}", f"v{T[4]}"
        a(f"v_lshlrev_b32 {lo}, 16, v{S+i}"); a(f"v_and_b32 {hi}, {HI}, v{S+i}")
        a(f"v_sub_f32 {lo}, {lo}, {sm}"); a(f"v_sub_f32 {hi}, {hi}, {sm}")
        a(f"v_cvt_pk_bf16_f32 v{S+i}, {lo}, {hi}")
        a(f"v_lshlrev_b32 {lo}, 16, v{S+i}"); a(f"v_and_b32 {hi}, {HI}, v{S+i}")
        a(f"v_mul_f32 {lo}, {lo}, {q2}"); a(f"v_mul_f32 {hi}, {hi}, {q2}")
        a(f"v_cvt_pk_bf16_f32 v{S+i}, {lo}, {hi}")
    a("s_mov_b32 s72, 0x01000100"); a("s_mov_b32 s73, 0x03020302")
    a("s_waitcnt lgkmcnt(0)")
    tag_setup()
    a(f"s_lshl_b32 s3, {HEAD}, 13"); a(f"s_add_u32 s3, s3, {Q0}"); a(f"v_add_u32 {VL}, s3, {VKV}")
    a(f"s_lshl_b32 s62, {SPLIT}, 10")
    a("s_mov_b32 s74, 0xff00ff00"); a("s_mov_b32 s75, 0xff00ff00")
    for t in range(18):
        b = B[t & 1]
        a(f"v_perm_b32 v{T[0]}, v{S+t//2}, v{S+t//2}, {'s73' if t & 1 else 's72'}")
        selector(b, f"v{T[0]}")
        a(f"s_waitcnt vmcnt({17-t+CPF})")
        mfma(WQ[t], b, first=(t == 0))
    a(f"v_mov_b32 v{B[0]+1}, {EP1}"); a(f"v_mov_b32 v{B[0]+3}, {EP1}")
    a(f"v_cndmask_b32 v{B[0]}, v{D}, v{D+2}, s[74:75]"); a(f"v_cndmask_b32 v{B[0]+2}, v{D+1}, v{D+3}, s[74:75]")
    if qfast:
        a(f"s_add_u32 s3, s62, {FAST}"); a(f"buffer_store_dwordx4 {v4(B[0])}, {VL}, {sWS}, s3 offen")
    a(f"buffer_store_dwordx4 {v4(B[0])}, {VL}, {sWS}, s62 offen sc1")
    stamp("qpub")
    if fast1:
        a("s_getreg_b32 s78, hwreg(HW_REG_XCC_ID, 0, 4)")
        a(f"s_lshl_b32 s3, {EP1}, 4"); a("s_or_b32 s3, s3, s78"); a(f"v_mov_b32 v{T[0]}, s3")
        a("s_and_b32 s3, s2, 7"); a("s_lshl_b32 s3, s3, 5"); a("s_lshr_b32 s62, s2, 3"); a("s_add_u32 s3, s3, s62")
        a("s_lshl_b32 s3, s3, 2"); a(f"s_add_u32 s3, s3, {XC}"); a(f"v_mov_b32 v{T[1]}, s3")
        a("s_mov_b64 exec, 1"); a(f"buffer_store_dword v{T[0]}, v{T[1]}, {sWS}, 0 offen sc1"); a("s_mov_b64 exec, -1")
        a(f"s_mov_b32 s61, {FAST}")
    a(f"v_lshrrev_b32 {VF}, 3, {LANE}"); a(f"v_lshlrev_b32 {VF}, 5, {VF}"); a(f"v_and_b32 v{T[1]}, 7, {LANE}"); a(f"v_lshl_add_u32 {VF}, v{T[1]}, 1, {VF}")
    a(f"s_mov_b32 s60, {FAST if qfast else 0}"); a("s_add_u32 s62, s60, 0x1000")
    if qsleep: a(f"s_sleep {qsleep}")
    a(f"s_mov_b32 {CNT}, 0x8000")
    a.label("L_pq")
    for i in range(8): a(f"buffer_load_dwordx4 {v4(WQ[i])}, {VL}, {sWS}, {'s60' if i < 4 else 's62'} offen offset:{(i & 3) * 1024} sc1")
    for i in range(8):
        a(f"s_waitcnt vmcnt({7-i})")
        a(f"v_bitop3_b32 v{T[1]}, v{WQ[i]+1}, v{WQ[i]+3}, {EP1} bitop3:0x7e")
        a(f"v_mov_b32 v{T[0]}, v{T[1]}" if i == 0 else f"v_or_b32 v{T[0]}, v{T[0]}, v{T[1]}")
    a(f"v_cmp_ne_u32 vcc, 0, v{T[0]}")
    a("s_cbranch_vccz L_pq_ok")
    if qsl2: a(f"s_sleep {qsl2}")
    if qfast: a(f"s_cmp_gt_u32 {CNT}, {0x8000 - qfast + 1}"); a("s_cselect_b32 s60, s60, 0"); a("s_add_u32 s62, s60, 0x1000")
    a(f"s_sub_u32 {CNT}, {CNT}, 1"); a(f"s_cmp_lg_u32 {CNT}, 0"); a("s_cbranch_scc1 L_pq")
    a.label("L_pq_ok")
    if diag and "polls" in names:
        i = names.index("polls"); a(f"s_sub_u32 s{80+2*i}, 0x8001, {CNT}")
    for i in range(1, 8):
        a(f"v_add_f32 v{WQ[0]}, v{WQ[0]}, v{WQ[i]}"); a(f"v_add_f32 v{WQ[0]+2}, v{WQ[0]+2}, v{WQ[i]+2}")
    a(f"v_cvt_pk_bf16_f32 v{WQ[0]}, v{WQ[0]}, v{WQ[0]+2}")
    a(f"ds_write_b16 {VF}, v{WQ[0]} offset:{L_Q}"); a(f"ds_write_b16_d16_hi {VF}, v{WQ[0]} offset:{L_Q + 16}")
    a("s_waitcnt lgkmcnt(0)")
    if thr:
        a(f"v_mov_b32 v{T[0]}, 7"); a(f"v_mov_b32 v{T[1]}, 0"); a(f"ds_write_b32 v{T[1]}, v{T[0]} offset:{L_ROLE+8}")
        a("s_waitcnt lgkmcnt(0)")
    if adapt:
        a(f"v_mov_b32 v{T[0]}, {adapt[3]}"); a(f"v_mov_b32 v{T[1]}, 0"); a(f"ds_write_b32 v{T[1]}, v{T[0]} offset:{L_ROLE+8}")
        a("s_waitcnt lgkmcnt(0)")
    stamp("qgot")
    a("s_barrier")
    def progress():
        a("s_lshr_b32 s3, s2, 3"); a("s_lshl_b32 s3, s3, 7"); a(f"s_add_u32 s72, s3, {KD}")
        a("s_and_b32 s73, s2, 7"); a("s_lshl_b32 s3, s73, 2")
        a(f"v_mov_b32 v{S+4}, {EP1}"); a(f"v_mov_b32 v{S+5}, s3"); a(f"v_lshlrev_b32 v{S+6}, 2, {LANE}")
        a("s_mov_b64 exec, 0xff"); a(f"buffer_load_dword v{S+7}, v{S+6}, {sWS}, s72 offen sc1")
        a("s_mov_b64 exec, 1"); a(f"buffer_store_dword v{S+4}, v{S+5}, {sWS}, s72 offen sc1")
        a("s_mov_b64 exec, 0xff"); a("s_waitcnt vmcnt(1)")
        a(f"v_cmp_eq_u32 vcc, {EP1}, v{S+7}"); a("s_mov_b64 exec, -1")
        a("s_bcnt1_i32_b32 s3, vcc_lo")
        a(f"v_mov_b32 v{S+4}, s3"); a(f"v_mov_b32 v{S+5}, 0"); a(f"ds_write_b32 v{S+5}, v{S+4} offset:{L_ROLE+8}")
    if thr: progress()
    a(f"v_mov_b32 v{T[0]}, {VKV}")
    if codepf: codetouch()
    if pads:
        a("s_mov_b64 exec, 0"); a("s_cbranch_execz P_pub_0")
        a.label("L_warm1")
        a(f"s_cmp_lt_u32 {RID}, 144"); a("s_cbranch_scc1 P_ffn_0")
        a(f"s_cmp_lt_u32 {RID}, 216"); a("s_cbranch_scc1 P_wo_0")
        a("s_branch P_red_0")
        a.label("L_warm2")
        a("s_mov_b64 exec, -1")
    a(f"s_lshl_b32 s3, {HEAD}, 3"); a(f"s_add_u32 s3, s3, {SPLIT}")
    a(f"s_lshl_b32 s62, s3, 9"); a(f"s_add_u32 s62, s62, {O1}"); a(f"v_add_u32 {VW}, s62, v{T[0]}")
    a("s_lshl_b32 s62, s3, 4"); a(f"s_add_u32 s62, s62, {ML}"); a(f"v_writelane_b32 {VW}, s62, 32")
    a(f"v_and_b32 {VKV}, 0x1f0, v{T[0]}"); a(f"v_lshrrev_b32 v{T[1]}, 5, {LANE}"); a(f"v_lshl_add_u32 {VKV}, v{T[1]}, 11, {VKV}")
    HT = [Q, B[0], B[1]]
    def half_sum():
        if not trim:
            for r in range(4): a(f"v_mov_b32 v{T[r]}, v{D+r}")
        for r in range(4): a(f"v_permlane32_swap_b32 v{D+r}, v{T[r]}")
        for r in range(4): a(f"v_add_f32 v{D+r}, v{D+r}, v{T[r]}")
    a("s_barrier")
    if dyn:
        a(f"v_mov_b32 {VL}, 1"); a(f"v_mov_b32 {VF}, 0")
        a("s_mov_b64 exec, 1")
        a(f"buffer_atomic_add {VL}, {VF}, s[96:99], 0 offen sc0 sc1")
        a("s_mov_b64 exec, -1")
    if adapt: progress()
    def groups_done():
        a("s_mov_b64 exec, 0xff"); a(f"buffer_load_dword v{S+7}, v{S+6}, {sWS}, 0 offen sc1"); a("s_waitcnt vmcnt(0)")
        a(f"v_bitop3_b32 v{S+7}, v{S+7}, {VTAG}, {TLOW} bitop3:0x28"); a(f"v_cmp_eq_u32 vcc, 0, v{S+7}"); a("s_mov_b64 exec, -1")
        a("s_bcnt1_i32_b32 s3, vcc_lo")
    if gate:
        assert rep2
        a("s_and_b32 s3, s2, 7"); a("s_lshl_b32 s3, s3, 15"); a(f"s_add_u32 s3, s3, {Z2R}"); a(f"v_lshl_add_u32 v{S+6}, {LANE}, 8, s3")
        groups_done()
        a(f"s_cmp_ge_u32 s3, {gate[0]}"); a("s_cselect_b32 s72, 1, 0")
        a(f"v_mov_b32 v{S+4}, s72"); a(f"v_mov_b32 v{S+5}, 0"); a(f"ds_write_b32 v{S+5}, v{S+4} offset:{L_ROLE+8}")
        if diag and "rank" in names: a(f"s_add_u32 s{80+2*names.index('rank')}, s3, 1")
    if fast1:
        a("s_and_b32 s3, s2, 7"); a("s_lshl_b32 s3, s3, 7"); a(f"s_add_u32 s3, s3, {XC}")
        a(f"v_and_b32 v{S}, 31, {LANE}"); a(f"v_lshlrev_b32 v{S}, 2, v{S}")
        a(f"buffer_load_dword v{S}, v{S}, {sWS}, s3 offen sc1")
    wgmax(VM)
    if dyn:
        a("s_waitcnt vmcnt(0)")
        stamp("claim")
        a(f"v_readfirstlane_b32 {RID}, {VL}")
        a("s_mov_b64 exec, 1"); a(f"ds_write_b32 {VF}, {VL} offset:{L_ROLE}"); a("s_mov_b64 exec, -1")
        role_setup()
        a("s_waitcnt lgkmcnt(0)")
    if fast1:
        a("s_waitcnt vmcnt(0)")
        a(f"s_lshl_b32 s3, {EP1}, 4"); a("s_or_b32 s3, s3, s78")
        a(f"v_cmp_ne_u32 vcc, s3, v{S}")
        a("s_cmp_eq_u32 vcc_lo, 0"); a(f"s_cselect_b32 s3, {FAST}, 0")
        a(f"v_mov_b32 v{T[0]}, s3"); a(f"v_mov_b32 {VF}, 0"); a(f"ds_write_b32 {VF}, v{T[0]} offset:{L_ROLE+4}")
        a("s_waitcnt lgkmcnt(0)")
    a(f"v_mov_b32 {VF}, 0")
    a.mark("chain", "P_pub", "L_warm1")
    a("s_barrier")
    a(f"ds_read_b128 {v4(F[0])}, {VF} offset:{L_LW}"); a(f"ds_read_b128 {v4(F[1])}, {VF} offset:{L_LW+16}")
    stamp("b3")
    sum_parts(VKV, D, HT, 4, 512)
    for r in range(4): a(f"v_add_f32 v{F[0]+r}, v{F[0]+r}, v{F[1]+r}")
    half_sum()
    a(f"v_add_f32 v{F[0]}, v{F[0]}, v{F[0]+1}"); a(f"v_add_f32 v{F[0]+2}, v{F[0]+2}, v{F[0]+3}")
    a("s_mov_b32 exec_lo, 0"); a("s_mov_b32 exec_hi, 1")
    a(f"v_add_f32 v{D+1}, v{F[0]}, v{F[0]+2}"); a(f"v_mov_b32 v{D}, {VM}"); a(f"v_mov_b32 v{D+2}, {VM}"); a(f"v_mov_b32 v{D+3}, {VM}")
    a("s_mov_b32 exec_lo, -1")
    for i in range(4): a(f"v_and_or_b32 v{D+i}, v{D+i}, {TMASK}, {VTAG}")
    if fast1: a(f"buffer_store_dwordx4 {v4(D)}, {VW}, {sWS}, s61 offen")
    a(f"buffer_store_dwordx4 {v4(D)}, {VW}, {sWS}, 0 offen sc1")
    stamp("ostore")
    a("s_mov_b64 exec, -1")
    if gate:
        a.mark("nopad", 1)
        a(f"s_sub_u32 s3, {RID}, 144"); a("s_cmp_lt_u32 s3, 72"); a("s_cbranch_scc1 L_gate_ok")
        a("s_cmp_lg_u32 s72, 0"); a("s_cbranch_scc1 L_gate_ok")
        a(f"s_mov_b32 {CNT}, 0x8000")
        a.label("L_gate")
        groups_done()
        a(f"s_cmp_ge_u32 s3, {gate[1]}"); a("s_cbranch_scc1 L_gate_ok")
        a("s_sleep 2")
        a(f"s_sub_u32 {CNT}, {CNT}, 1"); a(f"s_cmp_lg_u32 {CNT}, 0"); a("s_cbranch_scc1 L_gate")
        a.label("L_gate_ok")
        a.mark("nopad", 0)
    a("s_barrier")
    a("s_setprio 0")

    a.label("L_tail")
    stamp("tail")
    a(f"s_cmp_lt_u32 {RID}, 144"); a("s_cbranch_scc1 L_ffn")
    a(f"s_cmp_lt_u32 {RID}, 216"); a("s_cbranch_scc1 L_wo")
    if t2 == "red":
        a("s_and_b32 s3, s2, 7"); a(f"s_mul_i32 s3, s3, {576*1152}")
        a("s_lshr_b32 s62, s2, 3"); a("s_sub_u32 s62, s62, 27"); a(f"s_mul_i32 s62, s62, {1037*128}")
        a(f"s_sub_u32 s42, {576*1152}, s62"); a(f"s_min_u32 s42, s42, {1037*128}"); a("s_add_u32 s3, s3, s62")
        a("s_add_u32 s40, s20, s3"); a("s_addc_u32 s41, s21, 0")
        a(f"s_lshl_b32 s3, {WAVE}, 14"); a(f"v_lshl_add_u32 v{T[0]}, {LANE}, 7, s3"); a("s_movk_i32 s3, 0x2000")
        a(f"buffer_load_dword v{S+14}, v{T[0]}, s[40:43], 0 offen"); a(f"buffer_load_dword v{S+15}, v{T[0]}, s[40:43], s3 offen")
    a(f"s_cmp_lt_u32 {RID}, 252"); a("s_cbranch_scc1 L_red")
    a("s_branch L_done")
    a.mark("end")

    a.label("L_wo")
    a.mark("chain", "P_wo", "L_warm2")
    a(f"s_cmp_eq_u32 {WAVE}, 8"); a("s_cbranch_scc1 L_wo_pub")
    OA, OB, MLr = F[0], F[1], F[2]
    for i in range(EW, 8):
        if i - EW >= Ww: a(f"s_waitcnt vmcnt({Ww-1})")
        gload(i, G[i])
    a(f"s_and_b32 s3, {RID}, 7"); a("s_lshl_b32 s3, s3, 2"); a(f"s_lshr_b32 s62, {WAVE}, 1"); a("s_add_u32 s3, s3, s62")
    a(f"s_lshl_b32 s62, s3, 12"); a(f"s_and_b32 s60, {WAVE}, 1"); a("s_lshl_b32 s60, s60, 8"); a("s_add_u32 s62, s62, s60")
    a(f"s_add_u32 s62, s62, {O1}")
    a(f"v_lshrrev_b32 v{T[4]}, 4, {LANE}"); a(f"v_and_b32 v{T[5]}, 15, {LANE}")
    a(f"v_lshlrev_b32 {VKV}, 9, v{T[4]}"); a(f"v_lshl_add_u32 {VKV}, v{T[5]}, 4, {VKV}"); a(f"v_add_u32 {VKV}, s62, {VKV}")
    a("s_lshl_b32 s62, s3, 7"); a(f"s_add_u32 s62, s62, {ML}")
    a(f"v_bfe_u32 v{T[6]}, {LANE}, 3, 1"); a(f"v_lshl_add_u32 v{T[6]}, v{T[6]}, 2, v{T[4]}")
    a(f"v_lshlrev_b32 {VW}, 4, v{T[6]}"); a(f"v_add_u32 {VW}, s62, {VW}")
    part_addr(VM, True)
    a("s_mov_b32 s74, 0xff00ff00"); a("s_mov_b32 s75, 0xff00ff00")
    ld1 = lambda i, r: (f"buffer_load_dwordx4 {v4(r)}, {VW}, {sWS}, s61 offen sc1",
                        f"buffer_load_dwordx4 {v4(r)}, {VKV}, {sWS}, s61 offen sc1",
                        f"buffer_load_dwordx4 {v4(r)}, {VKV}, {sWS}, s61 offen offset:2048 sc1")[i]
    ppoll("L_p1", ld1, [MLr, OA, OB], [F[3+3*k:6+3*k] for k in range(PD1)])
    stamp("got")
    m1, l1, m2, l2, M, t = (f"v{T[i]}" for i in range(6))
    m1, l1 = f"v{MLr}", f"v{MLr+1}"
    dpp("v_max_f32", M, m1, m1, "row_ror:8"); allred_rows(M, t, "v_max_f32")
    a(f"v_sub_f32 {m1}, {m1}, {M}"); a(f"v_mul_f32 {m1}, {LOG2E}, {m1}"); a(f"v_exp_f32 {m1}, {m1}")
    a(f"v_mul_f32 {l1}, {l1}, {m1}")
    a(f"v_mov_b32_dpp {m2}, {m1} row_ror:8 row_mask:0xf bank_mask:0xf")
    dpp("v_add_f32", l1, l1, l1, "row_ror:8")
    a(f"v_cndmask_b32 {l2}, {m1}, {m2}, s[74:75]"); a(f"v_cndmask_b32 {m2}, {m2}, {m1}, s[74:75]")
    for i in range(4): a(f"v_mul_f32 v{OA+i}, v{OA+i}, {l2}")
    for i in range(4): a(f"v_fmac_f32 v{OA+i}, v{OB+i}, {m2}")
    a(f"v_mov_b32 {t}, {l1}")
    a(f"v_permlane16_swap_b32 v{OA}, v{OA+1}"); a(f"v_permlane16_swap_b32 {l1}, {t}"); a(f"v_permlane16_swap_b32 v{OA+2}, v{OA+3}")
    a(f"v_add_f32 {l1}, {l1}, {t}"); a(f"v_add_f32 v{OA}, v{OA}, v{OA+1}"); a(f"v_mov_b32 {t}, {l1}"); a(f"v_add_f32 v{OA+2}, v{OA+2}, v{OA+3}")
    a(f"v_permlane32_swap_b32 {l1}, {t}"); a(f"v_permlane32_swap_b32 v{OA}, v{OA+2}")
    a(f"v_add_f32 {l1}, {l1}, {t}"); a(f"v_add_f32 v{OA}, v{OA}, v{OA+2}")
    a(f"v_rcp_f32 {l1}, {l1}")
    a(f"v_mul_f32 v{OA}, v{OA}, {l1}")
    a(f"v_cvt_pk_bf16_f32 v{OA}, v{OA}, v{OA}")
    stamp("f2a")
    mfma_chain(8, bcast_src(f"v{OA}"), lambda t: G[t])
    stamp("f3a")
    setexec(TWO)
    a(f"ds_write_b128 {VM}, {v4(D)}")
    a("s_waitcnt lgkmcnt(0)"); a("s_barrier")
    a("s_branch L_done")
    a.label("L_wo_pub")
    a(f"s_and_b32 s3, {RID}, 7"); a("s_lshl_b32 s3, s3, 8"); a(f"s_lshl_b32 s62, {ROLE}, 11"); a("s_add_u32 s3, s3, s62"); a(f"s_add_u32 s3, s3, {Z2R if rep2 else Z2}")
    a(f"v_lshrrev_b32 v{T[4]}, 4, {LANE}"); a(f"v_and_b32 v{T[5]}, 15, {LANE}"); a(f"v_lshlrev_b32 v{T[5]}, 4, v{T[5]}")
    a(f"v_lshl_add_u32 {VKV}, v{T[4]}, 10, v{T[5]}")
    a(f"v_lshl_add_u32 {VW}, v{T[4]}, {15 if rep2 else 2}, v{T[5]}"); a(f"v_add_u32 {VW}, s3, {VW}")
    a(f"s_mov_b32 s62, {4*Z2S}")
    a("s_barrier")
    stamp("b6")
    sum_parts(VKV, D, HT, 4, 256)
    if rep2:
        for sw in ("32", "16"):
            for r in range(4): a(f"v_mov_b32 v{T[r]}, v{D+r}")
            for r in range(4): a(f"v_permlane{sw}_swap_b32 v{D+r}, v{T[r]}")
            for r in range(4): a(f"v_add_f32 v{D+r}, v{D+r}, v{T[r]}")
        for r in range(4): a(f"v_and_or_b32 v{D+r}, v{D+r}, {TMASK}, {VTAG}")
        a(f"buffer_store_dwordx4 {v4(D)}, {VW}, {sWS}, 0 offen sc1")
        a(f"buffer_store_dwordx4 {v4(D)}, {VW}, {sWS}, s62 offen sc1")
    elif pub2x4:
        for sw in ("32", "16"):
            for r in range(4): a(f"v_permlane{sw}_swap_b32 v{D+r}, v{T[r]}")
            for r in range(4): a(f"v_add_f32 v{D+r}, v{D+r}, v{T[r]}")
        a("s_mov_b64 exec, 0xffff")
        for r in range(4): a(f"v_and_or_b32 v{D+r}, v{D+r}, {TMASK}, {VTAG}")
        a(f"buffer_store_dwordx4 {v4(D)}, {VW}, {sWS}, 0 offen sc1")
    else:
        rows_scatter(*(f"v{D+i}" for i in range(4)))
        a(f"v_and_or_b32 v{D}, v{D}, {TMASK}, {VTAG}")
        a(f"buffer_store_dword v{D}, {VW}, {sWS}, 0 offen sc1")
    stamp("pub")
    a("s_branch L_done")

    a.mark("end")
    a.label("L_ffn")
    a.mark("chain", "P_ffn", "L_warm2")
    W13 = F[0:8]; ZA, ZB = F[9], F[10]; HX = F[11]
    AD = f"v[{HX}:{HX+1}]"
    a(f"s_mov_b32 s54, {32*1152}")
    G2 = G + [F[8], F[14], F[15], F[16]]
    def w2loads(tag):
        a(f"s_cmp_ge_u32 {WAVE}, 4"); a(f"s_cbranch_scc1 L_w2{tag}")
        for t in range(4):
            for b in range(3):
                so = (("0", "s76"), ("0", "s76"), ("s12", "s13"))[b][t >> 1]
                a(f"buffer_load_dwordx4 {v4(G2[4*b+t])}, {VG}, {sG}, {so} offen offset:{(t & 1) * 2304 + 512 * b} {wpol}")
        a.label(f"L_w2{tag}")
    a(f"s_cmp_eq_u32 {WAVE}, 0"); a("s_cselect_b32 s12, 0, 0x40000000"); a("s_add_u32 s13, s12, s76")
    a(f"v_lshrrev_b32 v{T[4]}, 4, {LANE}"); a(f"v_bfe_u32 v{T[5]}, {LANE}, 3, 1"); a(f"v_lshl_add_u32 v{T[6]}, v{T[4]}, 3, v{T[5]}")
    a(f"s_lshl_b32 s3, {WAVE}, 6"); a(f"v_add_u32 v{T[6]}, s3, v{T[6]}"); a(f"v_mul_u32_u24 v{T[6]}, 9216, v{T[6]}")
    a(f"v_and_b32 v{T[7]}, 3, {LANE}"); a(f"v_lshl_add_u32 v{T[6]}, v{T[7]}, 4, v{T[6]}")
    a(f"s_lshl_b32 s62, {ROLE}, 6"); a(f"v_add_u32 v{T[6]}, s62, v{T[6]}")
    a("s_mov_b32 s74, 0xf0f0f0f0"); a("s_mov_b32 s75, 0xf0f0f0f0")
    a(f"v_mov_b32 v{HX}, s16"); a(f"v_mov_b32 v{HX+1}, s17"); a(f"v_mov_b32 v{HX+2}, s18"); a(f"v_mov_b32 v{HX+3}, s19")
    a(f"v_cndmask_b32 v{HX}, v{HX}, v{HX+2}, s[74:75]"); a(f"v_cndmask_b32 v{HX+1}, v{HX+1}, v{HX+3}, s[74:75]")
    a(f"v_add_co_u32 v{HX}, vcc, v{HX}, v{T[6]}"); a(f"v_addc_co_u32 v{HX+1}, vcc, 0, v{HX+1}, vcc")
    a(f"s_movk_i32 s72, {2*9216}"); a("s_mov_b32 s73, 0"); a(f"s_mov_b32 s10, {26*9216}"); a("s_mov_b32 s11, 0")
    for tt in range(8):
        if not now13: a(f"global_load_dwordx4 {v4(W13[tt])}, {AD}, off {wpol}")
        if tt < 7: a(f"v_lshl_add_u64 {AD}, {'s[10:11]' if tt == 3 else 's[72:73]'}, 0, {AD}")
    a(f"v_lshl_add_u32 {VL}, v{T[5]}, 2, v{T[4]}"); a(f"v_and_b32 v{T[6]}, 7, {LANE}"); a(f"v_lshl_add_u32 {VL}, {VL}, 3, v{T[6]}")
    a(f"v_add_u32 {VL}, s3, {VL}"); a(f"v_lshlrev_b32 {VL}, 1, {VL}")
    a(f"buffer_load_ushort v{HX+2}, {VL}, {sX}, 0 offen")
    def z2base():
        if rep2: a("s_and_b32 s62, s2, 7"); a("s_lshl_b32 s62, s62, 15"); a("s_add_u32 s3, s3, s62")
        a(f"s_add_u32 s3, s3, {Z2R if rep2 else Z2}")
    a(f"v_and_b32 v{T[5]}, 15, {LANE}")
    a(f"s_lshl_b32 s3, {WAVE}, 11"); z2base()
    a(f"v_lshlrev_b32 {VKV}, 8, v{T[4]}"); a(f"v_lshl_add_u32 {VKV}, v{T[5]}, 4, {VKV}"); a(f"v_add_u32 {VKV}, s3, {VKV}")
    part_addr(VM, True)
    a(f"v_bfe_u32 {VW}, {LANE}, 4, 1"); a(f"v_lshlrev_b32 {VW}, 2, {VW}"); a(f"s_lshl_b32 s3, {WAVE}, 3"); a(f"v_add_u32 {VW}, s3, {VW}")
    VR, VO, VS, V8 = (f"v{S+i}" for i in (1, 2, 3, 8)); E = S + 4
    a(f"v_and_b32 {V8}, 31, {LANE}"); a(f"v_lshlrev_b32 {V8}, 4, {V8}")
    a(f"v_lshrrev_b32 {VR}, 5, {LANE}"); a(f"v_lshl_add_u32 {VR}, {VR}, 11, {V8}")
    if rmaj:
        a(f"s_lshl_b32 s3, {ROLE}, 6"); a(f"s_mul_i32 s62, {WAVE}, {4*9216}"); a("s_add_u32 s3, s3, s62"); a(f"s_add_u32 s3, s3, {P3}")
        a(f"v_bfe_u32 {VO}, {LANE}, 2, 1"); a(f"v_lshl_add_u32 {VO}, v{T[4]}, 1, {VO}"); a(f"v_mul_u32_u24 {VO}, 9216, {VO}")
        a(f"v_and_b32 v{T[7]}, 3, {LANE}"); a(f"v_lshl_add_u32 {VO}, v{T[7]}, 4, {VO}"); a(f"v_add_u32 {VO}, s3, {VO}")
    else:
        a(f"s_mul_i32 s3, {ROLE}, 2304"); a(f"s_lshl_b32 s62, {WAVE}, 8"); a("s_add_u32 s3, s3, s62"); a(f"s_add_u32 s3, s3, {P3}")
        a(f"v_lshlrev_b32 {VO}, 7, v{T[4]}"); a(f"v_lshl_add_u32 {VO}, v{T[6]}, 4, {VO}"); a(f"v_add_u32 {VO}, s3, {VO}")
    a("s_mov_b32 s74, 0xff00ff00"); a("s_mov_b32 s75, 0xff00ff00")
    a("s_mov_b32 s72, 0xffff0000"); a("s_mov_b32 s73, 0xffff0000")
    a(f"v_lshlrev_b32 {VS}, 3, v{T[5]}")
    def colsums(n):
        a(f"v_mov_b32 v{T[0]}, 0x3f803f80"); selector(B[0], f"v{T[0]}")
        for t in range(8):
            a(f"s_waitcnt vmcnt({n + 1 + 7 - t})")
            mfma(W13[t], B[0], first=(t == 0), dst=Q)
        stamp("wts")
        for r in range(4): a(f"v_permlane32_swap_b32 v{Q+r}, v{B[1]+r}")
        for r in range(4): dpp("v_add_f32", f"v{E+r}", f"v{B[1]+r}", f"v{Q+r}", "row_ror:8")
        if w2at == "after": a("s_waitcnt vmcnt(0)"); w2loads("a"); a("s_branch L_p2_re")
    ld2 = lambda i, r: f"buffer_load_dwordx4 {v4(r)}, {VKV}, {sWS}, 0 offen offset:{1024*i} sc1"
    if f2lds:
        VX, VY = f"v{S+9}", f"v{S+10}"
        a(f"s_lshl_b32 s3, {WAVE}, 8"); a(f"s_add_u32 s3, s3, {L_H}")
        a(f"v_and_b32 {VX}, 1, {LANE}"); a(f"v_lshl_add_u32 {VX}, v{T[4]}, 1, {VX}"); a(f"v_lshlrev_b32 {VX}, 5, {VX}")
        a(f"v_bfe_u32 v{T[7]}, {LANE}, 1, 3"); a(f"v_lshl_add_u32 {VX}, v{T[7]}, 2, {VX}"); a(f"v_add_u32 {VX}, s3, {VX}")
        a(f"v_lshrrev_b32 {VY}, 3, {LANE}"); a(f"v_lshl_add_u32 {VY}, {VY}, 5, s3")
    ppoll("L_p2", ld2, [ZA, ZB], [F[12:14]], sleep2, first=colsums)
    stamp("got")
    if w2at == "got": w2loads("g")
    for i in range(4): a(f"v_add_f32 v{ZA+i}, v{ZA+i}, v{ZB+i}")
    a(f"v_lshlrev_b32 v{HX+2}, 16, v{HX+2}")
    rows_scatter(*(f"v{ZA+i}" for i in range(4)))
    h, h2, hd = f"v{ZA}", f"v{ZA+1}", f"v{ZA+2}"
    rbf(h, h); a(f"v_add_f32 {h}, {h}, v{HX+2}")
    a(f"v_cvt_pk_bf16_f32 {hd}, {h}, {h}"); a(f"v_and_b32 {h}, {HI}, {hd}")
    stat = [lambda st=st, r=r: dpp("v_add_f32", r, r, r, f"row_ror:{st}") for st in (8, 4, 2, 1) for r in (h, h2)]
    def f2pre(t):
        if t < fill and not f2lds: stat[t]()
        if t == 4 and w2at == "mid": w2loads("m")
    if f2lds:
        a(f"ds_write_b32 {VX}, {hd}")
        a(f"ds_read_b128 {v4(ZB)}, {VY}"); a(f"ds_read_b128 {v4(Q)}, {VY} offset:16")
        a(f"v_mul_f32 {h2}, {h}, {h}")
        for f_ in stat: f_()
        fill = 8
        def lsrc(t):
            if t == 0: a("s_waitcnt lgkmcnt(1)")
            if t == 4: a("s_waitcnt lgkmcnt(0)")
        lsrc.reg = lambda t: f"v{(ZB if t < 4 else Q) + t % 4}"
        lsrc(0); selector(B[0], lsrc.reg(0))
        for t in range(8):
            if t < 7: lsrc(t + 1); selector(B[(t + 1) & 1], lsrc.reg(t + 1))
            f2pre(t)
            mfma(W13[t], B[t & 1], first=(t == 0))
    else:
        a(f"v_mul_f32 {h2}, {h}, {h}")
        mfma_chain(8, bcast_src(hd), lambda t: W13[t], pre=f2pre)
    if w2at == "end": w2loads("e")
    stamp("f2a")
    for f_ in stat[fill:]: f_()
    a(f"v_permlane16_swap_b32 {h}, {h2}"); a(f"v_add_f32 {h}, {h}, {h2}")
    a(f"v_mov_b32 {h2}, {h}"); a(f"v_permlane32_swap_b32 {h}, {h2}"); a(f"v_add_f32 {h}, {h}, {h2}")
    for r in range(4): a(f"v_permlane32_swap_b32 v{D+r}, v{E+r}")
    a("s_mov_b64 exec, 0x00010001")
    a(f"ds_write_b32 {VW}, {h} offset:{L_ST}")
    a("s_mov_b64 exec, -1")
    for r in range(4): a(f"v_add_f32_dpp v{D+r}, v{E+r}, v{D+r} row_ror:8 row_mask:0x3 bank_mask:0xf")
    setexec(PLAIN)
    a(f"ds_write_b128 {VM}, {v4(D)}")
    a("s_mov_b64 exec, -1")
    a("s_waitcnt lgkmcnt(0)"); a("s_barrier")
    stamp("b6")
    a(f"s_cmp_ge_u32 {WAVE}, 4"); a("s_cbranch_scc1 L_done")
    mu, var = f"v{T[0]}", f"v{T[1]}"
    a(f"ds_read_b64 v[{T[0]}:{T[1]}], {VS} offset:{L_ST}")
    RD = [ZA, ZB, Q, HX, E]
    for i in range(4): a(f"ds_read_b128 {v4(RD[i])}, {VR} offset:{L_P + 512*i}")
    a(f"ds_read_b128 {v4(RD[4])}, {V8} offset:{L_P + 512*8}")
    if w2at == "b6": w2loads("b")
    a("s_waitcnt lgkmcnt(5)")
    adds = [lambda i=i, r=r: a(f"v_add_f32 v{ZA+r}, v{ZA+r}, v{RD[i]+r}" if i < 4 else f"v_fmac_f32 v{ZA+r}, 0.5, v{RD[i]+r}") for i in range(1, 5) for r in range(4)]
    dpp("v_add_f32", mu, mu, mu, "row_ror:8"); dpp("v_add_f32", var, var, var, "row_ror:8")
    a("s_waitcnt lgkmcnt(3)")
    for k, st in enumerate((4, 2, 1)):
        adds[k](); dpp("v_add_f32", mu, mu, mu, f"row_ror:{st}"); dpp("v_add_f32", var, var, var, f"row_ror:{st}")
    adds[3]()
    a("s_waitcnt lgkmcnt(2)")
    chain = [f"v_mul_f32 {mu}, {f32(1/576)}, {mu}", f"v_mul_f32 {var}, {f32(1/576)}, {var}", f"v_fma_f32 {var}, -{mu}, {mu}, {var}",
             f"v_cvt_pk_bf16_f32 {mu}, {mu}, {mu}", f"v_max_f32 {var}, 0, {var}", f"v_and_b32 {mu}, {HI}, {mu}",
             f"v_cvt_pk_bf16_f32 {var}, {var}, {var}", f"v_cndmask_b32 {mu}, -1.0, {mu}, s[72:73]", f"v_and_b32 {var}, {HI}, {var}",
             f"v_add_f32 {var}, {f32(1e-5)}, {var}", f"v_cvt_pk_bf16_f32 {var}, {var}, {var}", f"v_and_b32 {var}, {HI}, {var}"]
    for k in range(12):
        if k == 4: a("s_waitcnt lgkmcnt(1)")
        if k == 8: a("s_waitcnt lgkmcnt(0)")
        adds[4 + k](); a(chain[k])
    stamp("f3a")
    a(f"v_sqrt_f32 {var}, {var}")
    for r in range(4): a(f"v_mul_f32 v{ZA+r}, v{ZA+r}, -{mu}")
    rbf(var, var)
    a(f"v_permlane16_swap_b32 v{ZA}, v{ZA+1}"); a(f"v_permlane16_swap_b32 v{ZA+2}, v{ZA+3}")
    a(f"v_rcp_f32 {var}, {var}")
    a(f"v_add_f32 v{ZA}, v{ZA}, v{ZA+1}"); a(f"v_add_f32 v{ZA+2}, v{ZA+2}, v{ZA+3}")
    a(f"v_permlane32_swap_b32 v{ZA}, v{ZA+2}"); a(f"v_add_f32 v{ZA}, v{ZA}, v{ZA+2}")
    e = [f"v{T[i]}" for i in range(4)]
    g, u, ot = f"v{ZA}", f"v{ZA+1}", f"v{ZA+2}"
    a(f"v_mul_f32 {g}, {g}, {var}")
    rbf(g, g)
    a(f"v_mov_b32_dpp {ot}, {g} row_ror:8 row_mask:0xf bank_mask:0xf")
    a(f"v_cndmask_b32 {u}, {ot}, {g}, s[74:75]"); a(f"v_cndmask_b32 {g}, {g}, {ot}, s[74:75]")
    a(f"v_mul_f32 {ot}, {f32(-1.4426950408889634)}, {g}"); a(f"v_exp_f32 {ot}, {ot}")
    a(f"v_add_f32 {ot}, 1.0, {ot}"); a(f"v_rcp_f32 {ot}, {ot}"); a(f"v_mul_f32 {g}, {g}, {ot}")
    rbf(g, g); a(f"v_mul_f32 {g}, {g}, {u}")
    a(f"v_cvt_pk_bf16_f32 {g}, {g}, {g}")
    stamp("f3b")
    ACC = [D, Q, E]
    src = bcast_src(g); src(0)
    for t in range(4):
        selector(B[t & 1], src.reg(t))
        if t < 3: src(t + 1)
        for b in range(3):
            a(f"s_waitcnt vmcnt({11 - 3*t - b})")
            mfma(G2[4*b+t], B[t & 1], first=(t == 0), dst=ACC[b])
    stamp("f3c")
    a(f"s_mov_b32 s10, {16*9216 if rmaj else 1024}"); a(f"s_mov_b32 s11, {32*9216 if rmaj else 2048}")
    for b in range(3):
        if b == 2: a(f"s_cmp_lg_u32 {WAVE}, 0"); a("s_cbranch_scc1 L_done")
        d = ACC[b]
        if b: a("s_mov_b64 exec, -1")
        for r in range(4): a(f"v_permlane32_swap_b32 v{d+r}, {e[r]}")
        for r in range(4): dpp("v_add_f32", f"v{d+r}", e[r], f"v{d+r}", "row_ror:8")
        for r in range(4): a(f"v_and_or_b32 v{d+r}, v{d+r}, {TMASK}, {VTAG}")
        a("s_mov_b64 exec, 0x00ff00ff")
        a(f"buffer_store_dwordx4 {v4(d)}, {VO}, {sWS}, {('0', 's10', 's11')[b]} offen sc1")
        if b == 1: stamp("pub")
    stamp("pub")
    a("s_branch L_done")

    a.mark("end")
    a.label("L_red")
    a.mark("chain", "P_red", "L_warm2")
    PA_, HH = F[0], F[1]
    a(f"s_sub_u32 {ROLE}, {RID}, 216")
    a(f"v_and_b32 v{T[4]}, 3, {LANE}"); a(f"v_lshrrev_b32 v{T[5]}, 4, {LANE}")
    a(f"s_lshr_b32 s3, {ROLE}, 1"); a("s_lshl_b32 s3, s3, 5"); a(f"s_and_b32 s62, {ROLE}, 1"); a("s_lshl_b32 s62, s62, 2"); a("s_add_u32 s3, s3, s62")
    a(f"v_lshl_add_u32 {VL}, v{T[5]}, 3, v{T[4]}"); a(f"v_add_u32 {VL}, s3, {VL}"); a(f"v_lshlrev_b32 {VL}, 1, {VL}")
    a(f"v_lshl_add_u32 {VF}, v{T[5]}, 2, v{T[4]}"); a(f"v_mul_u32_u24 {VF}, 48, {VF}")
    a(f"s_lshl_b32 s3, {WAVE}, 2"); a(f"v_add_u32 {VM}, s3, {VF}")
    a(f"s_cmp_lg_u32 {WAVE}, 0"); a("s_cbranch_scc1 L_red_h3")
    a(f"buffer_load_ushort v{Q}, {VL}, {sX}, 0 offen")
    a(f"s_lshr_b32 s62, {ROLE}, 2"); a("s_lshl_b32 s62, s62, 11"); a(f"s_and_b32 s3, {ROLE}, 3"); a("s_lshl_b32 s3, s3, 6")
    a("s_add_u32 s3, s3, s62"); z2base()
    a(f"v_bfe_u32 {VKV}, {LANE}, 2, 3"); a(f"v_lshlrev_b32 {VKV}, 8, {VKV}"); a(f"v_lshl_add_u32 {VKV}, v{T[4]}, 4, {VKV}")
    a(f"v_add_u32 {VKV}, s3, {VKV}")
    poll("L_p2r", [f"buffer_load_dwordx4 {v4(HH)}, {VKV}, {sWS}, 0 offen sc1"], [HH], 2)
    hv = [f"v{HH+i}" for i in range(4)]
    for i in range(4): a(f"v_and_b32 {hv[i]}, {TMASK}, {hv[i]}")
    rows_scatter(*hv)
    allred16(hv[:1], steps=(4, 8))
    a(f"v_mul_f32 {hv[0]}, 0.5, {hv[0]}")
    rbf(hv[0], hv[0]); a(f"v_lshlrev_b32 v{Q}, 16, v{Q}"); a(f"v_add_f32 {hv[0]}, {hv[0]}, v{Q}"); rbf(hv[0], hv[0])
    stamp("got")
    a.label("L_red_h3")
    if rmaj:
        a(f"s_mul_i32 s3, {ROLE}, 9216"); a(f"s_lshl_b32 s62, {WAVE}, 10"); a("s_add_u32 s3, s3, s62"); a(f"s_add_u32 s3, s3, {P3}")
        a(f"v_lshl_add_u32 {VW}, {LANE}, 4, s3")
    else:
        a(f"v_lshrrev_b32 {VW}, 2, {LANE}"); a(f"s_lshl_b32 s3, {WAVE}, 4"); a(f"v_add_u32 {VW}, s3, {VW}")
        a(f"v_mul_u32_u24 {VW}, 2304, {VW}"); a(f"v_lshl_add_u32 {VW}, v{T[4]}, 4, {VW}")
        a(f"s_lshl_b32 s3, {ROLE}, 6"); a(f"s_add_u32 s3, s3, {P3}"); a(f"v_add_u32 {VW}, s3, {VW}")
    ppoll("L_p3", lambda i, r: f"buffer_load_dwordx4 {v4(r)}, {VW}, {sWS}, 0 offen sc1", [PA_], [[F[2+k]] for k in range(PD3)], sleep3, SP3)
    stamp("pub")
    pv = [f"v{PA_+i}" for i in range(4)]
    rows_scatter(*pv)
    allred16(pv[:1], steps=(4, 8))
    setexec(0x000F000F000F000F)
    a(f"ds_write_b32 {VM}, {pv[0]} offset:{L_P}")
    a("s_waitcnt lgkmcnt(0)"); a("s_barrier")
    a(f"s_cmp_lg_u32 {WAVE}, 0"); a("s_cbranch_scc1 L_done")
    a(f"ds_read_b128 {v4(PA_)}, {VF} offset:{L_P}"); a(f"ds_read_b128 {v4(B[0])}, {VF} offset:{L_P+16}"); a(f"ds_read_b32 v{B[1]}, {VF} offset:{L_P+32}")
    a("s_waitcnt lgkmcnt(1)")
    for i in range(4): a(f"v_add_f32 {pv[i]}, {pv[i]}, v{B[0]+i}")
    a(f"v_add_f32 {pv[0]}, {pv[0]}, {pv[1]}"); a(f"v_add_f32 {pv[2]}, {pv[2]}, {pv[3]}")
    a("s_waitcnt lgkmcnt(0)")
    a(f"v_add_f32 {pv[0]}, {pv[0]}, v{B[1]}"); a(f"v_add_f32 {pv[0]}, {pv[0]}, {pv[2]}")
    rbf(pv[0], pv[0]); a(f"v_add_f32 {pv[0]}, {pv[0]}, {hv[0]}")
    if delta: a(f"v_add_f32 {pv[0]}, {f32(delta)}, {pv[0]}")
    a(f"v_cvt_pk_bf16_f32 {pv[0]}, {pv[0]}, {pv[0]}")
    a(f"buffer_store_short {pv[0]}, {VL}, {sOUT}, 0 offen")
    a(f"s_cmp_lg_u32 {ROLE}, 0"); a("s_cbranch_scc1 L_done")
    a("s_mov_b64 exec, 1")
    a(f"v_mov_b32 v{T[0]}, {EP1}"); a(f"v_mov_b32 v{T[1]}, {EPOCH}")
    a(f"buffer_store_dword v{T[0]}, v{T[1]}, {sWS}, 0 offen")
    if amp:
        a("s_memrealtime s[94:95]"); a("s_waitcnt lgkmcnt(0)")
        a("s_sub_u32 s3, s94, s92"); a(f"s_mul_i32 s3, s3, {amp}"); a("s_min_u32 s3, s3, 30000")
        a.label("L_amp"); a("s_memrealtime s[90:91]"); a("s_waitcnt lgkmcnt(0)"); a("s_sub_u32 s62, s90, s94")
        a("s_cmp_lt_u32 s62, s3"); a("s_cbranch_scc1 L_amp")

    a.mark("end")
    a.label("L_done")
    if diag == 2:
        stamp("end")
        a("s_mov_b64 exec, 1"); a("s_waitcnt lgkmcnt(0)")
        a("s_mov_b32 s76, s24"); a("s_mov_b32 s77, s25"); a("s_movk_i32 s78, 256"); a("s_mov_b32 s79, 0x20000")
        a("s_not_b32 s3, s80"); a("v_mov_b32 v16, s3"); a("v_mov_b32 v17, 0")
        a("buffer_atomic_umax v16, v17, s[76:79], 0 offen sc1")
        a("v_mov_b32 v18, s80"); a("buffer_atomic_umax v18, v17, s[76:79], 0 offen offset:4 sc1")
        a("v_mov_b32 v19, s88"); a("buffer_atomic_umax v19, v17, s[76:79], 0 offen offset:8 sc1")
        a("v_mov_b32 v20, s94"); a("buffer_atomic_umax v20, v17, s[76:79], 0 offen offset:12 sc1")
        a(f"s_cmp_eq_u32 {WAVE}, 8"); a("s_cbranch_scc1 L_exit")
        a("v_mov_b32 v21, s82"); a("buffer_atomic_umax v21, v17, s[76:79], 0 offen offset:16 sc1")
        a("v_mov_b32 v22, s84"); a("buffer_atomic_umax v22, v17, s[76:79], 0 offen offset:20 sc1")
        a("v_mov_b32 v23, s86"); a("buffer_atomic_umax v23, v17, s[76:79], 0 offen offset:24 sc1")
    elif diag:
        stamp("end")
        a("s_mov_b64 exec, 1"); a("s_waitcnt lgkmcnt(0)")
        a(f"s_mul_i32 s3, {RID}, 9"); a(f"s_add_u32 s3, s3, {WAVE}"); a("s_lshl_b32 s3, s3, 5"); a(f"s_add_u32 s3, s3, {STAMP}")
        a("v_mov_b32 v28, s3")
        for i in range(8): a(f"v_mov_b32 v{16+i}, s{80+2*i}")
        a(f"buffer_store_dwordx4 v[16:19], v28, {sWS}, 0 offen"); a(f"buffer_store_dwordx4 v[20:23], v28, {sWS}, 0 offen offset:16")
    a.label("L_exit")
    a("s_endpgm")
    a.label("L_end")
    a.place_pads(pads)
    body = a.finalize()
    out = HEADER + "; Generated by gen.py: 256 workgroups (8 streaming waves + 1 helper wave), tagged hand-offs through d_ws.\n"
    if diag: out += "; stamps: " + " ".join(names) + "\n"
    out += "; @launch grid=(256,1,1) block=(576,1,1) lds=9216\n"
    out += '.amdgcn_target "amdgcn-amd-amdhsa--gfx950"\n.text\n' + f".globl {KNAME}\n.p2align 8\n.type {KNAME},@function\n"
    out += body
    out += f""".section .rodata,"a"
.p2align 6
.amdhsa_kernel {KNAME}
  .amdhsa_next_free_vgpr 168
  .amdhsa_next_free_sgpr 100
  .amdhsa_accum_offset 168
  .amdhsa_group_segment_fixed_size 0
  .amdhsa_kernarg_size 96
  .amdhsa_user_sgpr_count 2
  .amdhsa_user_sgpr_kernarg_segment_ptr 1
  .amdhsa_system_sgpr_workgroup_id_x 1
.end_amdhsa_kernel
"""
    return out

if __name__ == "__main__":
    kw = eval("dict(" + (sys.argv[2] if len(sys.argv) > 2 else "") + ")")
    open(sys.argv[1], "w").write(gen(**kw))
```

```python
import sys, struct
sys.path.insert(0, "work")
from asmlib import Asm

KNAME = "sequential_preLN__mha_block_cached__glu_gated_swiglu__decode_kernel"
HEADER = open("sequential_preLN__mha_block_cached__glu_gated_swiglu__decode.s.ref").read().split("; Override launch")[0]

def f32(x): return "0x%08x" % struct.unpack("<I", struct.pack("<f", x))[0]

EPOCH, O1, ML, Z2, P3, Q0, STAMP = 0, 0x10000, 0x30000, 0x32000, 0x40000, 0xa0000, 0x100000
Z2R, Z2S = 0x140000, 0x8000
KD = 0x3a000
XC, FAST = 0x38000, 0x200000
L_ST, L_MW, L_LW, L_Q, L_H, L_P = 0, 128, 160, 256, 512, 4096

def gen(Wn=4, nK=18, qsleep=32, EW=8, jB2=21, dyn=0, Ww=13, Wv=None, wqpol='nt', w2mode='first', tu=3, fast1=1, pads=0, now13=0, dwait=0, pre=0, gs=0, ge=0, pk=1, tm=0, delta=0, qfast=0, qsl2=0, skipz=1, trim=1, thr=None, nA=24, nE=64, amp=0, Walt=None, W0=0, n0=0, gate=None, w2at='end', f2lds=1, cyc=0, rmaj=1, fill=4, t2='red', SD2=0, SP2=2, SP3=0, adapt=None, jA=14, par=None, rep2=1, PD1=1, PD2=1, PD3=1, pub2x4=1, mpoll=1, tpos=0, pol="nt", wpol="", diag=0, codepf=0, sleep2=0, sleep3=0):
    a = Asm()
    LANE = "v0"; MASK = [4, 5, 6, 7]; Q = 8; D = 12; B = [16, 20]
    VKV, VW, VM, VL, VF, VG, VTAG = "v24", "v25", "v26", "v27", "v1", "v2", "v3"
    T = [28 + i for i in range(8)]
    S = 36
    SLOT0, NSLOT = 52, 29
    sK, sV, sWQ, sX, sWS, sG, sOUT = "s[32:35]", "s[36:39]", "s[40:43]", "s[44:47]", "s[48:51]", "s[52:55]", "s[56:59]"
    WAVE, HEAD, SPLIT, TAG = "s28", "s29", "s30", "s31"
    RID = "s79"; L_ROLE = 192
    assert not (dyn and EW)
    Wv = Wv or Wn
    if adapt: Wv = adapt[2]
    if par: Wn = Wv = max(par)
    SCALE, LOG2E, HI, TMASK, TLOW, ROLE, CNT, EP1 = "s64", "s65", "s66", "s67", "s68", "s69", "s70", "s71"
    v4 = lambda r: f"v[{r}:{r+3}]"
    stamps = []
    names = diag.split() if isinstance(diag, str) else ["start", "q", "kend", "vend", "tail", "got", "pub", "end"]
    def stamp(n):
        if diag and n in names:
            i = names.index(n); a(f"{'s_memtime' if cyc else 's_memrealtime'} s[{80+2*i}:{81+2*i}]")
    def rbf(dst, src):
        a(f"v_cvt_pk_bf16_f32 {dst}, {src}, {src}"); a(f"v_and_b32 {dst}, {HI}, {dst}")
    def dpp(op, d, s0, s1, ctl): a(f"{op}_dpp {d}, {s0}, {s1} {ctl} row_mask:0xf bank_mask:0xf")
    def allred16(regs, op="v_add_f32", steps=(8, 4, 2, 1)):
        for st in steps:
            for r in regs: dpp(op, r, r, r, f"row_ror:{st}")
    def allred_rows(r, t, op="v_add_f32"):
        a(f"v_mov_b32 {t}, {r}"); a(f"v_permlane16_swap_b32 {r}, {t}"); a(f"{op} {r}, {r}, {t}")
        a(f"v_mov_b32 {t}, {r}"); a(f"v_permlane32_swap_b32 {r}, {t}"); a(f"{op} {r}, {r}, {t}")
    def rows_scatter(r0, r1, r2, r3):
        a(f"v_permlane16_swap_b32 {r0}, {r1}"); a(f"v_permlane16_swap_b32 {r2}, {r3}")
        a(f"v_add_f32 {r0}, {r0}, {r1}"); a(f"v_add_f32 {r2}, {r2}, {r3}")
        a(f"v_permlane32_swap_b32 {r0}, {r2}"); a(f"v_add_f32 {r0}, {r0}, {r2}")
    def selector(b, src):
        for j in range(4): a(f"v_and_b32 v{b+j}, {src}, v{MASK[j]}")
    def mfma(A_, B_, first=False, dst=None):
        d = v4(D if dst is None else dst)
        a(f"v_mfma_f32_16x16x32_bf16 {d}, {v4(A_)}, {v4(B_)}, {'0' if first else d}")
    def setexec(m):
        a(f"s_mov_b32 exec_lo, {hex(m & 0xffffffff)}"); a(f"s_mov_b32 exec_hi, {hex(m >> 32)}")
    def tagcheck(quads, t0, t1, t2):
        tmp = []
        first = True
        for qd in quads:
            a(f"v_bitop3_b32 {t1}, v{qd}, v{qd+1}, {TAG} bitop3:0x7e")
            a(f"v_bitop3_b32 {t2}, v{qd+2}, v{qd+3}, {TAG} bitop3:0x7e")
            if first: a(f"v_or_b32 {t0}, {t1}, {t2}"); first = False
            else: a(f"v_or3_b32 {t0}, {t0}, {t1}, {t2}")
        a(f"v_and_b32 {t0}, {TLOW}, {t0}")
        a(f"v_cmp_ne_u32 vcc, 0, {t0}")
    def poll(name, loads, quads, sleep):
        if diag and "wts" in names and name in ("L_p1", "L_p2"): a("s_waitcnt vmcnt(0)"); stamp("wts")
        a.mark("force")
        a(f"s_mov_b32 {CNT}, 0x40000")
        a.mark("nopad", 1)
        n = len(loads)
        if not mpoll:
            a.label(name)
            for l in loads: a(l)
            a("s_waitcnt vmcnt(0)")
            tagcheck(quads, f"v{T[0]}", f"v{T[1]}", f"v{T[2]}")
            a(f"s_cbranch_vccz {name}_ok")
            if sleep: a(f"s_sleep {sleep}")
        else:
            M = [f"s[{4+2*i}:{5+2*i}]" for i in range(n)]
            for m in M: a(f"s_mov_b64 {m}, -1")
            a.label(name)
            for m, l in zip(M, loads):
                if n > 1: a(f"s_mov_b64 exec, {m}")
                a(l)
            for i, (m, qd) in enumerate(zip(M, quads)):
                if n > 1: a(f"s_mov_b64 exec, {m}")
                if i == 0: a("s_waitcnt vmcnt(0)")
                a(f"v_bitop3_b32 v{T[1]}, v{qd}, v{qd+1}, {TAG} bitop3:0x7e")
                a(f"v_bitop3_b32 v{T[2]}, v{qd+2}, v{qd+3}, {TAG} bitop3:0x7e")
                a(f"v_bitop3_b32 v{T[1]}, v{T[1]}, v{T[2]}, {TLOW} bitop3:0xa8")
                a(f"v_cmp_ne_u32 {m}, 0, v{T[1]}")
            if n == 1:
                a(f"s_and_b64 exec, {M[0]}, {M[0]}")
            else:
                a(f"s_or_b64 vcc, {M[0]}, {M[1]}")
                if n == 3: a(f"s_or_b64 vcc, vcc, {M[2]}")
            a(f"s_cbranch_scc0 {name}_ok")
            if sleep: a(f"s_sleep {sleep}")
        a(f"s_sub_u32 {CNT}, {CNT}, 1"); a(f"s_cmp_lg_u32 {CNT}, 0"); a(f"s_cbranch_scc1 {name}")
        a.label(name + "_ok")
        if mpoll: a("s_mov_b64 exec, -1")
        a.mark("nopad", 0)
        if diag and "polls" in names and name in ("L_p1", "L_p2", "L_p3"):
            i = names.index("polls"); a(f"s_sub_u32 s{80+2*i}, 0x40001, {CNT}")
    def ppoll(name, load, canon, bufs, sleep=0, space=0, first=None):
        if diag and "wts" in names and name == "L_p1": a("s_waitcnt vmcnt(0)"); stamp("wts")
        n = len(canon); depth = len(bufs)
        P = [f"s[{4+2*i}:{5+2*i}]" for i in range(n)]
        a.mark("force")
        a(f"s_mov_b32 {CNT}, 0x40000")
        a.mark("nopad", 1)
        for m in P: a(f"s_mov_b64 {m}, -1")
        for k in range(depth - 1):
            for i in range(n): a(load(i, bufs[k][i]))
            if space: a(f"s_sleep {space}")
        if first:
            assert depth == 1
            for i in range(n): a(load(i, bufs[0][i]))
            a.mark("nopad", 0); first(n); a.mark("nopad", 1)
            a(f"s_branch {name}_chk")
            a.label(name + "_re")
        a.label(name)
        for k in range(depth):
            for i in range(n):
                a(f"s_or_b64 exec, {P[i]}, 1"); a(load(i, bufs[(k + depth - 1) % depth][i]))
            if space: a(f"s_sleep {space}")
            if first: a.label(name + "_chk")
            for i in range(n):
                qd = bufs[k][i]
                a(f"s_mov_b64 exec, {P[i]}")
                if i == 0: a(f"s_waitcnt vmcnt({n * (depth - 1)})")
                if n > 1 and skipz: a(f"s_cbranch_execz {name}_z{k}{i}")
                a(f"v_bitop3_b32 v{T[1]}, v{qd}, v{qd+1}, {TAG} bitop3:0x7e")
                a(f"v_bitop3_b32 v{T[2]}, v{qd+2}, v{qd+3}, {TAG} bitop3:0x7e")
                a(f"v_bitop3_b32 v{T[1]}, v{T[1]}, v{T[2]}, {TLOW} bitop3:0xa8")
                for r in range(4): a(f"v_and_b32 v{canon[i]+r}, {TMASK}, v{qd+r}")
                a(f"v_cmp_ne_u32 {P[i]}, 0, v{T[1]}")
                if n > 1 and skipz: a.label(f"{name}_z{k}{i}")
            if diag and "h1" in names and name == "L_p2":
                h = [f"s{80+2*names.index(x)}" for x in ("h1", "h2", "h3", "m")]
                a(f"s_mov_b32 {h[2]}, {h[1]}"); a(f"s_mov_b32 {h[1]}, {h[0]}")
                a(f"s_memrealtime s[{h[0][1:]}:{int(h[0][1:])+1}]"); a("s_waitcnt lgkmcnt(0)")
                a(f"s_bcnt1_i32_b64 s3, {P[0]}"); a(f"s_bcnt1_i32_b64 s62, {P[1]}"); a("s_add_u32 s3, s3, s62"); a("s_lshr_b32 s3, s3, 4")
                a(f"s_lshl_b32 {h[3]}, {h[3]}, 4"); a(f"s_or_b32 {h[3]}, {h[3]}, s3"); a(f"s_and_b32 {h[3]}, {h[3]}, 0xffff")
            if n == 1: a(f"s_cmp_lg_u64 {P[0]}, 0")
            else:
                a(f"s_or_b64 vcc, {P[0]}, {P[1]}")
                if n == 3: a(f"s_or_b64 vcc, vcc, {P[2]}")
            a(f"s_cbranch_scc0 {name}_ok")
            if sleep: a(f"s_sleep {sleep}")
        a(f"s_sub_u32 {CNT}, {CNT}, 1"); a(f"s_cmp_lg_u32 {CNT}, 0"); a(f"s_cbranch_scc1 {name}")
        a.label(name + "_ok")
        a("s_mov_b64 exec, -1")
        a.mark("nopad", 0)
        if diag and "polls" in names and name in ("L_p1", "L_p2", "L_p3"):
            i = names.index("polls"); a(f"s_sub_u32 s{80+2*i}, 0x40001, {CNT}")
    def spoll(name, addr, regs, lanes, space):
        depth = len(regs)
        a.mark("force")
        a(f"s_mov_b32 {CNT}, 0x2000")
        a.mark("nopad", 1)
        a(f"s_mov_b64 exec, {hex(lanes)}"); a(f"s_mov_b64 s[4:5], {hex(lanes)}")
        ld = lambda r: f"buffer_load_dword v{r}, {addr}, {sWS}, 0 offen sc1"
        for k in range(depth - 1):
            a(ld(regs[k])); a(f"s_sleep {space}")
        a.label(name)
        for k in range(depth):
            a("s_or_b64 exec, s[4:5], 1"); a(ld(regs[(k + depth - 1) % depth]))
            a("s_mov_b64 exec, s[4:5]")
            a(f"s_sleep {space}")
            a(f"s_waitcnt vmcnt({depth - 1})")
            a(f"v_bitop3_b32 v{T[1]}, v{regs[k]}, {VTAG}, {TLOW} bitop3:0x28")
            a(f"v_cmp_ne_u32 s[4:5], 0, v{T[1]}")
            a("s_cmp_lg_u64 s[4:5], 0"); a(f"s_cbranch_scc0 {name}_ok")
        a(f"s_sub_u32 {CNT}, {CNT}, 1"); a(f"s_cmp_lg_u32 {CNT}, 0"); a(f"s_cbranch_scc1 {name}")
        a.label(name + "_ok")
        a("s_mov_b64 exec, -1")
        a.mark("nopad", 0)
    def mfma_chain(n, src_of, A_of, pre=None):
        src_of(0)
        for t in range(n):
            selector(B[t & 1], src_of.reg(t))
            if t + 1 < n: src_of(t + 1)
            if pre: pre(t)
            mfma(A_of(t), B[t & 1], first=(t == 0))

    a.label(KNAME)
    a("s_cmp_ge_u32 s2, 256"); a("s_cbranch_scc1 L_exit")
    if diag:
        for i in range(8): a(f"s_mov_b32 s{80+2*i}, 0")
    stamp("start")
    if amp: a("s_memrealtime s[92:93]")
    a("s_load_dwordx16 s[4:19], s[0:1], 0"); a("s_load_dwordx8 s[20:27], s[0:1], 64")
    a("v_lshrrev_b32 v1, 6, v0"); a("v_and_b32 v0, 63, v0")
    a(f"v_readfirstlane_b32 {WAVE}, v1")
    a(f"s_and_b32 {HEAD}, s2, 7"); a(f"s_lshl_b32 {HEAD}, {HEAD}, 2"); a("s_bfe_u32 s3, s2, 0x20003"); a(f"s_add_u32 {HEAD}, {HEAD}, s3")
    a(f"s_lshr_b32 {SPLIT}, s2, 5")
    a(f"v_lshlrev_b32 v{T[0]}, 4, {LANE}")
    a("s_movk_i32 s46, 1152"); a("s_mov_b32 s47, 0x20000")
    a(f"s_sub_u32 {WAVE}, {WAVE}, 1"); a("s_cbranch_scc1 L_helper")
    a(f"s_lshl_b32 s60, {HEAD}, 21"); a(f"s_lshl_b32 s61, {SPLIT}, 18"); a("s_add_u32 s62, s60, s61")
    a("s_mov_b32 s34, 0x40000"); a("s_mov_b32 s35, 0x20000"); a("s_mov_b32 s38, 0x40000"); a("s_mov_b32 s39, 0x20000")
    a(f"s_lshl_b32 s3, {WAVE}, 10"); a(f"v_add_u32 {VKV}, s3, v{T[0]}")
    a("s_mov_b32 s60, 0")
    if par: a("s_getreg_b32 s72, hwreg(HW_REG_XCC_ID, 0, 1)"); a("s_mov_b32 vcc_lo, s72"); a("s_mov_b32 vcc_hi, 0")
    a("s_waitcnt lgkmcnt(0)")
    stamp("karg")
    a("s_add_u32 s32, s6, s62"); a("s_addc_u32 s33, s7, 0")

    def late_setup():
        a(f"s_load_dword {EP1}, s[26:27], {EPOCH}")
        a("s_mov_b32 s44, s4"); a("s_mov_b32 s45, s5"); a("s_mov_b32 s43, 0x20000")
        a("s_mov_b32 s48, s26"); a("s_mov_b32 s49, s27"); a("s_mov_b32 s50, 0x400000"); a("s_mov_b32 s51, 0x20000")
        a("s_mov_b32 s56, s22"); a("s_mov_b32 s57, s23"); a("s_movk_i32 s58, 1152"); a("s_mov_b32 s59, 0x20000")
        a(f"s_mov_b32 {SCALE}, {f32(128 ** -0.5)}"); a(f"s_mov_b32 {LOG2E}, {f32(1.4426950408889634)}")
        a(f"s_mov_b32 {HI}, 0xffff0000"); a(f"s_mov_b32 {TMASK}, 0xfffff000"); a(f"s_movk_i32 {TLOW}, 0xfff")
        a(f"v_and_b32 v{T[4]}, 1, {LANE}"); a(f"v_lshlrev_b32 v{T[4]}, 4, v{T[4]}")
        a(f"v_mov_b32 v{T[5]}, 0xffff"); a(f"v_lshlrev_b32 v{T[5]}, v{T[4]}, v{T[5]}")
        a(f"v_bfe_u32 v{T[4]}, {LANE}, 1, 2")
        for j in range(4):
            a(f"v_cmp_eq_u32 vcc, {j}, v{T[4]}"); a(f"v_cndmask_b32 v{MASK[j]}, 0, v{T[5]}, vcc")
        a("s_mov_b32 s96, s24"); a("s_mov_b32 s97, s25"); a("s_movk_i32 s98, 256"); a("s_mov_b32 s99, 0x20000")
        if not dyn:
            a("s_and_b32 s78, s2, 7"); a("s_mul_i32 s78, s78, 18"); a("s_lshr_b32 s3, s2, 3"); a("s_add_u32 s78, s78, s3")
            a("s_cmp_lt_u32 s2, 144"); a(f"s_cselect_b32 {RID}, s78, s2")
            role_setup()
    def role_setup():
        u = role_setup.n = getattr(role_setup, "n", 0) + 1
        a("s_mov_b32 s55, 0x20000")
        a(f"s_cmp_lt_u32 {RID}, 144"); a(f"s_cbranch_scc0 L_r1_{u}")
        a(f"s_mov_b32 {ROLE}, {RID}")
        a(f"s_mul_i32 s3, {ROLE}, {32*1152}"); a("s_add_u32 s52, s20, s3"); a("s_addc_u32 s53, s21, 0")
        a(f"s_mov_b32 s54, 0"); a("s_mov_b32 s63, 0x40000000")
        a(f"s_lshl_b32 s3, {WAVE}, 7")
        a(f"s_branch L_r2_{u}")
        a.label(f"L_r1_{u}")
        a(f"s_sub_u32 {ROLE}, {RID}, 144"); a(f"s_lshr_b32 {ROLE}, {ROLE}, 3")
        a(f"s_and_b32 s3, {RID}, 7"); a(f"s_mul_i32 s3, s3, {512*1152}"); a(f"s_lshl_b32 s62, {ROLE}, 7")
        a(f"s_sub_u32 s54, {512*1152}, s62"); a("s_add_u32 s3, s3, s62")
        a(f"s_cmp_lt_u32 {RID}, 216"); a("s_cselect_b32 s54, s54, 0"); a("s_cselect_b32 s3, s3, 0")
        a("s_add_u32 s52, s12, s3"); a("s_addc_u32 s53, s13, 0")
        a(f"s_mov_b32 s63, {32*1152}"); a(f"s_mul_i32 s3, {WAVE}, {64*1152}")
        a.label(f"L_r2_{u}")
        a("s_movk_i32 s76, 4608"); a("s_add_u32 s77, s63, s76")
        a(f"v_lshrrev_b32 v{T[4]}, 4, {LANE}"); a(f"v_bfe_u32 v{T[5]}, {LANE}, 3, 1"); a(f"v_lshl_add_u32 v{T[4]}, v{T[4]}, 3, v{T[5]}")
        a(f"v_mul_u32_u24 v{T[4]}, 1152, v{T[4]}")
        a(f"v_and_b32 v{T[5]}, 7, {LANE}"); a(f"v_lshl_add_u32 v{T[4]}, v{T[5]}, 4, v{T[4]}")
        a(f"v_add_u32 {VG}, s3, v{T[4]}")
    def touch_setup():
        a("s_lshr_b32 s3, s2, 3"); a("s_sub_u32 s62, s3, 9"); a("s_cmp_lt_u32 s3, 18"); a("s_cselect_b32 s62, s3, s62")
        a("s_mul_i32 s62, s62, 26"); a("s_sub_u32 s42, 576, s62"); a("s_min_u32 s42, s42, 26")
        a("s_mul_i32 s42, s42, 9216"); a(f"s_sub_u32 s42, s42, {9216-1152}")
        a("s_sub_u32 s3, s3, 18"); a("s_cmp_lt_u32 s3, 9"); a("s_cselect_b32 s42, 0, s42"); a("s_cselect_b32 s62, 0, s62")
        a("s_mul_i32 s62, s62, 9216"); a("s_and_b32 s3, s2, 7"); a("s_mul_i32 s3, s3, 1152"); a("s_add_u32 s62, s62, s3")
        a(f"s_bitcmp1_b32 {WAVE}, 0"); a("s_cselect_b32 s40, s18, s16"); a("s_cselect_b32 s41, s19, s17")
        a("s_add_u32 s40, s40, s62"); a("s_addc_u32 s41, s41, 0")
        a("s_mov_b32 s15, s42"); a("s_mov_b32 s14, 0")
        if tu > 1:
            a("s_mov_b32 s14, s42")
            if tu == 2: a(f"s_bitcmp1_b32 {WAVE}, 0")
            else: a(f"s_cmp_ge_u32 {WAVE}, {tu - 1}")
            a("s_cselect_b32 s42, 0, s42"); a("s_cselect_b32 s14, s14, 0")
    def touch_lane(dst):
        a(f"s_lshr_b32 s3, {WAVE}, 1"); a("s_lshl_b32 s3, s3, 6"); a(f"v_add_u32 v{T[1]}, s3, {LANE}")
        a(f"s_mov_b32 s3, {-(-(1 << 32) // 9)}"); a(f"v_mul_hi_u32 v{T[2]}, v{T[1]}, s3")
        a(f"v_mul_u32_u24 v{T[3]}, 9, v{T[2]}"); a(f"v_sub_u32 v{T[1]}, v{T[1]}, v{T[3]}")
        a(f"v_mul_u32_u24 v{T[2]}, 9216, v{T[2]}"); a(f"v_lshl_add_u32 {dst}, v{T[1]}, 7, v{T[2]}")
    def gload(i, r):
        so = ("0", "s76", "s63", "s77")[i >> 1]
        a(f"buffer_load_dwordx4 {v4(r)}, {VG}, {sG}, {so} offen offset:{(i & 1) * 2304} {wpol}")
    def bcast_src(src):
        def f(t):
            d = f.reg(t)
            a(f"v_mov_b32_dpp {d}, {src} row_newbcast:{2*t} row_mask:0xf bank_mask:0x3")
            a(f"v_mov_b32_dpp {d}, {src} row_newbcast:{2*t+1} row_mask:0xf bank_mask:0xc")
        f.reg = lambda t: f"v{T[6 + (t & 1)]}"
        return f
    def part_addr(dst, two):
        a(f"s_lshl_b32 s3, {WAVE}, 9"); a(f"s_add_u32 s3, s3, {L_P}")
        a(f"v_lshrrev_b32 {dst}, 4, {LANE}"); a(f"v_lshlrev_b32 {dst}, 7, {dst}")
        a(f"v_and_b32 v{T[7]}, 7, {LANE}"); a(f"v_lshl_add_u32 {dst}, v{T[7]}, 4, {dst}"); a(f"v_add_u32 {dst}, s3, {dst}")
    def add4(d, x):
        if pk:
            for r in (0, 2): a(f"v_pk_add_f32 v[{d+r}:{d+r+1}], v[{d+r}:{d+r+1}], v[{x+r}:{x+r+1}]")
        else:
            for r in range(4): a(f"v_add_f32 v{d+r}, v{d+r}, v{x+r}")
    def sum_parts(addr, dst, tmp, n, stride):
        regs = [dst] + tmp[:n-1]
        for i in range(n): a(f"ds_read_b128 {v4(regs[i])}, {addr} offset:{L_P + i * stride}")
        for i in range(1, n):
            a(f"s_waitcnt lgkmcnt({n-1-i})")
            add4(dst, regs[i])
    def tag_setup():
        a(f"s_add_u32 {EP1}, {EP1}, 1"); a(f"s_and_b32 {TAG}, {EP1}, 0xfff"); a(f"v_mov_b32 {VTAG}, {TAG}")

    order = []; free = list(range(NSLOT)); slot_of = {}
    def alloc(item):
        s = free.pop(0); slot_of[item] = SLOT0 + 4 * s; return slot_of[item]
    def release(item): free.append((slot_of[item] - SLOT0) // 4)
    def issue(item):
        k, i = item
        if k == "k" or k == "v":
            r = alloc(item)
            if item == ("v", 0): a("s_mov_b32 s60, 0")
            a(f"buffer_load_dwordx4 {v4(r)}, {VKV}, {sK if k == 'k' else sV}, s60 offen {pol}")
            a("s_addk_i32 s60, 0x2000")
        elif k == "t":
            if gate:
                a("s_waitcnt lgkmcnt(0)"); a(f"v_readfirstlane_b32 s3, v{Q}")
                a("s_cmp_eq_u32 s3, 0"); a("s_cselect_b32 s14, s15, s14"); a("s_cselect_b32 s42, 0, s42")
            a(f"buffer_load_dword v{S+12}, v{S}, s[40:43], 0 offen"); assert st["pv"] >= 25 or tpos
        elif k == "g":
            r = alloc(item)
            gload(i, r)
        order.append(item)
    known = [-1]
    def wait_idx(idx):
        if idx > known[0]:
            a(f"s_waitcnt vmcnt({len(order) - 1 - idx})"); known[0] = idx
    def wait_item(item): wait_idx(order.index(item))
    def landed(item): return item in order and order.index(item) <= known[0]

    PLAIN, TWO = 0x00FF00FF00FF00FF, 0xFF00FF0000FF00FF
    VP = VW
    def task_qfin():
        a("s_barrier")
        a(f"ds_read_b128 {v4(Q)}, v{T[0]} offset:{L_Q}")
        a("s_waitcnt lgkmcnt(0)")
        tag_setup()
        stamp("q")
    def task_kq(q):
        wait_item(("k", 4*q+3))
        for x in range(4):
            r = slot_of[("k", 4*q+x)]
            for i in range(4):
                a(f"v_dot2_f32_bf16 v{T[x]}, v{r+i}, v{Q+i}, {'0' if i == 0 else 'v%d' % T[x]}")
            release(("k", 4*q+x))
        allred16([f"v{T[x]}" for x in range(4)])
        a(f"v_cvt_pk_bf16_f32 v{T[4]}, v{T[0]}, v{T[1]}"); a(f"v_cvt_pk_bf16_f32 v{T[5]}, v{T[2]}, v{T[3]}")
        a(f"v_lshlrev_b32 v{T[0]}, 16, v{T[4]}"); a(f"v_and_b32 v{T[1]}, {HI}, v{T[4]}")
        a(f"v_lshlrev_b32 v{T[2]}, 16, v{T[5]}"); a(f"v_and_b32 v{T[3]}, {HI}, v{T[5]}")
        for x in range(4): a(f"v_mul_f32 v{T[x]}, {SCALE}, v{T[x]}")
        a(f"v_cvt_pk_bf16_f32 v{S+2*q}, v{T[0]}, v{T[1]}"); a(f"v_cvt_pk_bf16_f32 v{S+2*q+1}, v{T[2]}, v{T[3]}")
        a(f"v_max3_f32 {VM}, {VM}, v{T[0]}, v{T[1]}"); a(f"v_max3_f32 {VM}, {VM}, v{T[2]}, v{T[3]}")
    PA, PB = f"v{T[5]}", f"v{T[6]}"
    def prep_pv(j):
        if j % 2 == 0:
            a(f"v_lshlrev_b32 {PA}, 16, v{S+j//2}"); a(f"v_and_b32 {PB}, {HI}, v{S+j//2}")
            a(f"v_fma_f32 {PA}, {PA}, {LOG2E}, -{VF}"); a(f"v_fma_f32 {PB}, {PB}, {LOG2E}, -{VF}")
            a(f"v_exp_f32 {PA}, {PA}"); a(f"v_exp_f32 {PB}, {PB}")
        p = PA if j % 2 == 0 else PB
        a(f"v_cvt_pk_bf16_f32 v{T[0]}, {p}, {p}"); a(f"v_add_f32 {VL}, {VL}, {p}")
        selector(B[j & 1], f"v{T[0]}")
    def task_smax():
        allred_rows(VM, f"v{T[0]}", "v_max_f32"); rbf(VM, VM)
        a(f"s_lshl_b32 s3, {WAVE}, 2"); a(f"v_mov_b32 v{T[0]}, s3")
        a(f"ds_write_b32 v{T[0]}, {VM} offset:{L_MW}")
        a(f"v_mul_f32 {VF}, {LOG2E}, {VM}")
        stamp("kend")
        prep_pv(0)
    def wgmax(dst):
        a(f"v_mov_b32 v{T[0]}, 0")
        a(f"ds_read_b128 {v4(Q)}, v{T[0]} offset:{L_MW}"); a(f"ds_read_b128 v[{T[1]+1}:{T[1]+4}], v{T[0]} offset:{L_MW+16}")
        a("s_waitcnt lgkmcnt(0)")
        a(f"v_max3_f32 {dst}, v{Q}, v{Q+1}, v{Q+2}"); a(f"v_max3_f32 {dst}, {dst}, v{Q+3}, v{T[1]+1}")
        a(f"v_max3_f32 {dst}, {dst}, v{T[1]+2}, v{T[1]+3}"); a(f"v_max_f32 {dst}, {dst}, v{T[1]+4}")
    def task_pv(j):
        wait_item(("v", j))
        mfma(slot_of[("v", j)], B[j & 1], first=(j == 0)); release(("v", j))
        if j == jB2:
            assert j % 2 == 1
            a("s_waitcnt lgkmcnt(0)"); a("s_barrier")
            wgmax(f"v{T[1]}")
            a(f"v_sub_f32 {VM}, {VM}, v{T[1]}"); a(f"v_mul_f32 {VM}, {LOG2E}, {VM}"); a(f"v_exp_f32 {VM}, {VM}")
            a(f"v_mul_f32 {VF}, {LOG2E}, v{T[1]}")
            if tu: touch_lane(f"v{S}")
            a(f"v_mul_f32 {VL}, {VL}, {VM}")
            for r in range(4): a(f"v_mul_f32 v{D+r}, v{D+r}, {VM}")
        if j == 30:
            prep_pv(31)
            allred_rows(VL, f"v{T[0]}")
            a(f"s_lshl_b32 s3, {WAVE}, 2"); a(f"v_mov_b32 v{T[0]}, s3"); a(f"ds_write_b32 v{T[0]}, {VL} offset:{L_LW}")
            return
        if j < 31: prep_pv(j + 1)

    seq = [("k", i) for i in range(32)] + [("v", i) for i in range(32)] + [("g", i) for i in range(EW)]
    if gs:
        seq = [it for it in seq if it[0] != "g"]
        for i in range(EW):
            seq.insert(seq.index(("v", 31 - ge - (EW - 1 - i) * gs)) + 1, ("g", i))
    if tu: seq.insert(seq.index(("v", 31)) + 1 - tpos, ("t", 0))
    st = dict(q=False, kq=0, sm=False, pv=0)
    def run_ready(force=False):
        did = False; n = 0
        if not st["q"]: return False
        if st["kq"] < 8:
            it = ("k", 4 * st["kq"] + 3)
            if landed(it) or (force and it in order): task_kq(st["kq"]); st["kq"] += 1; did = True
            if st["kq"] == 8: task_smax(); st["sm"] = True
            return did
        while st["pv"] < 32 and n < 2 and (landed(("v", st["pv"])) or (force and not did and ("v", st["pv"]) in order)):
            task_pv(st["pv"]); st["pv"] += 1; n += 1; did = True
        return did
    for n, item in enumerate(seq):
        if n == (min(par) if par else (W0 or Wn)):
            a("s_add_u32 s36, s8, s62"); a("s_addc_u32 s37, s9, 0")
            late_setup()
            if tu: touch_setup()
            if par: a("s_mov_b32 vcc_lo, s72"); a("s_mov_b32 vcc_hi, 0")
            part_addr(VP, False)
            a(f"v_and_b32 v{T[0]}, 0xf0, v{T[0]}")
            a(f"v_mov_b32 {VM}, 0xff800000"); a(f"v_mov_b32 {VL}, 0")
        W = Wv if item[0] in "vgt" else Wn
        if n < n0: W = W0
        if Walt and n >= 8: W = Walt[n % len(Walt)]
        if item[0] in "kv":
            prev = [i for i, it in enumerate(order) if it[0] in "kv"]
            if adapt and item[0] == "v":
                if item[1] == jA - 1:
                    a(f"v_mov_b32 v{Q}, 0"); a(f"ds_read_b32 v{Q}, v{Q} offset:{L_ROLE+8}")
                if item[1] == jA:
                    a("s_waitcnt lgkmcnt(0)"); a(f"v_readfirstlane_b32 s72, v{Q}"); st["mode"] = True
                    if diag and "rank" in names: a(f"s_add_u32 s{80+2*names.index('rank')}, s72, 1")
                W = Wv if st.get("mode") else Wn
            if thr and n == nA - 1:
                a(f"v_mov_b32 v{T[7]}, 0"); a(f"ds_read_b32 v{T[7]}, v{T[7]} offset:{L_ROLE+8}")
                a("s_waitcnt lgkmcnt(0)"); a(f"v_readfirstlane_b32 s72, v{T[7]}")
                if diag and "rank" in names: a(f"s_add_u32 s{80+2*names.index('rank')}, s72, 1")
            if len(prev) >= W: wait_idx(prev[-W])
            if thr and nA <= n < nE:
                u = f"L_th{n}"; used = False; cur = W
                for below, pat in reversed(thr):
                    w_ = pat[n % len(pat)]
                    if w_ >= cur: continue
                    a(f"s_cmp_ge_u32 s72, {below}"); a(f"s_cbranch_scc1 {u}")
                    a(f"s_waitcnt vmcnt({len(order) - 1 - prev[-w_]})"); used = True; cur = w_
                if used: a.label(u)
            if n == W: stamp("k0")
            if n == W + 4: stamp("k4")
            if par and len(prev) >= min(par):
                u = f"L_pw{n}"
                a(f"s_cbranch_{'vccnz' if par[1] > par[0] else 'vccz'} {u}")
                a(f"s_waitcnt vmcnt({len(order) - 1 - prev[-min(par)]})")
                a.label(u)
            if adapt and st.get("mode") and item[0] == "v":
                u = f"L_aw{item[1]}"
                a(f"s_cmp_ge_u32 s72, {adapt[4]}"); a(f"s_cbranch_scc1 {u}")
                a(f"s_waitcnt vmcnt({len(order) - 1 - prev[-adapt[1]]})")
                if adapt[0] != adapt[1]:
                    a(f"s_cmp_ge_u32 s72, {adapt[3]}"); a(f"s_cbranch_scc1 {u}")
                    a(f"s_waitcnt vmcnt({len(order) - 1 - prev[-adapt[0]]})")
                a.label(u)
        while not free: assert run_ready(force=True)
        if gate and item == ("v", 31): a(f"v_mov_b32 v{Q}, 0"); a(f"ds_read_b32 v{Q}, v{Q} offset:{L_ROLE+8}")
        issue(item)
        if n == nK - 1: task_qfin(); st["q"] = True
        run_ready()
    while st["pv"] < 31: assert run_ready(force=True)
    setexec(PLAIN) if st["pv"] == 32 else None
    if st["pv"] == 31:
        task_pv(31); st["pv"] = 32; setexec(PLAIN)
    stamp("vend")
    a(f"ds_write_b128 {VP}, {v4(D)}")
    a("s_mov_b64 exec, -1")
    a("s_waitcnt lgkmcnt(0)"); stamp("oadd"); a("s_barrier")
    if dyn:
        a(f"v_mov_b32 v{T[0]}, 0"); a(f"ds_read_b32 v{T[0]}, v{T[0]} offset:{L_ROLE}")
        a("s_waitcnt lgkmcnt(0)"); a(f"v_readfirstlane_b32 {RID}, v{T[0]}")
        role_setup()
    if fast1:
        a(f"v_mov_b32 v{T[0]}, 0"); a(f"ds_read_b32 v{T[0]}, v{T[0]} offset:{L_ROLE+4}")
        a("s_waitcnt lgkmcnt(0)"); a(f"v_readfirstlane_b32 s61, v{T[0]}")
    else: a("s_mov_b32 s61, 0")
    def b4(tag):
        if tag: a(f"s_cmp_eq_u32 {WAVE}, 8"); a(f"s_cbranch_scc1 L_b4{tag}")
        a("s_barrier")
        if tu > 1 or gate: a("s_mov_b32 s42, s14"); a(f"buffer_load_dword v{S+11}, v{S}, s[40:43], 0 offen")
        if tag: a.label(f"L_b4{tag}")
    if not pre: b4("")
    for i in range(EW, 8): alloc(("g", i))
    G = [slot_of[("g", i)] for i in range(8)]
    F = [SLOT0 + 4 * s for s in free]
    assert len(F) >= 20
    a("s_branch L_tail")

    a.label("L_helper")
    a("s_setprio 3")
    a(f"s_mov_b32 {WAVE}, 8")
    a(f"s_lshl_b32 s63, {HEAD}, 8"); a(f"s_sub_u32 s42, {576*8192}, s63"); a("s_mov_b32 s43, 0x20000")
    a(f"v_lshrrev_b32 v{T[1]}, 4, {LANE}"); a(f"v_mul_u32_u24 v{T[2]}, 18, v{T[1]}")
    a(f"s_mul_i32 s3, {SPLIT}, 72"); a(f"v_add_u32 v{T[2]}, s3, v{T[2]}")
    a(f"v_and_b32 v{T[3]}, 0xf0, v{T[0]}"); a(f"v_lshl_add_u32 {VW}, v{T[2]}, 13, v{T[3]}")
    a(f"v_lshlrev_b32 v{T[2]}, 1, v{T[2]}")
    a("s_mov_b32 s61, 0")
    a("s_waitcnt lgkmcnt(0)")
    a("s_mov_b32 s44, s4"); a("s_mov_b32 s45, s5")
    a("s_add_u32 s40, s10, s63"); a("s_addc_u32 s41, s11, 0")
    x0, x1 = SLOT0, SLOT0 + 4
    WQ = [SLOT0 + 8 + 4 * i for i in range(18)]
    a(f"buffer_load_dwordx4 {v4(x0)}, v{T[0]}, {sX}, 0 offen"); a(f"buffer_load_dwordx4 {v4(x1)}, v{T[0]}, {sX}, 0 offen offset:1024")
    a(f"buffer_load_dwordx4 {v4(S)}, v{T[2]}, {sX}, 0 offen"); a(f"buffer_load_dwordx4 {v4(S+4)}, v{T[2]}, {sX}, 0 offen offset:16")
    a(f"buffer_load_dword v{S+8}, v{T[2]}, {sX}, 0 offen offset:32")
    for t in range(18):
        a(f"buffer_load_dwordx4 {v4(WQ[t])}, {VW}, {sWQ}, s61 offen {wqpol}"); a("s_addk_i32 s61, 0x2000")
    CPF = 1 if codepf > 1 else 0
    def codetouch():
        u = codetouch.n = getattr(codetouch, "n", 0) + 1
        a("s_getpc_b64 s[74:75]"); a.label(f"L_pc{u}")
        a(f"s_sub_u32 s74, s74, L_pc{u}-{KNAME}"); a("s_subb_u32 s75, s75, 0")
        a("s_lshr_b32 s3, s2, 3"); a("s_lshl_b32 s3, s3, 10")
        a(f"v_lshl_add_u32 v{T[5]}, {LANE}, 7, s3"); a(f"v_min_u32 v{T[5]}, L_end-{KNAME}-4, v{T[5]}")
        a("s_mov_b64 exec, 0xff"); a(f"global_load_dword v{T[5]}, v{T[5]}, s[74:75]"); a("s_mov_b64 exec, -1")
    late_setup()
    a("s_mov_b32 s35, 0x20000"); a("s_mov_b32 s39, 0x20000")
    a(f"v_mov_b32 v{B[0]}, 0"); a(f"v_lshlrev_b32 v{T[1]}, 2, {LANE}")
    a(f"ds_write_b32 v{T[1]}, v{B[0]} offset:{L_ST}")
    a(f"v_mov_b32 {VKV}, v{T[0]}")
    if CPF: codetouch()
    a(f"s_waitcnt vmcnt({18+CPF})")
    U = [B[0] + i for i in range(8)]
    for i in range(4):
        a(f"v_lshlrev_b32 v{U[2*i]}, 16, v{x0+i}"); a(f"v_and_b32 v{U[2*i+1]}, {HI}, v{x0+i}")
    U2 = [x0 + i for i in range(4)] + [Q + i for i in range(4)]
    for i in range(4): a(f"v_lshlrev_b32 v{U2[2*i]}, 16, v{x1+i}")
    for i in range(4): a(f"v_and_b32 v{U2[2*i+1]}, {HI}, v{x1+i}")
    sm = f"v{T[0]}"; t_ = f"v{T[1]}"; q2 = f"v{T[2]}"
    a(f"v_add_f32 {sm}, v{U[0]}, v{U[1]}")
    for r in U[2:] + U2: a(f"v_add_f32 {sm}, {sm}, v{r}")
    allred16([sm]); allred_rows(sm, t_)
    a(f"v_mul_f32 {sm}, {f32(1/576)}, {sm}")
    for r in U: a(f"v_sub_f32 v{r}, v{r}, {sm}")
    a(f"v_mul_f32 {q2}, v{U[0]}, v{U[0]}")
    for r in U[1:]: a(f"v_fmac_f32 {q2}, v{r}, v{r}")
    a("s_mov_b64 exec, 0xff")
    for r in U2: a(f"v_sub_f32 v{r}, v{r}, {sm}")
    for r in U2: a(f"v_fmac_f32 {q2}, v{r}, v{r}")
    a("s_mov_b64 exec, -1")
    allred16([q2]); allred_rows(q2, t_)
    a(f"v_mul_f32 {q2}, {f32(1/576)}, {q2}")
    rbf(sm, sm); rbf(q2, q2)
    a(f"v_add_f32 {q2}, {f32(1e-5)}, {q2}"); rbf(q2, q2)
    a(f"v_sqrt_f32 {q2}, {q2}"); rbf(q2, q2)
    a(f"v_rcp_f32 {q2}, {q2}")
    for i in range(9):
        lo, hi = f"v{T[3]}", f"v{T[4]}"
        a(f"v_lshlrev_b32 {lo}, 16, v{S+i}"); a(f"v_and_b32 {hi}, {HI}, v{S+i}")
        a(f"v_sub_f32 {lo}, {lo}, {sm}"); a(f"v_sub_f32 {hi}, {hi}, {sm}")
        a(f"v_cvt_pk_bf16_f32 v{S+i}, {lo}, {hi}")
        a(f"v_lshlrev_b32 {lo}, 16, v{S+i}"); a(f"v_and_b32 {hi}, {HI}, v{S+i}")
        a(f"v_mul_f32 {lo}, {lo}, {q2}"); a(f"v_mul_f32 {hi}, {hi}, {q2}")
        a(f"v_cvt_pk_bf16_f32 v{S+i}, {lo}, {hi}")
    a("s_mov_b32 s72, 0x01000100"); a("s_mov_b32 s73, 0x03020302")
    a("s_waitcnt lgkmcnt(0)")
    tag_setup()
    a(f"s_lshl_b32 s3, {HEAD}, 13"); a(f"s_add_u32 s3, s3, {Q0}"); a(f"v_add_u32 {VL}, s3, {VKV}")
    a(f"s_lshl_b32 s62, {SPLIT}, 10")
    a("s_mov_b32 s74, 0xff00ff00"); a("s_mov_b32 s75, 0xff00ff00")
    for t in range(18):
        b = B[t & 1]
        a(f"v_perm_b32 v{T[0]}, v{S+t//2}, v{S+t//2}, {'s73' if t & 1 else 's72'}")
        selector(b, f"v{T[0]}")
        a(f"s_waitcnt vmcnt({17-t+CPF})")
        mfma(WQ[t], b, first=(t == 0))
    a(f"v_mov_b32 v{B[0]+1}, {EP1}"); a(f"v_mov_b32 v{B[0]+3}, {EP1}")
    a(f"v_cndmask_b32 v{B[0]}, v{D}, v{D+2}, s[74:75]"); a(f"v_cndmask_b32 v{B[0]+2}, v{D+1}, v{D+3}, s[74:75]")
    if qfast:
        a(f"s_add_u32 s3, s62, {FAST}"); a(f"buffer_store_dwordx4 {v4(B[0])}, {VL}, {sWS}, s3 offen")
    a(f"buffer_store_dwordx4 {v4(B[0])}, {VL}, {sWS}, s62 offen sc1")
    stamp("qpub")
    if fast1:
        a("s_getreg_b32 s78, hwreg(HW_REG_XCC_ID, 0, 4)")
        a(f"s_lshl_b32 s3, {EP1}, 4"); a("s_or_b32 s3, s3, s78"); a(f"v_mov_b32 v{T[0]}, s3")
        a("s_and_b32 s3, s2, 7"); a("s_lshl_b32 s3, s3, 5"); a("s_lshr_b32 s62, s2, 3"); a("s_add_u32 s3, s3, s62")
        a("s_lshl_b32 s3, s3, 2"); a(f"s_add_u32 s3, s3, {XC}"); a(f"v_mov_b32 v{T[1]}, s3")
        a("s_mov_b64 exec, 1"); a(f"buffer_store_dword v{T[0]}, v{T[1]}, {sWS}, 0 offen sc1"); a("s_mov_b64 exec, -1")
        a(f"s_mov_b32 s61, {FAST}")
    a(f"v_lshrrev_b32 {VF}, 3, {LANE}"); a(f"v_lshlrev_b32 {VF}, 5, {VF}"); a(f"v_and_b32 v{T[1]}, 7, {LANE}"); a(f"v_lshl_add_u32 {VF}, v{T[1]}, 1, {VF}")
    a(f"s_mov_b32 s60, {FAST if qfast else 0}"); a("s_add_u32 s62, s60, 0x1000")
    if qsleep: a(f"s_sleep {qsleep}")
    a(f"s_mov_b32 {CNT}, 0x40000")
    a.label("L_pq")
    for i in range(8): a(f"buffer_load_dwordx4 {v4(WQ[i])}, {VL}, {sWS}, {'s60' if i < 4 else 's62'} offen offset:{(i & 3) * 1024} sc1")
    for i in range(8):
        a(f"s_waitcnt vmcnt({7-i})")
        a(f"v_bitop3_b32 v{T[1]}, v{WQ[i]+1}, v{WQ[i]+3}, {EP1} bitop3:0x7e")
        a(f"v_mov_b32 v{T[0]}, v{T[1]}" if i == 0 else f"v_or_b32 v{T[0]}, v{T[0]}, v{T[1]}")
    a(f"v_cmp_ne_u32 vcc, 0, v{T[0]}")
    a("s_cbranch_vccz L_pq_ok")
    if qsl2: a(f"s_sleep {qsl2}")
    if qfast: a(f"s_cmp_gt_u32 {CNT}, {0x40000 - qfast + 1}"); a("s_cselect_b32 s60, s60, 0"); a("s_add_u32 s62, s60, 0x1000")
    a(f"s_sub_u32 {CNT}, {CNT}, 1"); a(f"s_cmp_lg_u32 {CNT}, 0"); a("s_cbranch_scc1 L_pq")
    a.label("L_pq_ok")
    if diag and "polls" in names:
        i = names.index("polls"); a(f"s_sub_u32 s{80+2*i}, 0x40001, {CNT}")
    for i in range(1, 8):
        a(f"v_add_f32 v{WQ[0]}, v{WQ[0]}, v{WQ[i]}"); a(f"v_add_f32 v{WQ[0]+2}, v{WQ[0]+2}, v{WQ[i]+2}")
    a(f"v_cvt_pk_bf16_f32 v{WQ[0]}, v{WQ[0]}, v{WQ[0]+2}")
    a(f"ds_write_b16 {VF}, v{WQ[0]} offset:{L_Q}"); a(f"ds_write_b16_d16_hi {VF}, v{WQ[0]} offset:{L_Q + 16}")
    a("s_waitcnt lgkmcnt(0)")
    if thr:
        a(f"v_mov_b32 v{T[0]}, 7"); a(f"v_mov_b32 v{T[1]}, 0"); a(f"ds_write_b32 v{T[1]}, v{T[0]} offset:{L_ROLE+8}")
        a("s_waitcnt lgkmcnt(0)")
    if adapt:
        a(f"v_mov_b32 v{T[0]}, {adapt[3]}"); a(f"v_mov_b32 v{T[1]}, 0"); a(f"ds_write_b32 v{T[1]}, v{T[0]} offset:{L_ROLE+8}")
        a("s_waitcnt lgkmcnt(0)")
    stamp("qgot")
    a("s_barrier")
    def progress():
        a("s_lshr_b32 s3, s2, 3"); a("s_lshl_b32 s3, s3, 7"); a(f"s_add_u32 s72, s3, {KD}")
        a("s_and_b32 s73, s2, 7"); a("s_lshl_b32 s3, s73, 2")
        a(f"v_mov_b32 v{S+4}, {EP1}"); a(f"v_mov_b32 v{S+5}, s3"); a(f"v_lshlrev_b32 v{S+6}, 2, {LANE}")
        a("s_mov_b64 exec, 0xff"); a(f"buffer_load_dword v{S+7}, v{S+6}, {sWS}, s72 offen sc1")
        a("s_mov_b64 exec, 1"); a(f"buffer_store_dword v{S+4}, v{S+5}, {sWS}, s72 offen sc1")
        a("s_mov_b64 exec, 0xff"); a("s_waitcnt vmcnt(1)")
        a(f"v_cmp_eq_u32 vcc, {EP1}, v{S+7}"); a("s_mov_b64 exec, -1")
        a("s_bcnt1_i32_b32 s3, vcc_lo")
        a(f"v_mov_b32 v{S+4}, s3"); a(f"v_mov_b32 v{S+5}, 0"); a(f"ds_write_b32 v{S+5}, v{S+4} offset:{L_ROLE+8}")
    if thr: progress()
    a(f"v_mov_b32 v{T[0]}, {VKV}")
    if codepf: codetouch()
    if pads:
        a("s_mov_b64 exec, 0"); a("s_cbranch_execz P_pub_0")
        a.label("L_warm1")
        a(f"s_cmp_lt_u32 {RID}, 144"); a("s_cbranch_scc1 P_ffn_0")
        a(f"s_cmp_lt_u32 {RID}, 216"); a("s_cbranch_scc1 P_wo_0")
        a("s_branch P_red_0")
        a.label("L_warm2")
        a("s_mov_b64 exec, -1")
    a(f"s_lshl_b32 s3, {HEAD}, 3"); a(f"s_add_u32 s3, s3, {SPLIT}")
    a(f"s_lshl_b32 s62, s3, 9"); a(f"s_add_u32 s62, s62, {O1}"); a(f"v_add_u32 {VW}, s62, v{T[0]}")
    a("s_lshl_b32 s62, s3, 4"); a(f"s_add_u32 s62, s62, {ML}"); a(f"v_writelane_b32 {VW}, s62, 32")
    a(f"v_and_b32 {VKV}, 0x1f0, v{T[0]}"); a(f"v_lshrrev_b32 v{T[1]}, 5, {LANE}"); a(f"v_lshl_add_u32 {VKV}, v{T[1]}, 11, {VKV}")
    HT = [Q, B[0], B[1]]
    def half_sum():
        if not trim:
            for r in range(4): a(f"v_mov_b32 v{T[r]}, v{D+r}")
        for r in range(4): a(f"v_permlane32_swap_b32 v{D+r}, v{T[r]}")
        add4(D, T[0])
    a("s_barrier")
    if dyn:
        a(f"v_mov_b32 {VL}, 1"); a(f"v_mov_b32 {VF}, 0")
        a("s_mov_b64 exec, 1")
        a(f"buffer_atomic_add {VL}, {VF}, s[96:99], 0 offen sc0 sc1")
        a("s_mov_b64 exec, -1")
    if adapt: progress()
    def groups_done():
        a("s_mov_b64 exec, 0xff"); a(f"buffer_load_dword v{S+7}, v{S+6}, {sWS}, 0 offen sc1"); a("s_waitcnt vmcnt(0)")
        a(f"v_bitop3_b32 v{S+7}, v{S+7}, {VTAG}, {TLOW} bitop3:0x28"); a(f"v_cmp_eq_u32 vcc, 0, v{S+7}"); a("s_mov_b64 exec, -1")
        a("s_bcnt1_i32_b32 s3, vcc_lo")
    if gate:
        assert rep2
        a("s_and_b32 s3, s2, 7"); a("s_lshl_b32 s3, s3, 15"); a(f"s_add_u32 s3, s3, {Z2R}"); a(f"v_lshl_add_u32 v{S+6}, {LANE}, 8, s3")
        groups_done()
        a(f"s_cmp_ge_u32 s3, {gate[0]}"); a("s_cselect_b32 s72, 1, 0")
        a(f"v_mov_b32 v{S+4}, s72"); a(f"v_mov_b32 v{S+5}, 0"); a(f"ds_write_b32 v{S+5}, v{S+4} offset:{L_ROLE+8}")
        if diag and "rank" in names: a(f"s_add_u32 s{80+2*names.index('rank')}, s3, 1")
    if fast1:
        a("s_and_b32 s3, s2, 7"); a("s_lshl_b32 s3, s3, 7"); a(f"s_add_u32 s3, s3, {XC}")
        a(f"v_and_b32 v{S}, 31, {LANE}"); a(f"v_lshlrev_b32 v{S}, 2, v{S}")
        a(f"buffer_load_dword v{S}, v{S}, {sWS}, s3 offen sc1")
    wgmax(VM)
    if dyn:
        a("s_waitcnt vmcnt(0)")
        stamp("claim")
        a(f"v_readfirstlane_b32 {RID}, {VL}")
        a("s_mov_b64 exec, 1"); a(f"ds_write_b32 {VF}, {VL} offset:{L_ROLE}"); a("s_mov_b64 exec, -1")
        role_setup()
        a("s_waitcnt lgkmcnt(0)")
    if fast1:
        a("s_waitcnt vmcnt(0)")
        a(f"s_lshl_b32 s3, {EP1}, 4"); a("s_or_b32 s3, s3, s78")
        a(f"v_cmp_ne_u32 vcc, s3, v{S}")
        a("s_cmp_eq_u32 vcc_lo, 0"); a(f"s_cselect_b32 s3, {FAST}, 0")
        a(f"v_mov_b32 v{T[0]}, s3"); a(f"v_mov_b32 {VF}, 0"); a(f"ds_write_b32 {VF}, v{T[0]} offset:{L_ROLE+4}")
        a("s_waitcnt lgkmcnt(0)")
    a(f"v_mov_b32 {VF}, 0")
    a.mark("chain", "P_pub", "L_warm1")
    a("s_barrier")
    a(f"ds_read_b128 {v4(F[0])}, {VF} offset:{L_LW}"); a(f"ds_read_b128 {v4(F[1])}, {VF} offset:{L_LW+16}")
    stamp("b3")
    sum_parts(VKV, D, HT, 4, 512)
    add4(F[0], F[1])
    half_sum()
    a(f"v_add_f32 v{F[0]}, v{F[0]}, v{F[0]+1}"); a(f"v_add_f32 v{F[0]+2}, v{F[0]+2}, v{F[0]+3}")
    a("s_mov_b32 exec_lo, 0"); a("s_mov_b32 exec_hi, 1")
    a(f"v_add_f32 v{D+1}, v{F[0]}, v{F[0]+2}"); a(f"v_mov_b32 v{D}, {VM}"); a(f"v_mov_b32 v{D+2}, {VM}"); a(f"v_mov_b32 v{D+3}, {VM}")
    a("s_mov_b32 exec_lo, -1")
    for i in range(4): a(f"v_and_or_b32 v{D+i}, v{D+i}, {TMASK}, {VTAG}")
    if fast1: a(f"buffer_store_dwordx4 {v4(D)}, {VW}, {sWS}, s61 offen")
    a(f"buffer_store_dwordx4 {v4(D)}, {VW}, {sWS}, 0 offen sc1")
    stamp("ostore")
    a("s_mov_b64 exec, -1")
    if gate:
        a.mark("nopad", 1)
        a(f"s_sub_u32 s3, {RID}, 144"); a("s_cmp_lt_u32 s3, 72"); a("s_cbranch_scc1 L_gate_ok")
        a("s_cmp_lg_u32 s72, 0"); a("s_cbranch_scc1 L_gate_ok")
        a(f"s_mov_b32 {CNT}, 0x40000")
        a.label("L_gate")
        groups_done()
        a(f"s_cmp_ge_u32 s3, {gate[1]}"); a("s_cbranch_scc1 L_gate_ok")
        a("s_sleep 2")
        a(f"s_sub_u32 {CNT}, {CNT}, 1"); a(f"s_cmp_lg_u32 {CNT}, 0"); a("s_cbranch_scc1 L_gate")
        a.label("L_gate_ok")
        a.mark("nopad", 0)
    if pre: a(f"s_sub_u32 s3, {RID}, 144"); a("s_cmp_lt_u32 s3, 72"); a("s_cbranch_scc1 L_wo_pub")
    a("s_barrier")
    a("s_setprio 0")

    a.label("L_tail")
    stamp("tail")
    a(f"s_cmp_lt_u32 {RID}, 144"); a("s_cbranch_scc1 L_ffn")
    a(f"s_cmp_lt_u32 {RID}, 216"); a("s_cbranch_scc1 L_wo")
    if pre: b4("r")
    if t2 == "red":
        a("s_and_b32 s3, s2, 7"); a(f"s_mul_i32 s3, s3, {576*1152}")
        a("s_lshr_b32 s62, s2, 3"); a("s_sub_u32 s62, s62, 27"); a(f"s_mul_i32 s62, s62, {1037*128}")
        a(f"s_sub_u32 s42, {576*1152}, s62"); a(f"s_min_u32 s42, s42, {1037*128}"); a("s_add_u32 s3, s3, s62")
        a("s_add_u32 s40, s20, s3"); a("s_addc_u32 s41, s21, 0")
        a(f"s_lshl_b32 s3, {WAVE}, 14"); a(f"v_lshl_add_u32 v{T[0]}, {LANE}, 7, s3"); a("s_movk_i32 s3, 0x2000")
        a(f"buffer_load_dword v{S+14}, v{T[0]}, s[40:43], 0 offen"); a(f"buffer_load_dword v{S+15}, v{T[0]}, s[40:43], s3 offen")
    a(f"s_cmp_lt_u32 {RID}, 252"); a("s_cbranch_scc1 L_red")
    a("s_branch L_done")
    a.mark("end")

    a.label("L_wo")
    a.mark("chain", "P_wo", "L_warm2")
    a(f"s_cmp_eq_u32 {WAVE}, 8"); a("s_cbranch_scc1 L_wo_pub")
    OA, OB, MLr = F[0], F[1], F[2]
    for i in range(EW, 8):
        if i - EW >= Ww: a(f"s_waitcnt vmcnt({Ww-1})")
        gload(i, G[i])
    a(f"s_and_b32 s3, {RID}, 7"); a("s_lshl_b32 s3, s3, 2"); a(f"s_lshr_b32 s62, {WAVE}, 1"); a("s_add_u32 s3, s3, s62")
    a(f"s_lshl_b32 s62, s3, 12"); a(f"s_and_b32 s60, {WAVE}, 1"); a("s_lshl_b32 s60, s60, 8"); a("s_add_u32 s62, s62, s60")
    a(f"s_add_u32 s62, s62, {O1}")
    a(f"v_lshrrev_b32 v{T[4]}, 4, {LANE}"); a(f"v_and_b32 v{T[5]}, 15, {LANE}")
    a(f"v_lshlrev_b32 {VKV}, 9, v{T[4]}"); a(f"v_lshl_add_u32 {VKV}, v{T[5]}, 4, {VKV}"); a(f"v_add_u32 {VKV}, s62, {VKV}")
    a("s_lshl_b32 s62, s3, 7"); a(f"s_add_u32 s62, s62, {ML}")
    a(f"v_bfe_u32 v{T[6]}, {LANE}, 3, 1"); a(f"v_lshl_add_u32 v{T[6]}, v{T[6]}, 2, v{T[4]}")
    a(f"v_lshlrev_b32 {VW}, 4, v{T[6]}"); a(f"v_add_u32 {VW}, s62, {VW}")
    part_addr(VM, True)
    a("s_mov_b32 s74, 0xff00ff00"); a("s_mov_b32 s75, 0xff00ff00")
    ld1 = lambda i, r: (f"buffer_load_dwordx4 {v4(r)}, {VW}, {sWS}, s61 offen sc1",
                        f"buffer_load_dwordx4 {v4(r)}, {VKV}, {sWS}, s61 offen sc1",
                        f"buffer_load_dwordx4 {v4(r)}, {VKV}, {sWS}, s61 offen offset:2048 sc1")[i]
    ppoll("L_p1", ld1, [MLr, OA, OB], [F[3+3*k:6+3*k] for k in range(PD1)])
    stamp("got")
    m1, l1, m2, l2, M, t = (f"v{T[i]}" for i in range(6))
    m1, l1 = f"v{MLr}", f"v{MLr+1}"
    dpp("v_max_f32", M, m1, m1, "row_ror:8"); allred_rows(M, t, "v_max_f32")
    a(f"v_sub_f32 {m1}, {m1}, {M}"); a(f"v_mul_f32 {m1}, {LOG2E}, {m1}"); a(f"v_exp_f32 {m1}, {m1}")
    a(f"v_mul_f32 {l1}, {l1}, {m1}")
    a(f"v_mov_b32_dpp {m2}, {m1} row_ror:8 row_mask:0xf bank_mask:0xf")
    dpp("v_add_f32", l1, l1, l1, "row_ror:8")
    a(f"v_cndmask_b32 {l2}, {m1}, {m2}, s[74:75]"); a(f"v_cndmask_b32 {m2}, {m2}, {m1}, s[74:75]")
    for i in range(4): a(f"v_mul_f32 v{OA+i}, v{OA+i}, {l2}")
    for i in range(4): a(f"v_fmac_f32 v{OA+i}, v{OB+i}, {m2}")
    a(f"v_mov_b32 {t}, {l1}")
    a(f"v_permlane16_swap_b32 v{OA}, v{OA+1}"); a(f"v_permlane16_swap_b32 {l1}, {t}"); a(f"v_permlane16_swap_b32 v{OA+2}, v{OA+3}")
    a(f"v_add_f32 {l1}, {l1}, {t}"); a(f"v_add_f32 v{OA}, v{OA}, v{OA+1}"); a(f"v_mov_b32 {t}, {l1}"); a(f"v_add_f32 v{OA+2}, v{OA+2}, v{OA+3}")
    a(f"v_permlane32_swap_b32 {l1}, {t}"); a(f"v_permlane32_swap_b32 v{OA}, v{OA+2}")
    a(f"v_add_f32 {l1}, {l1}, {t}"); a(f"v_add_f32 v{OA}, v{OA}, v{OA+2}")
    a(f"v_rcp_f32 {l1}, {l1}")
    a(f"v_mul_f32 v{OA}, v{OA}, {l1}")
    a(f"v_cvt_pk_bf16_f32 v{OA}, v{OA}, v{OA}")
    stamp("f2a")
    mfma_chain(8, bcast_src(f"v{OA}"), lambda t: G[t])
    stamp("f3a")
    if pre: a("s_barrier")
    setexec(TWO)
    a(f"ds_write_b128 {VM}, {v4(D)}")
    a("s_waitcnt lgkmcnt(0)"); a("s_barrier")
    a("s_branch L_done")
    a.label("L_wo_pub")
    a(f"s_and_b32 s3, {RID}, 7"); a("s_lshl_b32 s3, s3, 8"); a(f"s_lshl_b32 s62, {ROLE}, 11"); a("s_add_u32 s3, s3, s62"); a(f"s_add_u32 s3, s3, {Z2R if rep2 else Z2}")
    a(f"v_lshrrev_b32 v{T[4]}, 4, {LANE}"); a(f"v_and_b32 v{T[5]}, 15, {LANE}"); a(f"v_lshlrev_b32 v{T[5]}, 4, v{T[5]}")
    a(f"v_lshl_add_u32 {VKV}, v{T[4]}, 10, v{T[5]}")
    a(f"v_lshl_add_u32 {VW}, v{T[4]}, {15 if rep2 else 2}, v{T[5]}"); a(f"v_add_u32 {VW}, s3, {VW}")
    a(f"s_mov_b32 s62, {4*Z2S}")
    if pre: a("s_barrier")
    a("s_barrier")
    stamp("b6")
    sum_parts(VKV, D, HT, 4, 256)
    if rep2:
        for sw in ("32", "16"):
            for r in ((0, 2) if pk else range(4)): a(f"v_pk_mov_b32 v[{T[r]}:{T[r]+1}], v[{D+r}:{D+r+1}], v[{D+r}:{D+r+1}] op_sel:[0,1]" if pk else f"v_mov_b32 v{T[r]}, v{D+r}")
            for r in range(4): a(f"v_permlane{sw}_swap_b32 v{D+r}, v{T[r]}")
            add4(D, T[0])
        for r in range(4): a(f"v_and_or_b32 v{D+r}, v{D+r}, {TMASK}, {VTAG}")
        a(f"buffer_store_dwordx4 {v4(D)}, {VW}, {sWS}, 0 offen sc1")
        a(f"buffer_store_dwordx4 {v4(D)}, {VW}, {sWS}, s62 offen sc1")
    elif pub2x4:
        for sw in ("32", "16"):
            for r in range(4): a(f"v_permlane{sw}_swap_b32 v{D+r}, v{T[r]}")
            for r in range(4): a(f"v_add_f32 v{D+r}, v{D+r}, v{T[r]}")
        a("s_mov_b64 exec, 0xffff")
        for r in range(4): a(f"v_and_or_b32 v{D+r}, v{D+r}, {TMASK}, {VTAG}")
        a(f"buffer_store_dwordx4 {v4(D)}, {VW}, {sWS}, 0 offen sc1")
    else:
        rows_scatter(*(f"v{D+i}" for i in range(4)))
        a(f"v_and_or_b32 v{D}, v{D}, {TMASK}, {VTAG}")
        a(f"buffer_store_dword v{D}, {VW}, {sWS}, 0 offen sc1")
    stamp("pub")
    a("s_branch L_done")

    a.mark("end")
    a.label("L_ffn")
    a.mark("chain", "P_ffn", "L_warm2")
    W13 = F[0:8]; ZA, ZB = F[9], F[10]; HX = F[11]
    AD = f"v[{HX}:{HX+1}]"
    a(f"s_mov_b32 s54, {0 if now13 > 1 else 32*1152}")
    G2 = G + [F[8], F[14], F[15], F[16]]
    def w2loads(tag):
        a(f"s_cmp_ge_u32 {WAVE}, 4"); a(f"s_cbranch_scc1 L_w2{tag}")
        for t in range(4):
            for b in range(3):
                so = (("0", "s76"), ("0", "s76"), ("s12", "s13"))[b][t >> 1]
                a(f"buffer_load_dwordx4 {v4(G2[4*b+t])}, {VG}, {sG}, {so} offen offset:{(t & 1) * 2304 + 512 * b} {wpol}")
        a.label(f"L_w2{tag}")
    a(f"s_cmp_eq_u32 {WAVE}, 0"); a("s_cselect_b32 s12, 0, 0x40000000"); a("s_add_u32 s13, s12, s76")
    a(f"v_lshrrev_b32 v{T[4]}, 4, {LANE}"); a(f"v_bfe_u32 v{T[5]}, {LANE}, 3, 1"); a(f"v_lshl_add_u32 v{T[6]}, v{T[4]}, 3, v{T[5]}")
    a(f"s_lshl_b32 s3, {WAVE}, 6"); a(f"v_add_u32 v{T[6]}, s3, v{T[6]}"); a(f"v_mul_u32_u24 v{T[6]}, 9216, v{T[6]}")
    a(f"v_and_b32 v{T[7]}, 3, {LANE}"); a(f"v_lshl_add_u32 v{T[6]}, v{T[7]}, 4, v{T[6]}")
    a(f"s_lshl_b32 s62, {ROLE}, 6"); a(f"v_add_u32 v{T[6]}, s62, v{T[6]}")
    a("s_mov_b32 s74, 0xf0f0f0f0"); a("s_mov_b32 s75, 0xf0f0f0f0")
    a(f"v_mov_b32 v{HX}, s16"); a(f"v_mov_b32 v{HX+1}, s17"); a(f"v_mov_b32 v{HX+2}, s18"); a(f"v_mov_b32 v{HX+3}, s19")
    a(f"v_cndmask_b32 v{HX}, v{HX}, v{HX+2}, s[74:75]"); a(f"v_cndmask_b32 v{HX+1}, v{HX+1}, v{HX+3}, s[74:75]")
    a(f"v_add_co_u32 v{HX}, vcc, v{HX}, v{T[6]}"); a(f"v_addc_co_u32 v{HX+1}, vcc, 0, v{HX+1}, vcc")
    a(f"s_movk_i32 s72, {2*9216}"); a("s_mov_b32 s73, 0"); a(f"s_mov_b32 s10, {26*9216}"); a("s_mov_b32 s11, 0")
    if pre: b4("f")
    if dwait: a("s_waitcnt vmcnt(0)")
    if dwait > 1: a("s_barrier")
    for tt in range(8):
        if not now13: a(f"global_load_dwordx4 {v4(W13[tt])}, {AD}, off {wpol}")
        if tt < 7: a(f"v_lshl_add_u64 {AD}, {'s[10:11]' if tt == 3 else 's[72:73]'}, 0, {AD}")
    a(f"v_lshl_add_u32 {VL}, v{T[5]}, 2, v{T[4]}"); a(f"v_and_b32 v{T[6]}, 7, {LANE}"); a(f"v_lshl_add_u32 {VL}, {VL}, 3, v{T[6]}")
    a(f"v_add_u32 {VL}, s3, {VL}"); a(f"v_lshlrev_b32 {VL}, 1, {VL}")
    a(f"buffer_load_ushort v{HX+2}, {VL}, {sX}, 0 offen")
    def z2base():
        if rep2: a("s_and_b32 s62, s2, 7"); a("s_lshl_b32 s62, s62, 15"); a("s_add_u32 s3, s3, s62")
        a(f"s_add_u32 s3, s3, {Z2R if rep2 else Z2}")
    a(f"v_and_b32 v{T[5]}, 15, {LANE}")
    a(f"s_lshl_b32 s3, {WAVE}, 11"); z2base()
    a(f"v_lshlrev_b32 {VKV}, 8, v{T[4]}"); a(f"v_lshl_add_u32 {VKV}, v{T[5]}, 4, {VKV}"); a(f"v_add_u32 {VKV}, s3, {VKV}")
    part_addr(VM, True)
    a(f"v_bfe_u32 {VW}, {LANE}, 4, 1"); a(f"v_lshlrev_b32 {VW}, 2, {VW}"); a(f"s_lshl_b32 s3, {WAVE}, 3"); a(f"v_add_u32 {VW}, s3, {VW}")
    VR, VO, VS, V8 = (f"v{S+i}" for i in (1, 2, 3, 8)); E = S + 4
    a(f"v_and_b32 {V8}, 31, {LANE}"); a(f"v_lshlrev_b32 {V8}, 4, {V8}")
    a(f"v_lshrrev_b32 {VR}, 5, {LANE}"); a(f"v_lshl_add_u32 {VR}, {VR}, 11, {V8}")
    if rmaj:
        a(f"s_lshl_b32 s3, {ROLE}, 6"); a(f"s_mul_i32 s62, {WAVE}, {4*9216}"); a("s_add_u32 s3, s3, s62"); a(f"s_add_u32 s3, s3, {P3}")
        a(f"v_bfe_u32 {VO}, {LANE}, 2, 1"); a(f"v_lshl_add_u32 {VO}, v{T[4]}, 1, {VO}"); a(f"v_mul_u32_u24 {VO}, 9216, {VO}")
        a(f"v_and_b32 v{T[7]}, 3, {LANE}"); a(f"v_lshl_add_u32 {VO}, v{T[7]}, 4, {VO}"); a(f"v_add_u32 {VO}, s3, {VO}")
    else:
        a(f"s_mul_i32 s3, {ROLE}, 2304"); a(f"s_lshl_b32 s62, {WAVE}, 8"); a("s_add_u32 s3, s3, s62"); a(f"s_add_u32 s3, s3, {P3}")
        a(f"v_lshlrev_b32 {VO}, 7, v{T[4]}"); a(f"v_lshl_add_u32 {VO}, v{T[6]}, 4, {VO}"); a(f"v_add_u32 {VO}, s3, {VO}")
    a("s_mov_b32 s10, 0.5"); a("s_mov_b32 s11, 0.5")
    a(f"v_lshlrev_b32 {VS}, 3, v{T[5]}")
    def colsums(n):
        a(f"v_mov_b32 v{T[0]}, 0x3f803f80"); selector(B[0], f"v{T[0]}")
        for t in range(8):
            a(f"s_waitcnt vmcnt({n + 1 + 7 - t})")
            mfma(W13[t], B[0], first=(t == 0), dst=Q)
        stamp("wts")
        for r in range(4): a(f"v_permlane32_swap_b32 v{Q+r}, v{B[1]+r}")
        for r in range(4): dpp("v_add_f32", f"v{E+r}", f"v{B[1]+r}", f"v{Q+r}", "row_ror:8")
        if w2at == "after": a("s_waitcnt vmcnt(0)"); w2loads("a"); a("s_branch L_p2_re")
    ld2 = lambda i, r: f"buffer_load_dwordx4 {v4(r)}, {VKV}, {sWS}, 0 offen offset:{1024*i} sc1"
    if f2lds:
        VX, VY = f"v{S+9}", f"v{S+10}"
        a(f"s_lshl_b32 s3, {WAVE}, 8"); a(f"s_add_u32 s3, s3, {L_H}")
        a(f"v_and_b32 {VX}, 1, {LANE}"); a(f"v_lshl_add_u32 {VX}, v{T[4]}, 1, {VX}"); a(f"v_lshlrev_b32 {VX}, 5, {VX}")
        a(f"v_bfe_u32 v{T[7]}, {LANE}, 1, 3"); a(f"v_lshl_add_u32 {VX}, v{T[7]}, 2, {VX}"); a(f"v_add_u32 {VX}, s3, {VX}")
        a(f"v_lshrrev_b32 {VY}, 3, {LANE}"); a(f"v_lshl_add_u32 {VY}, {VY}, 5, s3")
    ppoll("L_p2", ld2, [ZA, ZB], [F[12:14]], sleep2, first=colsums)
    stamp("got")
    if w2at == "got": w2loads("g")
    add4(ZA, ZB)
    a(f"v_lshlrev_b32 v{HX+2}, 16, v{HX+2}")
    rows_scatter(*(f"v{ZA+i}" for i in range(4)))
    h, h2, hd = f"v{ZA}", f"v{ZA+1}", f"v{ZA+2}"
    if tm: rbf(h, h)
    a(f"v_add_f32 {h}, {h}, v{HX+2}")
    a(f"v_cvt_pk_bf16_f32 {hd}, {h}, {h}"); a(f"v_and_b32 {h}, {HI}, {hd}")
    stat = [lambda st=st, r=r: dpp("v_add_f32", r, r, r, f"row_ror:{st}") for st in (8, 4, 2, 1) for r in (h, h2)]
    def f2pre(t):
        if t < fill and not f2lds: stat[t]()
        if t == 4 and w2at == "mid": w2loads("m")
    if f2lds:
        a(f"ds_write_b32 {VX}, {hd}")
        a(f"ds_read_b128 {v4(ZB)}, {VY}"); a(f"ds_read_b128 {v4(Q)}, {VY} offset:16")
        a(f"v_mul_f32 {h2}, {h}, {h}")
        for f_ in stat: f_()
        fill = 8
        def lsrc(t):
            if t == 0: a("s_waitcnt lgkmcnt(1)")
            if t == 4: a("s_waitcnt lgkmcnt(0)")
        lsrc.reg = lambda t: f"v{(ZB if t < 4 else Q) + t % 4}"
        lsrc(0); selector(B[0], lsrc.reg(0))
        for t in range(8):
            if t < 7: lsrc(t + 1); selector(B[(t + 1) & 1], lsrc.reg(t + 1))
            f2pre(t)
            mfma(W13[t], B[t & 1], first=(t == 0))
    else:
        a(f"v_mul_f32 {h2}, {h}, {h}")
        mfma_chain(8, bcast_src(hd), lambda t: W13[t], pre=f2pre)
    if w2at == "end": w2loads("e")
    stamp("f2a")
    for f_ in stat[fill:]: f_()
    a(f"v_permlane16_swap_b32 {h}, {h2}"); a(f"v_add_f32 {h}, {h}, {h2}")
    a(f"v_mov_b32 {h2}, {h}"); a(f"v_permlane32_swap_b32 {h}, {h2}"); a(f"v_add_f32 {h}, {h}, {h2}")
    for r in range(4): a(f"v_permlane32_swap_b32 v{D+r}, v{E+r}")
    a("s_mov_b64 exec, 0x00010001")
    a(f"ds_write_b32 {VW}, {h} offset:{L_ST}")
    a("s_mov_b64 exec, -1")
    for r in range(4): a(f"v_add_f32_dpp v{D+r}, v{E+r}, v{D+r} row_ror:8 row_mask:0x3 bank_mask:0xf")
    setexec(PLAIN)
    a(f"ds_write_b128 {VM}, {v4(D)}")
    a("s_mov_b64 exec, -1")
    a("s_waitcnt lgkmcnt(0)"); a("s_barrier")
    stamp("b6")
    a(f"s_cmp_ge_u32 {WAVE}, 4"); a("s_cbranch_scc1 L_done")
    mu, var = f"v{T[0]}", f"v{T[1]}"
    a(f"ds_read_b64 v[{T[0]}:{T[1]}], {VS} offset:{L_ST}")
    RD = [ZA, ZB, Q, HX, E]
    for i in range(4): a(f"ds_read_b128 {v4(RD[i])}, {VR} offset:{L_P + 512*i}")
    a(f"ds_read_b128 {v4(RD[4])}, {V8} offset:{L_P + 512*8}")
    if w2at == "b6": w2loads("b")
    a("s_waitcnt lgkmcnt(5)")
    assert not tm
    p2 = lambda r: f"v[{r}:{r+1}]"
    if pk:
        adds = [lambda i=i, r=r: a(f"v_pk_add_f32 {p2(ZA+r)}, {p2(ZA+r)}, {p2(RD[i]+r)}" if i < 4 else f"v_pk_fma_f32 {p2(ZA+r)}, {p2(RD[i]+r)}, s[10:11], {p2(ZA+r)}")
                for i in range(1, 5) for r in (0, 2)]
    else:
        adds = [lambda i=i, r=r: [a(f"v_add_f32 v{ZA+q}, v{ZA+q}, v{RD[i]+q}" if i < 4 else f"v_fmac_f32 v{ZA+q}, 0.5, v{RD[i]+q}") for q in (r, r + 1)]
                for i in range(1, 5) for r in (0, 2)]
    red = lambda st: (dpp("v_add_f32", mu, mu, mu, f"row_ror:{st}"), dpp("v_add_f32", var, var, var, f"row_ror:{st}"))
    red(8); a("s_waitcnt lgkmcnt(3)"); adds[0](); red(4); adds[1](); red(2)
    a("s_waitcnt lgkmcnt(2)"); adds[2](); red(1); adds[3]()
    a(f"v_mul_f32 {mu}, {f32(1/576)}, {mu}"); a(f"v_mul_f32 {var}, {f32(1/576)}, {var}")
    a("s_waitcnt lgkmcnt(1)"); adds[4](); a(f"v_fma_f32 {var}, -{mu}, {mu}, {var}"); adds[5](); a(f"v_max_f32 {var}, 0, {var}")
    a("s_waitcnt lgkmcnt(0)"); adds[6](); a(f"v_add_f32 {var}, {f32(1e-5)}, {var}"); adds[7]()
    stamp("f3a")
    a(f"v_rsq_f32 {var}, {var}")
    a(f"v_permlane16_swap_b32 v{ZA}, v{ZA+1}"); a(f"v_permlane16_swap_b32 v{ZA+2}, v{ZA+3}")
    a(f"v_fma_f32 v{ZA}, v{ZA+1}, -{mu}, v{ZA}"); a(f"v_fma_f32 v{ZA+2}, v{ZA+3}, -{mu}, v{ZA+2}")
    a(f"v_permlane32_swap_b32 v{ZA}, v{ZA+2}"); a(f"v_add_f32 v{ZA}, v{ZA}, v{ZA+2}")
    e = [f"v{T[i]}" for i in range(4)]
    g, ot = f"v{ZA}", f"v{ZA+2}"
    a(f"v_mul_f32 {g}, {g}, {var}")
    a(f"v_mul_f32 {ot}, {f32(-1.4426950408889634)}, {g}"); a(f"v_exp_f32 {ot}, {ot}")
    dpp("v_mul_f32", g, g, g, "row_ror:8")
    a(f"v_add_f32 {ot}, 1.0, {ot}"); a(f"v_rcp_f32 {ot}, {ot}"); a(f"v_mul_f32 {g}, {g}, {ot}")
    a(f"v_cvt_pk_bf16_f32 {g}, {g}, {g}")
    stamp("f3b")
    ACC = [D, Q, E]
    src = bcast_src(g); src(0)
    for t in range(4):
        selector(B[t & 1], src.reg(t))
        if t < 3: src(t + 1)
        for b in range(3):
            a(f"s_waitcnt vmcnt({11 - 3*t - b})")
            mfma(G2[4*b+t], B[t & 1], first=(t == 0), dst=ACC[b])
    stamp("f3c")
    a(f"s_mov_b32 s10, {16*9216 if rmaj else 1024}"); a(f"s_mov_b32 s11, {32*9216 if rmaj else 2048}")
    for b in range(3):
        if b == 2: a(f"s_cmp_lg_u32 {WAVE}, 0"); a("s_cbranch_scc1 L_done")
        d = ACC[b]
        if b: a("s_mov_b64 exec, -1")
        for r in range(4): a(f"v_permlane32_swap_b32 v{d+r}, {e[r]}")
        for r in range(4): dpp("v_add_f32", f"v{d+r}", e[r], f"v{d+r}", "row_ror:8")
        for r in range(4): a(f"v_and_or_b32 v{d+r}, v{d+r}, {TMASK}, {VTAG}")
        a("s_mov_b64 exec, 0x00ff00ff")
        a(f"buffer_store_dwordx4 {v4(d)}, {VO}, {sWS}, {('0', 's10', 's11')[b]} offen sc1")
        if b == 1: stamp("pub")
    stamp("pub")
    a("s_branch L_done")

    a.mark("end")
    a.label("L_red")
    a.mark("chain", "P_red", "L_warm2")
    PA_, HH = F[0], F[1]
    a(f"s_sub_u32 {ROLE}, {RID}, 216")
    a(f"v_and_b32 v{T[4]}, 3, {LANE}"); a(f"v_lshrrev_b32 v{T[5]}, 4, {LANE}")
    a(f"s_lshr_b32 s3, {ROLE}, 1"); a("s_lshl_b32 s3, s3, 5"); a(f"s_and_b32 s62, {ROLE}, 1"); a("s_lshl_b32 s62, s62, 2"); a("s_add_u32 s3, s3, s62")
    a(f"v_lshl_add_u32 {VL}, v{T[5]}, 3, v{T[4]}"); a(f"v_add_u32 {VL}, s3, {VL}"); a(f"v_lshlrev_b32 {VL}, 1, {VL}")
    a(f"v_lshl_add_u32 {VF}, v{T[5]}, 2, v{T[4]}"); a(f"v_mul_u32_u24 {VF}, 48, {VF}")
    a(f"s_lshl_b32 s3, {WAVE}, 2"); a(f"v_add_u32 {VM}, s3, {VF}")
    a(f"s_cmp_lg_u32 {WAVE}, 0"); a("s_cbranch_scc1 L_red_h3")
    a(f"buffer_load_ushort v{Q}, {VL}, {sX}, 0 offen")
    a(f"s_lshr_b32 s62, {ROLE}, 2"); a("s_lshl_b32 s62, s62, 11"); a(f"s_and_b32 s3, {ROLE}, 3"); a("s_lshl_b32 s3, s3, 6")
    a("s_add_u32 s3, s3, s62"); z2base()
    a(f"v_bfe_u32 {VKV}, {LANE}, 2, 3"); a(f"v_lshlrev_b32 {VKV}, 8, {VKV}"); a(f"v_lshl_add_u32 {VKV}, v{T[4]}, 4, {VKV}")
    a(f"v_add_u32 {VKV}, s3, {VKV}")
    poll("L_p2r", [f"buffer_load_dwordx4 {v4(HH)}, {VKV}, {sWS}, 0 offen sc1"], [HH], 2)
    hv = [f"v{HH+i}" for i in range(4)]
    for i in range(4): a(f"v_and_b32 {hv[i]}, {TMASK}, {hv[i]}")
    rows_scatter(*hv)
    allred16(hv[:1], steps=(4, 8))
    a(f"v_mul_f32 {hv[0]}, 0.5, {hv[0]}")
    if tm: rbf(hv[0], hv[0])
    a(f"v_lshlrev_b32 v{Q}, 16, v{Q}"); a(f"v_add_f32 {hv[0]}, {hv[0]}, v{Q}"); rbf(hv[0], hv[0])
    stamp("got")
    a.label("L_red_h3")
    if rmaj:
        a(f"s_mul_i32 s3, {ROLE}, 9216"); a(f"s_lshl_b32 s62, {WAVE}, 10"); a("s_add_u32 s3, s3, s62"); a(f"s_add_u32 s3, s3, {P3}")
        a(f"v_lshl_add_u32 {VW}, {LANE}, 4, s3")
    else:
        a(f"v_lshrrev_b32 {VW}, 2, {LANE}"); a(f"s_lshl_b32 s3, {WAVE}, 4"); a(f"v_add_u32 {VW}, s3, {VW}")
        a(f"v_mul_u32_u24 {VW}, 2304, {VW}"); a(f"v_lshl_add_u32 {VW}, v{T[4]}, 4, {VW}")
        a(f"s_lshl_b32 s3, {ROLE}, 6"); a(f"s_add_u32 s3, s3, {P3}"); a(f"v_add_u32 {VW}, s3, {VW}")
    ppoll("L_p3", lambda i, r: f"buffer_load_dwordx4 {v4(r)}, {VW}, {sWS}, 0 offen sc1", [PA_], [[F[2+k]] for k in range(PD3)], sleep3, SP3)
    stamp("pub")
    pv = [f"v{PA_+i}" for i in range(4)]
    rows_scatter(*pv)
    allred16(pv[:1], steps=(4, 8))
    setexec(0x000F000F000F000F)
    a(f"ds_write_b32 {VM}, {pv[0]} offset:{L_P}")
    a("s_waitcnt lgkmcnt(0)"); a("s_barrier")
    a(f"s_cmp_lg_u32 {WAVE}, 0"); a("s_cbranch_scc1 L_done")
    a(f"ds_read_b128 {v4(PA_)}, {VF} offset:{L_P}"); a(f"ds_read_b128 {v4(B[0])}, {VF} offset:{L_P+16}"); a(f"ds_read_b32 v{B[1]}, {VF} offset:{L_P+32}")
    a("s_waitcnt lgkmcnt(1)")
    add4(PA_, B[0])
    a(f"v_add_f32 {pv[0]}, {pv[0]}, {pv[1]}"); a(f"v_add_f32 {pv[2]}, {pv[2]}, {pv[3]}")
    a("s_waitcnt lgkmcnt(0)")
    a(f"v_add_f32 {pv[0]}, {pv[0]}, v{B[1]}"); a(f"v_add_f32 {pv[0]}, {pv[0]}, {pv[2]}")
    if tm: rbf(pv[0], pv[0])
    a(f"v_add_f32 {pv[0]}, {pv[0]}, {hv[0]}")
    if delta: a(f"v_add_f32 {pv[0]}, {f32(delta)}, {pv[0]}")
    a(f"v_cvt_pk_bf16_f32 {pv[0]}, {pv[0]}, {pv[0]}")
    a(f"buffer_store_short {pv[0]}, {VL}, {sOUT}, 0 offen")
    a(f"s_cmp_lg_u32 {ROLE}, 0"); a("s_cbranch_scc1 L_done")
    a("s_mov_b64 exec, 1")
    a(f"v_mov_b32 v{T[0]}, {EP1}"); a(f"v_mov_b32 v{T[1]}, {EPOCH}")
    a(f"buffer_store_dword v{T[0]}, v{T[1]}, {sWS}, 0 offen")
    if amp:
        a("s_memrealtime s[94:95]"); a("s_waitcnt lgkmcnt(0)")
        a("s_sub_u32 s3, s94, s92"); a(f"s_mul_i32 s3, s3, {amp}"); a("s_min_u32 s3, s3, 30000")
        a.label("L_amp"); a("s_memrealtime s[90:91]"); a("s_waitcnt lgkmcnt(0)"); a("s_sub_u32 s62, s90, s94")
        a("s_cmp_lt_u32 s62, s3"); a("s_cbranch_scc1 L_amp")

    a.mark("end")
    a.label("L_done")
    if diag == 2:
        stamp("end")
        a("s_mov_b64 exec, 1"); a("s_waitcnt lgkmcnt(0)")
        a("s_mov_b32 s76, s24"); a("s_mov_b32 s77, s25"); a("s_movk_i32 s78, 256"); a("s_mov_b32 s79, 0x20000")
        a("s_not_b32 s3, s80"); a("v_mov_b32 v16, s3"); a("v_mov_b32 v17, 0")
        a("buffer_atomic_umax v16, v17, s[76:79], 0 offen sc1")
        a("v_mov_b32 v18, s80"); a("buffer_atomic_umax v18, v17, s[76:79], 0 offen offset:4 sc1")
        a("v_mov_b32 v19, s88"); a("buffer_atomic_umax v19, v17, s[76:79], 0 offen offset:8 sc1")
        a("v_mov_b32 v20, s94"); a("buffer_atomic_umax v20, v17, s[76:79], 0 offen offset:12 sc1")
        a(f"s_cmp_eq_u32 {WAVE}, 8"); a("s_cbranch_scc1 L_exit")
        a("v_mov_b32 v21, s82"); a("buffer_atomic_umax v21, v17, s[76:79], 0 offen offset:16 sc1")
        a("v_mov_b32 v22, s84"); a("buffer_atomic_umax v22, v17, s[76:79], 0 offen offset:20 sc1")
        a("v_mov_b32 v23, s86"); a("buffer_atomic_umax v23, v17, s[76:79], 0 offen offset:24 sc1")
    elif diag:
        stamp("end")
        a("s_mov_b64 exec, 1"); a("s_waitcnt lgkmcnt(0)")
        a(f"s_mul_i32 s3, {RID}, 9"); a(f"s_add_u32 s3, s3, {WAVE}"); a("s_lshl_b32 s3, s3, 5"); a(f"s_add_u32 s3, s3, {STAMP}")
        a("v_mov_b32 v28, s3")
        for i in range(8): a(f"v_mov_b32 v{16+i}, s{80+2*i}")
        a(f"buffer_store_dwordx4 v[16:19], v28, {sWS}, 0 offen"); a(f"buffer_store_dwordx4 v[20:23], v28, {sWS}, 0 offen offset:16")
    a.label("L_exit")
    a("s_endpgm")
    a.label("L_end")
    a.place_pads(pads)
    body = a.finalize()
    out = HEADER + """; One launch, 256 workgroups (one per CU) of 8 streaming waves + 1 helper wave; written with an own generator script.
;  - workgroup b owns head 4*(b&7) + ((b>>3)&3), keys 1024*(b>>5)..+1023. The helper computes LN(x) and a 72-row share of
;    q = LN(x).wq; the eight shares of a head are exchanged through d_ws while the streaming waves already fetch K.
;  - scores by v_dot2 + row reductions, softmax with the true maximum (per wave, then per workgroup, then per head),
;    p.V and all weight products by MFMA with a one-value-per-column selector operand.
;  - after the stream: roles by b: 0..143 SwiGLU slices (32 columns), 144..215 output-projection tiles, 216..251 final sums.
;  - hand-offs carry a tag (launch number read from d_ws word 0, advanced at the end) in every word, so stale or random
;    workspace contents are never taken for data; every wait loop is bounded.
;  - die placement only affects speed: a same-die copy of the first hand-off is read only after the die numbers of all its
;    producers were checked at run time; single-word loads of w1/w3/w2 lines are cache prefetches.
"""
    if diag: out += "; stamps: " + " ".join(names) + "\n"
    out += "; @launch grid=(256,1,1) block=(576,1,1) lds=9216\n"
    out += '.amdgcn_target "amdgcn-amd-amdhsa--gfx950"\n.text\n' + f".globl {KNAME}\n.p2align 8\n.type {KNAME},@function\n"
    out += body
    out += f""".section .rodata,"a"
.p2align 6
.amdhsa_kernel {KNAME}
  .amdhsa_next_free_vgpr 168
  .amdhsa_next_free_sgpr 100
  .amdhsa_accum_offset 168
  .amdhsa_group_segment_fixed_size 0
  .amdhsa_kernarg_size 96
  .amdhsa_user_sgpr_count 2
  .amdhsa_user_sgpr_kernarg_segment_ptr 1
  .amdhsa_system_sgpr_workgroup_id_x 1
.end_amdhsa_kernel
"""
    return out

if __name__ == "__main__":
    kw = eval("dict(" + (sys.argv[2] if len(sys.argv) > 2 else "") + ")")
    open(sys.argv[1], "w").write(gen(**kw))
```

```python
import sys, struct
sys.path.insert(0, "work")
from asmlib import Asm

KNAME = "sequential_preLN__mha_block_cached__glu_gated_swiglu__decode_kernel"
HEADER = open("sequential_preLN__mha_block_cached__glu_gated_swiglu__decode.s.ref").read().split("; Override launch")[0]

def f32(x): return "0x%08x" % struct.unpack("<I", struct.pack("<f", x))[0]

EPOCH, O1, ML, Z2, P3, Q0, STAMP = 0, 0x10000, 0x30000, 0x32000, 0x40000, 0xa0000, 0x100000
Z2R, Z2S = 0x140000, 0x8000
KD = 0x3a000
XC, FAST = 0x38000, 0x200000
L_ST, L_MW, L_LW, L_Q, L_H, L_P = 0, 128, 160, 256, 512, 4096

def gen(Wn=4, nK=18, qsleep=32, EW=8, jB2=21, dyn=0, Ww=13, Wv=None, wqpol='nt', w2mode='first', tu=3, fast1=1, pads=0, now13=0, xb=0, evp=None, ev0=6, ev1=64, evmask=0x55, evh=0, evt=None, evw=2, dwait=0, pre=0, gs=0, ge=0, pk=1, tm=0, delta=0, qfast=0, qsl2=0, skipz=1, trim=1, thr=None, nA=24, nE=64, thr_at='B1', nE2=None, amp=0, Walt=None, W0=0, n0=0, gate=None, w2at='end', f2lds=1, cyc=0, rmaj=1, fill=4, t2='red', SD2=0, SP2=2, SP3=0, adapt=None, jA=14, par=None, rep2=1, PD1=1, PD2=1, PD3=1, pub2x4=1, mpoll=1, tpos=0, pol="nt", wpol="", diag=0, codepf=0, sleep2=0, sleep3=0):
    a = Asm()
    LANE = "v0"; MASK = [4, 5, 6, 7]; Q = 8; D = 12; B = [16, 20]
    VKV, VW, VM, VL, VF, VG, VTAG = "v24", "v25", "v26", "v27", "v1", "v2", "v3"
    T = [28 + i for i in range(8)]
    S = 36
    SLOT0, NSLOT = 52, 29
    sK, sV, sWQ, sX, sWS, sG, sOUT = "s[32:35]", "s[36:39]", "s[40:43]", "s[44:47]", "s[48:51]", "s[52:55]", "s[56:59]"
    WAVE, HEAD, SPLIT, TAG = "s28", "s29", "s30", "s31"
    RID = "s79"; L_ROLE = 192
    assert not (dyn and EW)
    Wv = Wv or Wn
    if adapt: Wv = adapt[2]
    if par: Wn = Wv = max(par)
    SCALE, LOG2E, HI, TMASK, TLOW, ROLE, CNT, EP1 = "s64", "s65", "s66", "s67", "s68", "s69", "s70", "s71"
    v4 = lambda r: f"v[{r}:{r+3}]"
    stamps = []
    names = diag.split() if isinstance(diag, str) else ["start", "q", "kend", "vend", "tail", "got", "pub", "end"]
    def stamp(n):
        if diag and n in names:
            i = names.index(n); a(f"{'s_memtime' if cyc else 's_memrealtime'} s[{80+2*i}:{81+2*i}]")
    def rbf(dst, src):
        a(f"v_cvt_pk_bf16_f32 {dst}, {src}, {src}"); a(f"v_and_b32 {dst}, {HI}, {dst}")
    def dpp(op, d, s0, s1, ctl): a(f"{op}_dpp {d}, {s0}, {s1} {ctl} row_mask:0xf bank_mask:0xf")
    def allred16(regs, op="v_add_f32", steps=(8, 4, 2, 1)):
        for st in steps:
            for r in regs: dpp(op, r, r, r, f"row_ror:{st}")
    def allred_rows(r, t, op="v_add_f32"):
        a(f"v_mov_b32 {t}, {r}"); a(f"v_permlane16_swap_b32 {r}, {t}"); a(f"{op} {r}, {r}, {t}")
        a(f"v_mov_b32 {t}, {r}"); a(f"v_permlane32_swap_b32 {r}, {t}"); a(f"{op} {r}, {r}, {t}")
    def rows_scatter(r0, r1, r2, r3):
        a(f"v_permlane16_swap_b32 {r0}, {r1}"); a(f"v_permlane16_swap_b32 {r2}, {r3}")
        a(f"v_add_f32 {r0}, {r0}, {r1}"); a(f"v_add_f32 {r2}, {r2}, {r3}")
        a(f"v_permlane32_swap_b32 {r0}, {r2}"); a(f"v_add_f32 {r0}, {r0}, {r2}")
    def selector(b, src):
        for j in range(4): a(f"v_and_b32 v{b+j}, {src}, v{MASK[j]}")
    def mfma(A_, B_, first=False, dst=None):
        d = v4(D if dst is None else dst)
        a(f"v_mfma_f32_16x16x32_bf16 {d}, {v4(A_)}, {v4(B_)}, {'0' if first else d}")
    def setexec(m):
        a(f"s_mov_b32 exec_lo, {hex(m & 0xffffffff)}"); a(f"s_mov_b32 exec_hi, {hex(m >> 32)}")
    def tagcheck(quads, t0, t1, t2):
        tmp = []
        first = True
        for qd in quads:
            a(f"v_bitop3_b32 {t1}, v{qd}, v{qd+1}, {TAG} bitop3:0x7e")
            a(f"v_bitop3_b32 {t2}, v{qd+2}, v{qd+3}, {TAG} bitop3:0x7e")
            if first: a(f"v_or_b32 {t0}, {t1}, {t2}"); first = False
            else: a(f"v_or3_b32 {t0}, {t0}, {t1}, {t2}")
        a(f"v_and_b32 {t0}, {TLOW}, {t0}")
        a(f"v_cmp_ne_u32 vcc, 0, {t0}")
    def poll(name, loads, quads, sleep):
        if diag and "wts" in names and name in ("L_p1", "L_p2"): a("s_waitcnt vmcnt(0)"); stamp("wts")
        a.mark("force")
        a(f"s_mov_b32 {CNT}, 0x40000")
        a.mark("nopad", 1)
        n = len(loads)
        if not mpoll:
            a.label(name)
            for l in loads: a(l)
            a("s_waitcnt vmcnt(0)")
            tagcheck(quads, f"v{T[0]}", f"v{T[1]}", f"v{T[2]}")
            a(f"s_cbranch_vccz {name}_ok")
            if sleep: a(f"s_sleep {sleep}")
        else:
            M = [f"s[{4+2*i}:{5+2*i}]" for i in range(n)]
            for m in M: a(f"s_mov_b64 {m}, -1")
            a.label(name)
            for m, l in zip(M, loads):
                if n > 1: a(f"s_mov_b64 exec, {m}")
                a(l)
            for i, (m, qd) in enumerate(zip(M, quads)):
                if n > 1: a(f"s_mov_b64 exec, {m}")
                if i == 0: a("s_waitcnt vmcnt(0)")
                a(f"v_bitop3_b32 v{T[1]}, v{qd}, v{qd+1}, {TAG} bitop3:0x7e")
                a(f"v_bitop3_b32 v{T[2]}, v{qd+2}, v{qd+3}, {TAG} bitop3:0x7e")
                a(f"v_bitop3_b32 v{T[1]}, v{T[1]}, v{T[2]}, {TLOW} bitop3:0xa8")
                a(f"v_cmp_ne_u32 {m}, 0, v{T[1]}")
            if n == 1:
                a(f"s_and_b64 exec, {M[0]}, {M[0]}")
            else:
                a(f"s_or_b64 vcc, {M[0]}, {M[1]}")
                if n == 3: a(f"s_or_b64 vcc, vcc, {M[2]}")
            a(f"s_cbranch_scc0 {name}_ok")
            if sleep: a(f"s_sleep {sleep}")
        a(f"s_sub_u32 {CNT}, {CNT}, 1"); a(f"s_cmp_lg_u32 {CNT}, 0"); a(f"s_cbranch_scc1 {name}")
        a.label(name + "_ok")
        if mpoll: a("s_mov_b64 exec, -1")
        a.mark("nopad", 0)
        if diag and "polls" in names and name in ("L_p1", "L_p2", "L_p3"):
            i = names.index("polls"); a(f"s_sub_u32 s{80+2*i}, 0x40001, {CNT}")
    def ppoll(name, load, canon, bufs, sleep=0, space=0, first=None):
        if diag and "wts" in names and name == "L_p1": a("s_waitcnt vmcnt(0)"); stamp("wts")
        n = len(canon); depth = len(bufs)
        P = [f"s[{4+2*i}:{5+2*i}]" for i in range(n)]
        a.mark("force")
        a(f"s_mov_b32 {CNT}, 0x40000")
        a.mark("nopad", 1)
        for m in P: a(f"s_mov_b64 {m}, -1")
        for k in range(depth - 1):
            for i in range(n): a(load(i, bufs[k][i]))
            if space: a(f"s_sleep {space}")
        if first:
            assert depth == 1
            for i in range(n): a(load(i, bufs[0][i]))
            a.mark("nopad", 0); first(n); a.mark("nopad", 1)
            a(f"s_branch {name}_chk")
            a.label(name + "_re")
        a.label(name)
        for k in range(depth):
            for i in range(n):
                a(f"s_or_b64 exec, {P[i]}, 1"); a(load(i, bufs[(k + depth - 1) % depth][i]))
            if space: a(f"s_sleep {space}")
            if first: a.label(name + "_chk")
            for i in range(n):
                qd = bufs[k][i]
                a(f"s_mov_b64 exec, {P[i]}")
                if i == 0: a(f"s_waitcnt vmcnt({n * (depth - 1)})")
                if n > 1 and skipz: a(f"s_cbranch_execz {name}_z{k}{i}")
                a(f"v_bitop3_b32 v{T[1]}, v{qd}, v{qd+1}, {TAG} bitop3:0x7e")
                a(f"v_bitop3_b32 v{T[2]}, v{qd+2}, v{qd+3}, {TAG} bitop3:0x7e")
                a(f"v_bitop3_b32 v{T[1]}, v{T[1]}, v{T[2]}, {TLOW} bitop3:0xa8")
                for r in range(4): a(f"v_and_b32 v{canon[i]+r}, {TMASK}, v{qd+r}")
                a(f"v_cmp_ne_u32 {P[i]}, 0, v{T[1]}")
                if n > 1 and skipz: a.label(f"{name}_z{k}{i}")
            if diag and "h1" in names and name == "L_p2":
                h = [f"s{80+2*names.index(x)}" for x in ("h1", "h2", "h3", "m")]
                a(f"s_mov_b32 {h[2]}, {h[1]}"); a(f"s_mov_b32 {h[1]}, {h[0]}")
                a(f"s_memrealtime s[{h[0][1:]}:{int(h[0][1:])+1}]"); a("s_waitcnt lgkmcnt(0)")
                a(f"s_bcnt1_i32_b64 s3, {P[0]}"); a(f"s_bcnt1_i32_b64 s62, {P[1]}"); a("s_add_u32 s3, s3, s62"); a("s_lshr_b32 s3, s3, 4")
                a(f"s_lshl_b32 {h[3]}, {h[3]}, 4"); a(f"s_or_b32 {h[3]}, {h[3]}, s3"); a(f"s_and_b32 {h[3]}, {h[3]}, 0xffff")
            if n == 1: a(f"s_cmp_lg_u64 {P[0]}, 0")
            else:
                a(f"s_or_b64 vcc, {P[0]}, {P[1]}")
                if n == 3: a(f"s_or_b64 vcc, vcc, {P[2]}")
            a(f"s_cbranch_scc0 {name}_ok")
            if sleep: a(f"s_sleep {sleep}")
        a(f"s_sub_u32 {CNT}, {CNT}, 1"); a(f"s_cmp_lg_u32 {CNT}, 0"); a(f"s_cbranch_scc1 {name}")
        a.label(name + "_ok")
        a("s_mov_b64 exec, -1")
        a.mark("nopad", 0)
        if diag and "polls" in names and name in ("L_p1", "L_p2", "L_p3"):
            i = names.index("polls"); a(f"s_sub_u32 s{80+2*i}, 0x40001, {CNT}")
    def spoll(name, addr, regs, lanes, space):
        depth = len(regs)
        a.mark("force")
        a(f"s_mov_b32 {CNT}, 0x2000")
        a.mark("nopad", 1)
        a(f"s_mov_b64 exec, {hex(lanes)}"); a(f"s_mov_b64 s[4:5], {hex(lanes)}")
        ld = lambda r: f"buffer_load_dword v{r}, {addr}, {sWS}, 0 offen sc1"
        for k in range(depth - 1):
            a(ld(regs[k])); a(f"s_sleep {space}")
        a.label(name)
        for k in range(depth):
            a("s_or_b64 exec, s[4:5], 1"); a(ld(regs[(k + depth - 1) % depth]))
            a("s_mov_b64 exec, s[4:5]")
            a(f"s_sleep {space}")
            a(f"s_waitcnt vmcnt({depth - 1})")
            a(f"v_bitop3_b32 v{T[1]}, v{regs[k]}, {VTAG}, {TLOW} bitop3:0x28")
            a(f"v_cmp_ne_u32 s[4:5], 0, v{T[1]}")
            a("s_cmp_lg_u64 s[4:5], 0"); a(f"s_cbranch_scc0 {name}_ok")
        a(f"s_sub_u32 {CNT}, {CNT}, 1"); a(f"s_cmp_lg_u32 {CNT}, 0"); a(f"s_cbranch_scc1 {name}")
        a.label(name + "_ok")
        a("s_mov_b64 exec, -1")
        a.mark("nopad", 0)
    def mfma_chain(n, src_of, A_of, pre=None):
        src_of(0)
        for t in range(n):
            selector(B[t & 1], src_of.reg(t))
            if t + 1 < n: src_of(t + 1)
            if pre: pre(t)
            mfma(A_of(t), B[t & 1], first=(t == 0))

    a.label(KNAME)
    a("s_cmp_ge_u32 s2, 256"); a("s_cbranch_scc1 L_exit")
    if diag:
        for i in range(8): a(f"s_mov_b32 s{80+2*i}, 0")
    stamp("start")
    if amp: a("s_memrealtime s[92:93]")
    a("s_load_dwordx16 s[4:19], s[0:1], 0"); a("s_load_dwordx8 s[20:27], s[0:1], 64")
    a("v_lshrrev_b32 v1, 6, v0"); a("v_and_b32 v0, 63, v0")
    a(f"v_readfirstlane_b32 {WAVE}, v1")
    a(f"s_and_b32 {HEAD}, s2, 7"); a(f"s_lshl_b32 {HEAD}, {HEAD}, 2"); a("s_bfe_u32 s3, s2, 0x20003"); a(f"s_add_u32 {HEAD}, {HEAD}, s3")
    a(f"s_lshr_b32 {SPLIT}, s2, 5")
    a(f"v_lshlrev_b32 v{T[0]}, 4, {LANE}")
    a("s_movk_i32 s46, 1152"); a("s_mov_b32 s47, 0x20000")
    a(f"s_sub_u32 {WAVE}, {WAVE}, 1"); a("s_cbranch_scc1 L_helper")
    a(f"s_lshl_b32 s60, {HEAD}, 21"); a(f"s_lshl_b32 s61, {SPLIT}, 18"); a("s_add_u32 s62, s60, s61")
    a("s_mov_b32 s34, 0x40000"); a("s_mov_b32 s35, 0x20000"); a("s_mov_b32 s38, 0x40000"); a("s_mov_b32 s39, 0x20000")
    a(f"s_lshl_b32 s3, {WAVE}, 10"); a(f"v_add_u32 {VKV}, s3, v{T[0]}")
    a("s_mov_b32 s60, 0")
    if evt:
        a("s_getreg_b32 s72, hwreg(HW_REG_XCC_ID, 0, 3)"); a("s_lshl_b32 s72, s72, 2")
        a(f"s_lshr_b32 s72, {hex(sum((t // 2) << (4 * i) for i, t in enumerate(evt)))}, s72"); a("s_and_b32 s72, s72, 15"); a("s_lshl_b32 s72, s72, 1")
    if evp:
        a("s_getreg_b32 s72, hwreg(HW_REG_XCC_ID, 0, 3)"); a(f"s_lshr_b32 s72, {0xff & ~evmask}, s72"); a("s_and_b32 s72, s72, 1")
        a("s_mov_b32 vcc_lo, s72"); a("s_mov_b32 vcc_hi, 0")
    if par: a("s_getreg_b32 s72, hwreg(HW_REG_XCC_ID, 0, 1)"); a("s_mov_b32 vcc_lo, s72"); a("s_mov_b32 vcc_hi, 0")
    a("s_waitcnt lgkmcnt(0)")
    stamp("karg")
    a("s_add_u32 s32, s6, s62"); a("s_addc_u32 s33, s7, 0")

    def late_setup():
        a(f"s_load_dword {EP1}, s[26:27], {EPOCH}")
        a("s_mov_b32 s44, s4"); a("s_mov_b32 s45, s5"); a("s_mov_b32 s43, 0x20000")
        a("s_mov_b32 s48, s26"); a("s_mov_b32 s49, s27"); a("s_mov_b32 s50, 0x400000"); a("s_mov_b32 s51, 0x20000")
        a("s_mov_b32 s56, s22"); a("s_mov_b32 s57, s23"); a("s_movk_i32 s58, 1152"); a("s_mov_b32 s59, 0x20000")
        a(f"s_mov_b32 {SCALE}, {f32(128 ** -0.5)}"); a(f"s_mov_b32 {LOG2E}, {f32(1.4426950408889634)}")
        a(f"s_mov_b32 {HI}, 0xffff0000"); a(f"s_mov_b32 {TMASK}, 0xfffff000"); a(f"s_movk_i32 {TLOW}, 0xfff")
        a(f"v_and_b32 v{T[4]}, 1, {LANE}"); a(f"v_lshlrev_b32 v{T[4]}, 4, v{T[4]}")
        a(f"v_mov_b32 v{T[5]}, 0xffff"); a(f"v_lshlrev_b32 v{T[5]}, v{T[4]}, v{T[5]}")
        a(f"v_bfe_u32 v{T[4]}, {LANE}, 1, 2")
        for j in range(4):
            a(f"v_cmp_eq_u32 vcc, {j}, v{T[4]}"); a(f"v_cndmask_b32 v{MASK[j]}, 0, v{T[5]}, vcc")
        a("s_mov_b32 s96, s24"); a("s_mov_b32 s97, s25"); a("s_movk_i32 s98, 256"); a("s_mov_b32 s99, 0x20000")
        if not dyn:
            a("s_and_b32 s78, s2, 7"); a("s_mul_i32 s78, s78, 18"); a("s_lshr_b32 s3, s2, 3"); a("s_add_u32 s78, s78, s3")
            a("s_cmp_lt_u32 s2, 144"); a(f"s_cselect_b32 {RID}, s78, s2")
            role_setup()
    def role_setup():
        u = role_setup.n = getattr(role_setup, "n", 0) + 1
        a("s_mov_b32 s55, 0x20000")
        a(f"s_cmp_lt_u32 {RID}, 144"); a(f"s_cbranch_scc0 L_r1_{u}")
        a(f"s_mov_b32 {ROLE}, {RID}")
        a(f"s_mul_i32 s3, {ROLE}, {32*1152}"); a("s_add_u32 s52, s20, s3"); a("s_addc_u32 s53, s21, 0")
        a(f"s_mov_b32 s54, 0"); a("s_mov_b32 s63, 0x40000000")
        a(f"s_lshl_b32 s3, {WAVE}, 7")
        a(f"s_branch L_r2_{u}")
        a.label(f"L_r1_{u}")
        a(f"s_sub_u32 {ROLE}, {RID}, 144"); a(f"s_lshr_b32 {ROLE}, {ROLE}, 3")
        a(f"s_and_b32 s3, {RID}, 7"); a(f"s_mul_i32 s3, s3, {512*1152}"); a(f"s_lshl_b32 s62, {ROLE}, 7")
        a(f"s_sub_u32 s54, {512*1152}, s62"); a("s_add_u32 s3, s3, s62")
        a(f"s_cmp_lt_u32 {RID}, 216"); a("s_cselect_b32 s54, s54, 0"); a("s_cselect_b32 s3, s3, 0")
        a("s_add_u32 s52, s12, s3"); a("s_addc_u32 s53, s13, 0")
        a(f"s_mov_b32 s63, {32*1152}"); a(f"s_mul_i32 s3, {WAVE}, {64*1152}")
        a.label(f"L_r2_{u}")
        a("s_movk_i32 s76, 4608"); a("s_add_u32 s77, s63, s76")
        a(f"v_lshrrev_b32 v{T[4]}, 4, {LANE}"); a(f"v_bfe_u32 v{T[5]}, {LANE}, 3, 1"); a(f"v_lshl_add_u32 v{T[4]}, v{T[4]}, 3, v{T[5]}")
        a(f"v_mul_u32_u24 v{T[4]}, 1152, v{T[4]}")
        a(f"v_and_b32 v{T[5]}, 7, {LANE}"); a(f"v_lshl_add_u32 v{T[4]}, v{T[5]}, 4, v{T[4]}")
        a(f"v_add_u32 {VG}, s3, v{T[4]}")
    def touch_setup():
        a("s_lshr_b32 s3, s2, 3"); a("s_sub_u32 s62, s3, 9"); a("s_cmp_lt_u32 s3, 18"); a("s_cselect_b32 s62, s3, s62")
        a("s_mul_i32 s62, s62, 26"); a("s_sub_u32 s42, 576, s62"); a("s_min_u32 s42, s42, 26")
        a("s_mul_i32 s42, s42, 9216"); a(f"s_sub_u32 s42, s42, {9216-1152}")
        a("s_sub_u32 s3, s3, 18"); a("s_cmp_lt_u32 s3, 9"); a("s_cselect_b32 s42, 0, s42"); a("s_cselect_b32 s62, 0, s62")
        a("s_mul_i32 s62, s62, 9216"); a("s_and_b32 s3, s2, 7"); a("s_mul_i32 s3, s3, 1152"); a("s_add_u32 s62, s62, s3")
        a(f"s_bitcmp1_b32 {WAVE}, 0"); a("s_cselect_b32 s40, s18, s16"); a("s_cselect_b32 s41, s19, s17")
        a("s_add_u32 s40, s40, s62"); a("s_addc_u32 s41, s41, 0")
        a("s_mov_b32 s15, s42"); a("s_mov_b32 s14, 0")
        if tu > 1:
            a("s_mov_b32 s14, s42")
            if tu == 2: a(f"s_bitcmp1_b32 {WAVE}, 0")
            else: a(f"s_cmp_ge_u32 {WAVE}, {tu - 1}")
            a("s_cselect_b32 s42, 0, s42"); a("s_cselect_b32 s14, s14, 0")
    def touch_lane(dst):
        a(f"s_lshr_b32 s3, {WAVE}, 1"); a("s_lshl_b32 s3, s3, 6"); a(f"v_add_u32 v{T[1]}, s3, {LANE}")
        a(f"s_mov_b32 s3, {-(-(1 << 32) // 9)}"); a(f"v_mul_hi_u32 v{T[2]}, v{T[1]}, s3")
        a(f"v_mul_u32_u24 v{T[3]}, 9, v{T[2]}"); a(f"v_sub_u32 v{T[1]}, v{T[1]}, v{T[3]}")
        a(f"v_mul_u32_u24 v{T[2]}, 9216, v{T[2]}"); a(f"v_lshl_add_u32 {dst}, v{T[1]}, 7, v{T[2]}")
    def gload(i, r):
        so = ("0", "s76", "s63", "s77")[i >> 1]
        a(f"buffer_load_dwordx4 {v4(r)}, {VG}, {sG}, {so} offen offset:{(i & 1) * 2304} {wpol}")
    def bcast_src(src):
        def f(t):
            d = f.reg(t)
            a(f"v_mov_b32_dpp {d}, {src} row_newbcast:{2*t} row_mask:0xf bank_mask:0x3")
            a(f"v_mov_b32_dpp {d}, {src} row_newbcast:{2*t+1} row_mask:0xf bank_mask:0xc")
        f.reg = lambda t: f"v{T[6 + (t & 1)]}"
        return f
    def part_addr(dst, two):
        a(f"s_lshl_b32 s3, {WAVE}, 9"); a(f"s_add_u32 s3, s3, {L_P}")
        a(f"v_lshrrev_b32 {dst}, 4, {LANE}"); a(f"v_lshlrev_b32 {dst}, 7, {dst}")
        a(f"v_and_b32 v{T[7]}, 7, {LANE}"); a(f"v_lshl_add_u32 {dst}, v{T[7]}, 4, {dst}"); a(f"v_add_u32 {dst}, s3, {dst}")
    def add4(d, x):
        if pk:
            for r in (0, 2): a(f"v_pk_add_f32 v[{d+r}:{d+r+1}], v[{d+r}:{d+r+1}], v[{x+r}:{x+r+1}]")
        else:
            for r in range(4): a(f"v_add_f32 v{d+r}, v{d+r}, v{x+r}")
    def sum_parts(addr, dst, tmp, n, stride):
        regs = [dst] + tmp[:n-1]
        for i in range(n): a(f"ds_read_b128 {v4(regs[i])}, {addr} offset:{L_P + i * stride}")
        for i in range(1, n):
            a(f"s_waitcnt lgkmcnt({n-1-i})")
            add4(dst, regs[i])
    def tag_setup():
        a(f"s_add_u32 {EP1}, {EP1}, 1"); a(f"s_and_b32 {TAG}, {EP1}, 0xfff"); a(f"v_mov_b32 {VTAG}, {TAG}")

    order = []; free = list(range(NSLOT)); slot_of = {}
    def alloc(item):
        s = free.pop(0); slot_of[item] = SLOT0 + 4 * s; return slot_of[item]
    def release(item): free.append((slot_of[item] - SLOT0) // 4)
    def issue(item):
        k, i = item
        if k == "k" or k == "v":
            r = alloc(item)
            if item == ("v", 0): a("s_mov_b32 s60, 0")
            a(f"buffer_load_dwordx4 {v4(r)}, {VKV}, {sK if k == 'k' else sV}, s60 offen {pol}")
            a("s_addk_i32 s60, 0x2000")
        elif k == "t":
            if gate:
                a("s_waitcnt lgkmcnt(0)"); a(f"v_readfirstlane_b32 s3, v{Q}")
                a("s_cmp_eq_u32 s3, 0"); a("s_cselect_b32 s14, s15, s14"); a("s_cselect_b32 s42, 0, s42")
            a(f"buffer_load_dword v{S+12}, v{S}, s[40:43], 0 offen"); assert st["pv"] >= 25 or tpos
        elif k == "g":
            r = alloc(item)
            gload(i, r)
        order.append(item)
    known = [-1]
    def wait_idx(idx):
        if idx > known[0]:
            a(f"s_waitcnt vmcnt({len(order) - 1 - idx})"); known[0] = idx
    def wait_item(item): wait_idx(order.index(item))
    def landed(item): return item in order and order.index(item) <= known[0]

    PLAIN, TWO = 0x00FF00FF00FF00FF, 0xFF00FF0000FF00FF
    VP = VW
    def task_qfin():
        a("s_barrier")
        a(f"ds_read_b128 {v4(Q)}, v{T[0]} offset:{L_Q}")
        a("s_waitcnt lgkmcnt(0)")
        tag_setup()
        stamp("q")
    def task_kq(q):
        wait_item(("k", 4*q+3))
        for x in range(4):
            r = slot_of[("k", 4*q+x)]
            for i in range(4):
                a(f"v_dot2_f32_bf16 v{T[x]}, v{r+i}, v{Q+i}, {'0' if i == 0 else 'v%d' % T[x]}")
            release(("k", 4*q+x))
        allred16([f"v{T[x]}" for x in range(4)])
        a(f"v_cvt_pk_bf16_f32 v{T[4]}, v{T[0]}, v{T[1]}"); a(f"v_cvt_pk_bf16_f32 v{T[5]}, v{T[2]}, v{T[3]}")
        a(f"v_lshlrev_b32 v{T[0]}, 16, v{T[4]}"); a(f"v_and_b32 v{T[1]}, {HI}, v{T[4]}")
        a(f"v_lshlrev_b32 v{T[2]}, 16, v{T[5]}"); a(f"v_and_b32 v{T[3]}, {HI}, v{T[5]}")
        for x in range(4): a(f"v_mul_f32 v{T[x]}, {SCALE}, v{T[x]}")
        a(f"v_cvt_pk_bf16_f32 v{S+2*q}, v{T[0]}, v{T[1]}"); a(f"v_cvt_pk_bf16_f32 v{S+2*q+1}, v{T[2]}, v{T[3]}")
        a(f"v_max3_f32 {VM}, {VM}, v{T[0]}, v{T[1]}"); a(f"v_max3_f32 {VM}, {VM}, v{T[2]}, v{T[3]}")
    PA, PB = f"v{T[5]}", f"v{T[6]}"
    def prep_pv(j):
        if j % 2 == 0:
            a(f"v_lshlrev_b32 {PA}, 16, v{S+j//2}"); a(f"v_and_b32 {PB}, {HI}, v{S+j//2}")
            a(f"v_fma_f32 {PA}, {PA}, {LOG2E}, -{VF}"); a(f"v_fma_f32 {PB}, {PB}, {LOG2E}, -{VF}")
            a(f"v_exp_f32 {PA}, {PA}"); a(f"v_exp_f32 {PB}, {PB}")
        p = PA if j % 2 == 0 else PB
        a(f"v_cvt_pk_bf16_f32 v{T[0]}, {p}, {p}"); a(f"v_add_f32 {VL}, {VL}, {p}")
        selector(B[j & 1], f"v{T[0]}")
    def task_smax():
        allred_rows(VM, f"v{T[0]}", "v_max_f32"); rbf(VM, VM)
        a(f"s_lshl_b32 s3, {WAVE}, 2"); a(f"v_mov_b32 v{T[0]}, s3")
        a(f"ds_write_b32 v{T[0]}, {VM} offset:{L_MW}")
        a(f"v_mul_f32 {VF}, {LOG2E}, {VM}")
        stamp("kend")
        prep_pv(0)
    def wgmax(dst):
        a(f"v_mov_b32 v{T[0]}, 0")
        a(f"ds_read_b128 {v4(Q)}, v{T[0]} offset:{L_MW}"); a(f"ds_read_b128 v[{T[1]+1}:{T[1]+4}], v{T[0]} offset:{L_MW+16}")
        a("s_waitcnt lgkmcnt(0)")
        a(f"v_max3_f32 {dst}, v{Q}, v{Q+1}, v{Q+2}"); a(f"v_max3_f32 {dst}, {dst}, v{Q+3}, v{T[1]+1}")
        a(f"v_max3_f32 {dst}, {dst}, v{T[1]+2}, v{T[1]+3}"); a(f"v_max_f32 {dst}, {dst}, v{T[1]+4}")
    def task_pv(j):
        wait_item(("v", j))
        mfma(slot_of[("v", j)], B[j & 1], first=(j == 0)); release(("v", j))
        if j == jB2:
            assert j % 2 == 1
            a("s_waitcnt lgkmcnt(0)"); a("s_barrier")
            wgmax(f"v{T[1]}")
            a(f"v_sub_f32 {VM}, {VM}, v{T[1]}"); a(f"v_mul_f32 {VM}, {LOG2E}, {VM}"); a(f"v_exp_f32 {VM}, {VM}")
            a(f"v_mul_f32 {VF}, {LOG2E}, v{T[1]}")
            if tu: touch_lane(f"v{S}")
            a(f"v_mul_f32 {VL}, {VL}, {VM}")
            for r in range(4): a(f"v_mul_f32 v{D+r}, v{D+r}, {VM}")
        if j == 30:
            prep_pv(31)
            allred_rows(VL, f"v{T[0]}")
            a(f"s_lshl_b32 s3, {WAVE}, 2"); a(f"v_mov_b32 v{T[0]}, s3"); a(f"ds_write_b32 v{T[0]}, {VL} offset:{L_LW}")
            return
        if j < 31: prep_pv(j + 1)

    seq = [("k", i) for i in range(32)] + [("v", i) for i in range(32)] + [("g", i) for i in range(EW)]
    if gs:
        seq = [it for it in seq if it[0] != "g"]
        for i in range(EW):
            seq.insert(seq.index(("v", 31 - ge - (EW - 1 - i) * gs)) + 1, ("g", i))
    if tu: seq.insert(seq.index(("v", 31)) + 1 - tpos, ("t", 0))
    st = dict(q=False, kq=0, sm=False, pv=0)
    def run_ready(force=False):
        did = False; n = 0
        if not st["q"]: return False
        if st["kq"] < 8:
            it = ("k", 4 * st["kq"] + 3)
            if landed(it) or (force and it in order): task_kq(st["kq"]); st["kq"] += 1; did = True
            if st["kq"] == 8: task_smax(); st["sm"] = True
            return did
        while st["pv"] < 32 and n < 2 and (landed(("v", st["pv"])) or (force and not did and ("v", st["pv"]) in order)):
            task_pv(st["pv"]); st["pv"] += 1; n += 1; did = True
        return did
    for n, item in enumerate(seq):
        if n == (min(par) if par else (W0 or Wn)):
            a("s_add_u32 s36, s8, s62"); a("s_addc_u32 s37, s9, 0")
            late_setup()
            if tu: touch_setup()
            if par or evp: a("s_mov_b32 vcc_lo, s72"); a("s_mov_b32 vcc_hi, 0")
            part_addr(VP, False)
            a(f"v_and_b32 v{T[0]}, 0xf0, v{T[0]}")
            a(f"v_mov_b32 {VM}, 0xff800000"); a(f"v_mov_b32 {VL}, 0")
        W = Wv if item[0] in "vgt" else Wn
        if n < n0: W = W0
        if Walt and n >= 8: W = Walt[n % len(Walt)]
        if item[0] in "kv":
            prev = [i for i, it in enumerate(order) if it[0] in "kv"]
            if adapt and item[0] == "v":
                if item[1] == jA - 1:
                    a(f"v_mov_b32 v{Q}, 0"); a(f"ds_read_b32 v{Q}, v{Q} offset:{L_ROLE+8}")
                if item[1] == jA:
                    a("s_waitcnt lgkmcnt(0)"); a(f"v_readfirstlane_b32 s72, v{Q}"); st["mode"] = True
                    if diag and "rank" in names: a(f"s_add_u32 s{80+2*names.index('rank')}, s72, 1")
                W = Wv if st.get("mode") else Wn
            if thr and n == nA - 1:
                a(f"v_mov_b32 v{T[7]}, 0"); a(f"ds_read_b32 v{T[7]}, v{T[7]} offset:{L_ROLE+8}")
                a("s_waitcnt lgkmcnt(0)"); a(f"v_readfirstlane_b32 s72, v{T[7]}")
                if diag and "rank" in names: a(f"s_add_u32 s{80+2*names.index('rank')}, s72, 1")
            if len(prev) >= W: wait_idx(prev[-W])
            if evt and ev0 <= n < max(evt):
                a(f"s_cmp_le_u32 s72, {n}"); a(f"s_cbranch_scc1 L_ev{n}"); a(f"s_waitcnt vmcnt({len(order) - 1 - prev[-evw]})"); a.label(f"L_ev{n}")
            if evp and ev0 <= n < evh:
                a(f"s_cbranch_vccnz L_ev{n}"); a(f"s_waitcnt vmcnt({len(order) - 1 - prev[-2]})"); a.label(f"L_ev{n}")
            elif evp and ev0 <= n < ev1 and evp[n % len(evp)] < W:
                a(f"s_cbranch_vccnz L_ev{n}"); a(f"s_waitcnt vmcnt({len(order) - 1 - prev[-evp[n % len(evp)]]})"); a.label(f"L_ev{n}")
            if thr and nA <= n < nE:
                u = f"L_th{n}"; used = False; cur = W
                for ci, (below, pat) in reversed(list(enumerate(thr))):
                    w_ = pat[n % len(pat)]
                    if ci == 1 and nE2 and n >= nE2: continue
                    if w_ >= cur: continue
                    a(f"s_cmp_ge_u32 s72, {below}"); a(f"s_cbranch_scc1 {u}")
                    a(f"s_waitcnt vmcnt({len(order) - 1 - prev[-w_]})"); used = True; cur = w_
                if used: a.label(u)
            if n == W: stamp("k0")
            if n == W + 4: stamp("k4")
            if par and len(prev) >= min(par):
                u = f"L_pw{n}"
                a(f"s_cbranch_{'vccnz' if par[1] > par[0] else 'vccz'} {u}")
                a(f"s_waitcnt vmcnt({len(order) - 1 - prev[-min(par)]})")
                a.label(u)
            if adapt and st.get("mode") and item[0] == "v":
                u = f"L_aw{item[1]}"
                a(f"s_cmp_ge_u32 s72, {adapt[4]}"); a(f"s_cbranch_scc1 {u}")
                a(f"s_waitcnt vmcnt({len(order) - 1 - prev[-adapt[1]]})")
                if adapt[0] != adapt[1]:
                    a(f"s_cmp_ge_u32 s72, {adapt[3]}"); a(f"s_cbranch_scc1 {u}")
                    a(f"s_waitcnt vmcnt({len(order) - 1 - prev[-adapt[0]]})")
                a.label(u)
        while not free: assert run_ready(force=True)
        if xb and n and seq[n - 1] == ("v", 31): a("s_barrier")
        if gate and item == ("v", 31): a(f"v_mov_b32 v{Q}, 0"); a(f"ds_read_b32 v{Q}, v{Q} offset:{L_ROLE+8}")
        issue(item)
        if n == nK - 1: task_qfin(); st["q"] = True
        run_ready()
    while st["pv"] < 31: assert run_ready(force=True)
    setexec(PLAIN) if st["pv"] == 32 else None
    if st["pv"] == 31:
        task_pv(31); st["pv"] = 32; setexec(PLAIN)
    stamp("vend")
    a(f"ds_write_b128 {VP}, {v4(D)}")
    a("s_mov_b64 exec, -1")
    a("s_waitcnt lgkmcnt(0)"); stamp("oadd"); a("s_barrier")
    if dyn:
        a(f"v_mov_b32 v{T[0]}, 0"); a(f"ds_read_b32 v{T[0]}, v{T[0]} offset:{L_ROLE}")
        a("s_waitcnt lgkmcnt(0)"); a(f"v_readfirstlane_b32 {RID}, v{T[0]}")
        role_setup()
    if fast1:
        a(f"v_mov_b32 v{T[0]}, 0"); a(f"ds_read_b32 v{T[0]}, v{T[0]} offset:{L_ROLE+4}")
        a("s_waitcnt lgkmcnt(0)"); a(f"v_readfirstlane_b32 s61, v{T[0]}")
    else: a("s_mov_b32 s61, 0")
    def b4(tag):
        if tag: a(f"s_cmp_eq_u32 {WAVE}, 8"); a(f"s_cbranch_scc1 L_b4{tag}")
        a("s_barrier")
        if tu > 1 or gate: a("s_mov_b32 s42, s14"); a(f"buffer_load_dword v{S+11}, v{S}, s[40:43], 0 offen")
        if tag: a.label(f"L_b4{tag}")
    if not pre: b4("")
    for i in range(EW, 8): alloc(("g", i))
    G = [slot_of[("g", i)] for i in range(8)]
    F = [SLOT0 + 4 * s for s in free]
    assert len(F) >= 20
    a("s_branch L_tail")

    a.label("L_helper")
    a("s_setprio 3")
    a(f"s_mov_b32 {WAVE}, 8")
    a(f"s_lshl_b32 s63, {HEAD}, 8"); a(f"s_sub_u32 s42, {576*8192}, s63"); a("s_mov_b32 s43, 0x20000")
    a(f"v_lshrrev_b32 v{T[1]}, 4, {LANE}"); a(f"v_mul_u32_u24 v{T[2]}, 18, v{T[1]}")
    a(f"s_mul_i32 s3, {SPLIT}, 72"); a(f"v_add_u32 v{T[2]}, s3, v{T[2]}")
    a(f"v_and_b32 v{T[3]}, 0xf0, v{T[0]}"); a(f"v_lshl_add_u32 {VW}, v{T[2]}, 13, v{T[3]}")
    a(f"v_lshlrev_b32 v{T[2]}, 1, v{T[2]}")
    a("s_mov_b32 s61, 0")
    a("s_waitcnt lgkmcnt(0)")
    a("s_mov_b32 s44, s4"); a("s_mov_b32 s45, s5")
    a("s_add_u32 s40, s10, s63"); a("s_addc_u32 s41, s11, 0")
    x0, x1 = SLOT0, SLOT0 + 4
    WQ = [SLOT0 + 8 + 4 * i for i in range(18)]
    a(f"buffer_load_dwordx4 {v4(x0)}, v{T[0]}, {sX}, 0 offen"); a(f"buffer_load_dwordx4 {v4(x1)}, v{T[0]}, {sX}, 0 offen offset:1024")
    a(f"buffer_load_dwordx4 {v4(S)}, v{T[2]}, {sX}, 0 offen"); a(f"buffer_load_dwordx4 {v4(S+4)}, v{T[2]}, {sX}, 0 offen offset:16")
    a(f"buffer_load_dword v{S+8}, v{T[2]}, {sX}, 0 offen offset:32")
    for t in range(18):
        a(f"buffer_load_dwordx4 {v4(WQ[t])}, {VW}, {sWQ}, s61 offen {wqpol}"); a("s_addk_i32 s61, 0x2000")
    CPF = 1 if codepf > 1 else 0
    def codetouch():
        u = codetouch.n = getattr(codetouch, "n", 0) + 1
        a("s_getpc_b64 s[74:75]"); a.label(f"L_pc{u}")
        a(f"s_sub_u32 s74, s74, L_pc{u}-{KNAME}"); a("s_subb_u32 s75, s75, 0")
        a("s_lshr_b32 s3, s2, 3"); a("s_lshl_b32 s3, s3, 10")
        a(f"v_lshl_add_u32 v{T[5]}, {LANE}, 7, s3"); a(f"v_min_u32 v{T[5]}, L_end-{KNAME}-4, v{T[5]}")
        a("s_mov_b64 exec, 0xff"); a(f"global_load_dword v{T[5]}, v{T[5]}, s[74:75]"); a("s_mov_b64 exec, -1")
    late_setup()
    a("s_mov_b32 s35, 0x20000"); a("s_mov_b32 s39, 0x20000")
    a(f"v_mov_b32 v{B[0]}, 0"); a(f"v_lshlrev_b32 v{T[1]}, 2, {LANE}")
    a(f"ds_write_b32 v{T[1]}, v{B[0]} offset:{L_ST}")
    a(f"v_mov_b32 {VKV}, v{T[0]}")
    if CPF: codetouch()
    a(f"s_waitcnt vmcnt({18+CPF})")
    U = [B[0] + i for i in range(8)]
    for i in range(4):
        a(f"v_lshlrev_b32 v{U[2*i]}, 16, v{x0+i}"); a(f"v_and_b32 v{U[2*i+1]}, {HI}, v{x0+i}")
    U2 = [x0 + i for i in range(4)] + [Q + i for i in range(4)]
    for i in range(4): a(f"v_lshlrev_b32 v{U2[2*i]}, 16, v{x1+i}")
    for i in range(4): a(f"v_and_b32 v{U2[2*i+1]}, {HI}, v{x1+i}")
    sm = f"v{T[0]}"; t_ = f"v{T[1]}"; q2 = f"v{T[2]}"
    a(f"v_add_f32 {sm}, v{U[0]}, v{U[1]}")
    for r in U[2:] + U2: a(f"v_add_f32 {sm}, {sm}, v{r}")
    allred16([sm]); allred_rows(sm, t_)
    a(f"v_mul_f32 {sm}, {f32(1/576)}, {sm}")
    for r in U: a(f"v_sub_f32 v{r}, v{r}, {sm}")
    a(f"v_mul_f32 {q2}, v{U[0]}, v{U[0]}")
    for r in U[1:]: a(f"v_fmac_f32 {q2}, v{r}, v{r}")
    a("s_mov_b64 exec, 0xff")
    for r in U2: a(f"v_sub_f32 v{r}, v{r}, {sm}")
    for r in U2: a(f"v_fmac_f32 {q2}, v{r}, v{r}")
    a("s_mov_b64 exec, -1")
    allred16([q2]); allred_rows(q2, t_)
    a(f"v_mul_f32 {q2}, {f32(1/576)}, {q2}")
    rbf(sm, sm); rbf(q2, q2)
    a(f"v_add_f32 {q2}, {f32(1e-5)}, {q2}"); rbf(q2, q2)
    a(f"v_sqrt_f32 {q2}, {q2}"); rbf(q2, q2)
    a(f"v_rcp_f32 {q2}, {q2}")
    for i in range(9):
        lo, hi = f"v{T[3]}", f"v{T[4]}"
        a(f"v_lshlrev_b32 {lo}, 16, v{S+i}"); a(f"v_and_b32 {hi}, {HI}, v{S+i}")
        a(f"v_sub_f32 {lo}, {lo}, {sm}"); a(f"v_sub_f32 {hi}, {hi}, {sm}")
        a(f"v_cvt_pk_bf16_f32 v{S+i}, {lo}, {hi}")
        a(f"v_lshlrev_b32 {lo}, 16, v{S+i}"); a(f"v_and_b32 {hi}, {HI}, v{S+i}")
        a(f"v_mul_f32 {lo}, {lo}, {q2}"); a(f"v_mul_f32 {hi}, {hi}, {q2}")
        a(f"v_cvt_pk_bf16_f32 v{S+i}, {lo}, {hi}")
    a("s_mov_b32 s72, 0x01000100"); a("s_mov_b32 s73, 0x03020302")
    a("s_waitcnt lgkmcnt(0)")
    tag_setup()
    a(f"s_lshl_b32 s3, {HEAD}, 13"); a(f"s_add_u32 s3, s3, {Q0}"); a(f"v_add_u32 {VL}, s3, {VKV}")
    a(f"s_lshl_b32 s62, {SPLIT}, 10")
    a("s_mov_b32 s74, 0xff00ff00"); a("s_mov_b32 s75, 0xff00ff00")
    for t in range(18):
        b = B[t & 1]
        a(f"v_perm_b32 v{T[0]}, v{S+t//2}, v{S+t//2}, {'s73' if t & 1 else 's72'}")
        selector(b, f"v{T[0]}")
        a(f"s_waitcnt vmcnt({17-t+CPF})")
        mfma(WQ[t], b, first=(t == 0))
    a(f"v_mov_b32 v{B[0]+1}, {EP1}"); a(f"v_mov_b32 v{B[0]+3}, {EP1}")
    a(f"v_cndmask_b32 v{B[0]}, v{D}, v{D+2}, s[74:75]"); a(f"v_cndmask_b32 v{B[0]+2}, v{D+1}, v{D+3}, s[74:75]")
    if qfast:
        a(f"s_add_u32 s3, s62, {FAST}"); a(f"buffer_store_dwordx4 {v4(B[0])}, {VL}, {sWS}, s3 offen")
    a(f"buffer_store_dwordx4 {v4(B[0])}, {VL}, {sWS}, s62 offen sc1")
    stamp("qpub")
    if fast1:
        a("s_getreg_b32 s78, hwreg(HW_REG_XCC_ID, 0, 4)")
        a(f"s_lshl_b32 s3, {EP1}, 4"); a("s_or_b32 s3, s3, s78"); a(f"v_mov_b32 v{T[0]}, s3")
        a("s_and_b32 s3, s2, 7"); a("s_lshl_b32 s3, s3, 5"); a("s_lshr_b32 s62, s2, 3"); a("s_add_u32 s3, s3, s62")
        a("s_lshl_b32 s3, s3, 2"); a(f"s_add_u32 s3, s3, {XC}"); a(f"v_mov_b32 v{T[1]}, s3")
        a("s_mov_b64 exec, 1"); a(f"buffer_store_dword v{T[0]}, v{T[1]}, {sWS}, 0 offen sc1"); a("s_mov_b64 exec, -1")
        a(f"s_mov_b32 s61, {FAST}")
    a(f"v_lshrrev_b32 {VF}, 3, {LANE}"); a(f"v_lshlrev_b32 {VF}, 5, {VF}"); a(f"v_and_b32 v{T[1]}, 7, {LANE}"); a(f"v_lshl_add_u32 {VF}, v{T[1]}, 1, {VF}")
    a(f"s_mov_b32 s60, {FAST if qfast else 0}"); a("s_add_u32 s62, s60, 0x1000")
    if qsleep: a(f"s_sleep {qsleep}")
    a(f"s_mov_b32 {CNT}, 0x40000")
    a.label("L_pq")
    for i in range(8): a(f"buffer_load_dwordx4 {v4(WQ[i])}, {VL}, {sWS}, {'s60' if i < 4 else 's62'} offen offset:{(i & 3) * 1024} sc1")
    for i in range(8):
        a(f"s_waitcnt vmcnt({7-i})")
        a(f"v_bitop3_b32 v{T[1]}, v{WQ[i]+1}, v{WQ[i]+3}, {EP1} bitop3:0x7e")
        a(f"v_mov_b32 v{T[0]}, v{T[1]}" if i == 0 else f"v_or_b32 v{T[0]}, v{T[0]}, v{T[1]}")
    a(f"v_cmp_ne_u32 vcc, 0, v{T[0]}")
    a("s_cbranch_vccz L_pq_ok")
    if qsl2: a(f"s_sleep {qsl2}")
    if qfast: a(f"s_cmp_gt_u32 {CNT}, {0x40000 - qfast + 1}"); a("s_cselect_b32 s60, s60, 0"); a("s_add_u32 s62, s60, 0x1000")
    a(f"s_sub_u32 {CNT}, {CNT}, 1"); a(f"s_cmp_lg_u32 {CNT}, 0"); a("s_cbranch_scc1 L_pq")
    a.label("L_pq_ok")
    if diag and "polls" in names:
        i = names.index("polls"); a(f"s_sub_u32 s{80+2*i}, 0x40001, {CNT}")
    for i in range(1, 8):
        a(f"v_add_f32 v{WQ[0]}, v{WQ[0]}, v{WQ[i]}"); a(f"v_add_f32 v{WQ[0]+2}, v{WQ[0]+2}, v{WQ[i]+2}")
    a(f"v_cvt_pk_bf16_f32 v{WQ[0]}, v{WQ[0]}, v{WQ[0]+2}")
    a(f"ds_write_b16 {VF}, v{WQ[0]} offset:{L_Q}"); a(f"ds_write_b16_d16_hi {VF}, v{WQ[0]} offset:{L_Q + 16}")
    a("s_waitcnt lgkmcnt(0)")
    if thr:
        a(f"v_mov_b32 v{T[0]}, 7"); a(f"v_mov_b32 v{T[1]}, 0"); a(f"ds_write_b32 v{T[1]}, v{T[0]} offset:{L_ROLE+8}")
        a("s_waitcnt lgkmcnt(0)")
    if adapt:
        a(f"v_mov_b32 v{T[0]}, {adapt[3]}"); a(f"v_mov_b32 v{T[1]}, 0"); a(f"ds_write_b32 v{T[1]}, v{T[0]} offset:{L_ROLE+8}")
        a("s_waitcnt lgkmcnt(0)")
    stamp("qgot")
    a("s_barrier")
    def progress():
        a("s_lshr_b32 s3, s2, 3"); a("s_lshl_b32 s3, s3, 7"); a(f"s_add_u32 s72, s3, {KD}")
        a("s_and_b32 s73, s2, 7"); a("s_lshl_b32 s3, s73, 2")
        a(f"v_mov_b32 v{S+4}, {EP1}"); a(f"v_mov_b32 v{S+5}, s3"); a(f"v_lshlrev_b32 v{S+6}, 2, {LANE}")
        a("s_mov_b64 exec, 0xff"); a(f"buffer_load_dword v{S+7}, v{S+6}, {sWS}, s72 offen sc1")
        a("s_mov_b64 exec, 1"); a(f"buffer_store_dword v{S+4}, v{S+5}, {sWS}, s72 offen sc1")
        a("s_mov_b64 exec, 0xff"); a("s_waitcnt vmcnt(1)")
        a(f"v_cmp_eq_u32 vcc, {EP1}, v{S+7}"); a("s_mov_b64 exec, -1")
        a("s_bcnt1_i32_b32 s3, vcc_lo")
        a(f"v_mov_b32 v{S+4}, s3"); a(f"v_mov_b32 v{S+5}, 0"); a(f"ds_write_b32 v{S+5}, v{S+4} offset:{L_ROLE+8}")
    if thr and thr_at == "B1": progress()
    a(f"v_mov_b32 v{T[0]}, {VKV}")
    if codepf: codetouch()
    if pads:
        a("s_mov_b64 exec, 0"); a("s_cbranch_execz P_pub_0")
        a.label("L_warm1")
        a(f"s_cmp_lt_u32 {RID}, 144"); a("s_cbranch_scc1 P_ffn_0")
        a(f"s_cmp_lt_u32 {RID}, 216"); a("s_cbranch_scc1 P_wo_0")
        a("s_branch P_red_0")
        a.label("L_warm2")
        a("s_mov_b64 exec, -1")
    a(f"s_lshl_b32 s3, {HEAD}, 3"); a(f"s_add_u32 s3, s3, {SPLIT}")
    a(f"s_lshl_b32 s62, s3, 9"); a(f"s_add_u32 s62, s62, {O1}"); a(f"v_add_u32 {VW}, s62, v{T[0]}")
    a("s_lshl_b32 s62, s3, 4"); a(f"s_add_u32 s62, s62, {ML}"); a(f"v_writelane_b32 {VW}, s62, 32")
    a(f"v_and_b32 {VKV}, 0x1f0, v{T[0]}"); a(f"v_lshrrev_b32 v{T[1]}, 5, {LANE}"); a(f"v_lshl_add_u32 {VKV}, v{T[1]}, 11, {VKV}")
    HT = [Q, B[0], B[1]]
    def half_sum():
        if not trim:
            for r in range(4): a(f"v_mov_b32 v{T[r]}, v{D+r}")
        for r in range(4): a(f"v_permlane32_swap_b32 v{D+r}, v{T[r]}")
        add4(D, T[0])
    a("s_barrier")
    if dyn:
        a(f"v_mov_b32 {VL}, 1"); a(f"v_mov_b32 {VF}, 0")
        a("s_mov_b64 exec, 1")
        a(f"buffer_atomic_add {VL}, {VF}, s[96:99], 0 offen sc0 sc1")
        a("s_mov_b64 exec, -1")
    if adapt or (thr and thr_at == "B2"): progress()
    def groups_done():
        a("s_mov_b64 exec, 0xff"); a(f"buffer_load_dword v{S+7}, v{S+6}, {sWS}, 0 offen sc1"); a("s_waitcnt vmcnt(0)")
        a(f"v_bitop3_b32 v{S+7}, v{S+7}, {VTAG}, {TLOW} bitop3:0x28"); a(f"v_cmp_eq_u32 vcc, 0, v{S+7}"); a("s_mov_b64 exec, -1")
        a("s_bcnt1_i32_b32 s3, vcc_lo")
    if gate:
        assert rep2
        a("s_and_b32 s3, s2, 7"); a("s_lshl_b32 s3, s3, 15"); a(f"s_add_u32 s3, s3, {Z2R}"); a(f"v_lshl_add_u32 v{S+6}, {LANE}, 8, s3")
        groups_done()
        a(f"s_cmp_ge_u32 s3, {gate[0]}"); a("s_cselect_b32 s72, 1, 0")
        a(f"v_mov_b32 v{S+4}, s72"); a(f"v_mov_b32 v{S+5}, 0"); a(f"ds_write_b32 v{S+5}, v{S+4} offset:{L_ROLE+8}")
        if diag and "rank" in names: a(f"s_add_u32 s{80+2*names.index('rank')}, s3, 1")
    if fast1:
        a("s_and_b32 s3, s2, 7"); a("s_lshl_b32 s3, s3, 7"); a(f"s_add_u32 s3, s3, {XC}")
        a(f"v_and_b32 v{S}, 31, {LANE}"); a(f"v_lshlrev_b32 v{S}, 2, v{S}")
        a(f"buffer_load_dword v{S}, v{S}, {sWS}, s3 offen sc1")
    wgmax(VM)
    if dyn:
        a("s_waitcnt vmcnt(0)")
        stamp("claim")
        a(f"v_readfirstlane_b32 {RID}, {VL}")
        a("s_mov_b64 exec, 1"); a(f"ds_write_b32 {VF}, {VL} offset:{L_ROLE}"); a("s_mov_b64 exec, -1")
        role_setup()
        a("s_waitcnt lgkmcnt(0)")
    if fast1:
        a("s_waitcnt vmcnt(0)")
        a(f"s_lshl_b32 s3, {EP1}, 4"); a("s_or_b32 s3, s3, s78")
        a(f"v_cmp_ne_u32 vcc, s3, v{S}")
        a("s_cmp_eq_u32 vcc_lo, 0"); a(f"s_cselect_b32 s3, {FAST}, 0")
        a(f"v_mov_b32 v{T[0]}, s3"); a(f"v_mov_b32 {VF}, 0"); a(f"ds_write_b32 {VF}, v{T[0]} offset:{L_ROLE+4}")
        a("s_waitcnt lgkmcnt(0)")
    a(f"v_mov_b32 {VF}, 0")
    if xb: a("s_barrier")
    a.mark("chain", "P_pub", "L_warm1")
    a("s_barrier")
    a(f"ds_read_b128 {v4(F[0])}, {VF} offset:{L_LW}"); a(f"ds_read_b128 {v4(F[1])}, {VF} offset:{L_LW+16}")
    stamp("b3")
    sum_parts(VKV, D, HT, 4, 512)
    add4(F[0], F[1])
    half_sum()
    a(f"v_add_f32 v{F[0]}, v{F[0]}, v{F[0]+1}"); a(f"v_add_f32 v{F[0]+2}, v{F[0]+2}, v{F[0]+3}")
    a("s_mov_b32 exec_lo, 0"); a("s_mov_b32 exec_hi, 1")
    a(f"v_add_f32 v{D+1}, v{F[0]}, v{F[0]+2}"); a(f"v_mov_b32 v{D}, {VM}"); a(f"v_mov_b32 v{D+2}, {VM}"); a(f"v_mov_b32 v{D+3}, {VM}")
    a("s_mov_b32 exec_lo, -1")
    for i in range(4): a(f"v_and_or_b32 v{D+i}, v{D+i}, {TMASK}, {VTAG}")
    if fast1: a(f"buffer_store_dwordx4 {v4(D)}, {VW}, {sWS}, s61 offen")
    a(f"buffer_store_dwordx4 {v4(D)}, {VW}, {sWS}, 0 offen sc1")
    stamp("ostore")
    a("s_mov_b64 exec, -1")
    if gate:
        a.mark("nopad", 1)
        a(f"s_sub_u32 s3, {RID}, 144"); a("s_cmp_lt_u32 s3, 72"); a("s_cbranch_scc1 L_gate_ok")
        a("s_cmp_lg_u32 s72, 0"); a("s_cbranch_scc1 L_gate_ok")
        a(f"s_mov_b32 {CNT}, 0x40000")
        a.label("L_gate")
        groups_done()
        a(f"s_cmp_ge_u32 s3, {gate[1]}"); a("s_cbranch_scc1 L_gate_ok")
        a("s_sleep 2")
        a(f"s_sub_u32 {CNT}, {CNT}, 1"); a(f"s_cmp_lg_u32 {CNT}, 0"); a("s_cbranch_scc1 L_gate")
        a.label("L_gate_ok")
        a.mark("nopad", 0)
    if pre: a(f"s_sub_u32 s3, {RID}, 144"); a("s_cmp_lt_u32 s3, 72"); a("s_cbranch_scc1 L_wo_pub")
    a("s_barrier")
    a("s_setprio 0")

    a.label("L_tail")
    stamp("tail")
    a(f"s_cmp_lt_u32 {RID}, 144"); a("s_cbranch_scc1 L_ffn")
    a(f"s_cmp_lt_u32 {RID}, 216"); a("s_cbranch_scc1 L_wo")
    if pre: b4("r")
    if t2 == "red":
        a("s_and_b32 s3, s2, 7"); a(f"s_mul_i32 s3, s3, {576*1152}")
        a("s_lshr_b32 s62, s2, 3"); a("s_sub_u32 s62, s62, 27"); a(f"s_mul_i32 s62, s62, {1037*128}")
        a(f"s_sub_u32 s42, {576*1152}, s62"); a(f"s_min_u32 s42, s42, {1037*128}"); a("s_add_u32 s3, s3, s62")
        a("s_add_u32 s40, s20, s3"); a("s_addc_u32 s41, s21, 0")
        a(f"s_lshl_b32 s3, {WAVE}, 14"); a(f"v_lshl_add_u32 v{T[0]}, {LANE}, 7, s3"); a("s_movk_i32 s3, 0x2000")
        a(f"buffer_load_dword v{S+14}, v{T[0]}, s[40:43], 0 offen"); a(f"buffer_load_dword v{S+15}, v{T[0]}, s[40:43], s3 offen")
    a(f"s_cmp_lt_u32 {RID}, 252"); a("s_cbranch_scc1 L_red")
    a("s_branch L_done")
    a.mark("end")

    a.label("L_wo")
    a.mark("chain", "P_wo", "L_warm2")
    a(f"s_cmp_eq_u32 {WAVE}, 8"); a("s_cbranch_scc1 L_wo_pub")
    OA, OB, MLr = F[0], F[1], F[2]
    for i in range(EW, 8):
        if i - EW >= Ww: a(f"s_waitcnt vmcnt({Ww-1})")
        gload(i, G[i])
    a(f"s_and_b32 s3, {RID}, 7"); a("s_lshl_b32 s3, s3, 2"); a(f"s_lshr_b32 s62, {WAVE}, 1"); a("s_add_u32 s3, s3, s62")
    a(f"s_lshl_b32 s62, s3, 12"); a(f"s_and_b32 s60, {WAVE}, 1"); a("s_lshl_b32 s60, s60, 8"); a("s_add_u32 s62, s62, s60")
    a(f"s_add_u32 s62, s62, {O1}")
    a(f"v_lshrrev_b32 v{T[4]}, 4, {LANE}"); a(f"v_and_b32 v{T[5]}, 15, {LANE}")
    a(f"v_lshlrev_b32 {VKV}, 9, v{T[4]}"); a(f"v_lshl_add_u32 {VKV}, v{T[5]}, 4, {VKV}"); a(f"v_add_u32 {VKV}, s62, {VKV}")
    a("s_lshl_b32 s62, s3, 7"); a(f"s_add_u32 s62, s62, {ML}")
    a(f"v_bfe_u32 v{T[6]}, {LANE}, 3, 1"); a(f"v_lshl_add_u32 v{T[6]}, v{T[6]}, 2, v{T[4]}")
    a(f"v_lshlrev_b32 {VW}, 4, v{T[6]}"); a(f"v_add_u32 {VW}, s62, {VW}")
    part_addr(VM, True)
    a("s_mov_b32 s74, 0xff00ff00"); a("s_mov_b32 s75, 0xff00ff00")
    ld1 = lambda i, r: (f"buffer_load_dwordx4 {v4(r)}, {VW}, {sWS}, s61 offen sc1",
                        f"buffer_load_dwordx4 {v4(r)}, {VKV}, {sWS}, s61 offen sc1",
                        f"buffer_load_dwordx4 {v4(r)}, {VKV}, {sWS}, s61 offen offset:2048 sc1")[i]
    ppoll("L_p1", ld1, [MLr, OA, OB], [F[3+3*k:6+3*k] for k in range(PD1)])
    stamp("got")
    m1, l1, m2, l2, M, t = (f"v{T[i]}" for i in range(6))
    m1, l1 = f"v{MLr}", f"v{MLr+1}"
    dpp("v_max_f32", M, m1, m1, "row_ror:8"); allred_rows(M, t, "v_max_f32")
    a(f"v_sub_f32 {m1}, {m1}, {M}"); a(f"v_mul_f32 {m1}, {LOG2E}, {m1}"); a(f"v_exp_f32 {m1}, {m1}")
    a(f"v_mul_f32 {l1}, {l1}, {m1}")
    a(f"v_mov_b32_dpp {m2}, {m1} row_ror:8 row_mask:0xf bank_mask:0xf")
    dpp("v_add_f32", l1, l1, l1, "row_ror:8")
    a(f"v_cndmask_b32 {l2}, {m1}, {m2}, s[74:75]"); a(f"v_cndmask_b32 {m2}, {m2}, {m1}, s[74:75]")
    for i in range(4): a(f"v_mul_f32 v{OA+i}, v{OA+i}, {l2}")
    for i in range(4): a(f"v_fmac_f32 v{OA+i}, v{OB+i}, {m2}")
    a(f"v_mov_b32 {t}, {l1}")
    a(f"v_permlane16_swap_b32 v{OA}, v{OA+1}"); a(f"v_permlane16_swap_b32 {l1}, {t}"); a(f"v_permlane16_swap_b32 v{OA+2}, v{OA+3}")
    a(f"v_add_f32 {l1}, {l1}, {t}"); a(f"v_add_f32 v{OA}, v{OA}, v{OA+1}"); a(f"v_mov_b32 {t}, {l1}"); a(f"v_add_f32 v{OA+2}, v{OA+2}, v{OA+3}")
    a(f"v_permlane32_swap_b32 {l1}, {t}"); a(f"v_permlane32_swap_b32 v{OA}, v{OA+2}")
    a(f"v_add_f32 {l1}, {l1}, {t}"); a(f"v_add_f32 v{OA}, v{OA}, v{OA+2}")
    a(f"v_rcp_f32 {l1}, {l1}")
    a(f"v_mul_f32 v{OA}, v{OA}, {l1}")
    a(f"v_cvt_pk_bf16_f32 v{OA}, v{OA}, v{OA}")
    stamp("f2a")
    mfma_chain(8, bcast_src(f"v{OA}"), lambda t: G[t])
    stamp("f3a")
    if pre: a("s_barrier")
    setexec(TWO)
    a(f"ds_write_b128 {VM}, {v4(D)}")
    a("s_waitcnt lgkmcnt(0)"); a("s_barrier")
    a("s_branch L_done")
    a.label("L_wo_pub")
    a(f"s_and_b32 s3, {RID}, 7"); a("s_lshl_b32 s3, s3, 8"); a(f"s_lshl_b32 s62, {ROLE}, 11"); a("s_add_u32 s3, s3, s62"); a(f"s_add_u32 s3, s3, {Z2R if rep2 else Z2}")
    a(f"v_lshrrev_b32 v{T[4]}, 4, {LANE}"); a(f"v_and_b32 v{T[5]}, 15, {LANE}"); a(f"v_lshlrev_b32 v{T[5]}, 4, v{T[5]}")
    a(f"v_lshl_add_u32 {VKV}, v{T[4]}, 10, v{T[5]}")
    a(f"v_lshl_add_u32 {VW}, v{T[4]}, {15 if rep2 else 2}, v{T[5]}"); a(f"v_add_u32 {VW}, s3, {VW}")
    a(f"s_mov_b32 s62, {4*Z2S}")
    if pre: a("s_barrier")
    a("s_barrier")
    stamp("b6")
    sum_parts(VKV, D, HT, 4, 256)
    if rep2:
        for sw in ("32", "16"):
            for r in ((0, 2) if pk else range(4)): a(f"v_pk_mov_b32 v[{T[r]}:{T[r]+1}], v[{D+r}:{D+r+1}], v[{D+r}:{D+r+1}] op_sel:[0,1]" if pk else f"v_mov_b32 v{T[r]}, v{D+r}")
            for r in range(4): a(f"v_permlane{sw}_swap_b32 v{D+r}, v{T[r]}")
            add4(D, T[0])
        for r in range(4): a(f"v_and_or_b32 v{D+r}, v{D+r}, {TMASK}, {VTAG}")
        a(f"buffer_store_dwordx4 {v4(D)}, {VW}, {sWS}, 0 offen sc1")
        a(f"buffer_store_dwordx4 {v4(D)}, {VW}, {sWS}, s62 offen sc1")
    elif pub2x4:
        for sw in ("32", "16"):
            for r in range(4): a(f"v_permlane{sw}_swap_b32 v{D+r}, v{T[r]}")
            for r in range(4): a(f"v_add_f32 v{D+r}, v{D+r}, v{T[r]}")
        a("s_mov_b64 exec, 0xffff")
        for r in range(4): a(f"v_and_or_b32 v{D+r}, v{D+r}, {TMASK}, {VTAG}")
        a(f"buffer_store_dwordx4 {v4(D)}, {VW}, {sWS}, 0 offen sc1")
    else:
        rows_scatter(*(f"v{D+i}" for i in range(4)))
        a(f"v_and_or_b32 v{D}, v{D}, {TMASK}, {VTAG}")
        a(f"buffer_store_dword v{D}, {VW}, {sWS}, 0 offen sc1")
    stamp("pub")
    a("s_branch L_done")

    a.mark("end")
    a.label("L_ffn")
    a.mark("chain", "P_ffn", "L_warm2")
    W13 = F[0:8]; ZA, ZB = F[9], F[10]; HX = F[11]
    AD = f"v[{HX}:{HX+1}]"
    a(f"s_mov_b32 s54, {0 if now13 > 1 else 32*1152}")
    G2 = G + [F[8], F[14], F[15], F[16]]
    def w2loads(tag):
        a(f"s_cmp_ge_u32 {WAVE}, 4"); a(f"s_cbranch_scc1 L_w2{tag}")
        for t in range(4):
            for b in range(3):
                so = (("0", "s76"), ("0", "s76"), ("s12", "s13"))[b][t >> 1]
                a(f"buffer_load_dwordx4 {v4(G2[4*b+t])}, {VG}, {sG}, {so} offen offset:{(t & 1) * 2304 + 512 * b} {wpol}")
        a.label(f"L_w2{tag}")
    a(f"s_cmp_eq_u32 {WAVE}, 0"); a("s_cselect_b32 s12, 0, 0x40000000"); a("s_add_u32 s13, s12, s76")
    a(f"v_lshrrev_b32 v{T[4]}, 4, {LANE}"); a(f"v_bfe_u32 v{T[5]}, {LANE}, 3, 1"); a(f"v_lshl_add_u32 v{T[6]}, v{T[4]}, 3, v{T[5]}")
    a(f"s_lshl_b32 s3, {WAVE}, 6"); a(f"v_add_u32 v{T[6]}, s3, v{T[6]}"); a(f"v_mul_u32_u24 v{T[6]}, 9216, v{T[6]}")
    a(f"v_and_b32 v{T[7]}, 3, {LANE}"); a(f"v_lshl_add_u32 v{T[6]}, v{T[7]}, 4, v{T[6]}")
    a(f"s_lshl_b32 s62, {ROLE}, 6"); a(f"v_add_u32 v{T[6]}, s62, v{T[6]}")
    a("s_mov_b32 s74, 0xf0f0f0f0"); a("s_mov_b32 s75, 0xf0f0f0f0")
    a(f"v_mov_b32 v{HX}, s16"); a(f"v_mov_b32 v{HX+1}, s17"); a(f"v_mov_b32 v{HX+2}, s18"); a(f"v_mov_b32 v{HX+3}, s19")
    a(f"v_cndmask_b32 v{HX}, v{HX}, v{HX+2}, s[74:75]"); a(f"v_cndmask_b32 v{HX+1}, v{HX+1}, v{HX+3}, s[74:75]")
    a(f"v_add_co_u32 v{HX}, vcc, v{HX}, v{T[6]}"); a(f"v_addc_co_u32 v{HX+1}, vcc, 0, v{HX+1}, vcc")
    a(f"s_movk_i32 s72, {2*9216}"); a("s_mov_b32 s73, 0"); a(f"s_mov_b32 s10, {26*9216}"); a("s_mov_b32 s11, 0")
    if pre: b4("f")
    if dwait: a("s_waitcnt vmcnt(0)")
    if dwait > 1: a("s_barrier")
    for tt in range(8):
        if not now13: a(f"global_load_dwordx4 {v4(W13[tt])}, {AD}, off {wpol}")
        if tt < 7: a(f"v_lshl_add_u64 {AD}, {'s[10:11]' if tt == 3 else 's[72:73]'}, 0, {AD}")
    a(f"v_lshl_add_u32 {VL}, v{T[5]}, 2, v{T[4]}"); a(f"v_and_b32 v{T[6]}, 7, {LANE}"); a(f"v_lshl_add_u32 {VL}, {VL}, 3, v{T[6]}")
    a(f"v_add_u32 {VL}, s3, {VL}"); a(f"v_lshlrev_b32 {VL}, 1, {VL}")
    a(f"buffer_load_ushort v{HX+2}, {VL}, {sX}, 0 offen")
    def z2base():
        if rep2: a("s_and_b32 s62, s2, 7"); a("s_lshl_b32 s62, s62, 15"); a("s_add_u32 s3, s3, s62")
        a(f"s_add_u32 s3, s3, {Z2R if rep2 else Z2}")
    a(f"v_and_b32 v{T[5]}, 15, {LANE}")
    a(f"s_lshl_b32 s3, {WAVE}, 11"); z2base()
    a(f"v_lshlrev_b32 {VKV}, 8, v{T[4]}"); a(f"v_lshl_add_u32 {VKV}, v{T[5]}, 4, {VKV}"); a(f"v_add_u32 {VKV}, s3, {VKV}")
    part_addr(VM, True)
    a(f"v_bfe_u32 {VW}, {LANE}, 4, 1"); a(f"v_lshlrev_b32 {VW}, 2, {VW}"); a(f"s_lshl_b32 s3, {WAVE}, 3"); a(f"v_add_u32 {VW}, s3, {VW}")
    VR, VO, VS, V8 = (f"v{S+i}" for i in (1, 2, 3, 8)); E = S + 4
    a(f"v_and_b32 {V8}, 31, {LANE}"); a(f"v_lshlrev_b32 {V8}, 4, {V8}")
    a(f"v_lshrrev_b32 {VR}, 5, {LANE}"); a(f"v_lshl_add_u32 {VR}, {VR}, 11, {V8}")
    if rmaj:
        a(f"s_lshl_b32 s3, {ROLE}, 6"); a(f"s_mul_i32 s62, {WAVE}, {4*9216}"); a("s_add_u32 s3, s3, s62"); a(f"s_add_u32 s3, s3, {P3}")
        a(f"v_bfe_u32 {VO}, {LANE}, 2, 1"); a(f"v_lshl_add_u32 {VO}, v{T[4]}, 1, {VO}"); a(f"v_mul_u32_u24 {VO}, 9216, {VO}")
        a(f"v_and_b32 v{T[7]}, 3, {LANE}"); a(f"v_lshl_add_u32 {VO}, v{T[7]}, 4, {VO}"); a(f"v_add_u32 {VO}, s3, {VO}")
    else:
        a(f"s_mul_i32 s3, {ROLE}, 2304"); a(f"s_lshl_b32 s62, {WAVE}, 8"); a("s_add_u32 s3, s3, s62"); a(f"s_add_u32 s3, s3, {P3}")
        a(f"v_lshlrev_b32 {VO}, 7, v{T[4]}"); a(f"v_lshl_add_u32 {VO}, v{T[6]}, 4, {VO}"); a(f"v_add_u32 {VO}, s3, {VO}")
    a("s_mov_b32 s10, 0.5"); a("s_mov_b32 s11, 0.5")
    a(f"v_lshlrev_b32 {VS}, 3, v{T[5]}")
    def colsums(n):
        a(f"v_mov_b32 v{T[0]}, 0x3f803f80"); selector(B[0], f"v{T[0]}")
        for t in range(8):
            a(f"s_waitcnt vmcnt({n + 1 + 7 - t})")
            mfma(W13[t], B[0], first=(t == 0), dst=Q)
        stamp("wts")
        for r in range(4): a(f"v_permlane32_swap_b32 v{Q+r}, v{B[1]+r}")
        for r in range(4): dpp("v_add_f32", f"v{E+r}", f"v{B[1]+r}", f"v{Q+r}", "row_ror:8")
        if w2at == "after": a("s_waitcnt vmcnt(0)"); w2loads("a"); a("s_branch L_p2_re")
    ld2 = lambda i, r: f"buffer_load_dwordx4 {v4(r)}, {VKV}, {sWS}, 0 offen offset:{1024*i} sc1"
    if f2lds:
        VX, VY = f"v{S+9}", f"v{S+10}"
        a(f"s_lshl_b32 s3, {WAVE}, 8"); a(f"s_add_u32 s3, s3, {L_H}")
        a(f"v_and_b32 {VX}, 1, {LANE}"); a(f"v_lshl_add_u32 {VX}, v{T[4]}, 1, {VX}"); a(f"v_lshlrev_b32 {VX}, 5, {VX}")
        a(f"v_bfe_u32 v{T[7]}, {LANE}, 1, 3"); a(f"v_lshl_add_u32 {VX}, v{T[7]}, 2, {VX}"); a(f"v_add_u32 {VX}, s3, {VX}")
        a(f"v_lshrrev_b32 {VY}, 3, {LANE}"); a(f"v_lshl_add_u32 {VY}, {VY}, 5, s3")
    ppoll("L_p2", ld2, [ZA, ZB], [F[12:14]], sleep2, first=colsums)
    stamp("got")
    if w2at == "got": w2loads("g")
    add4(ZA, ZB)
    a(f"v_lshlrev_b32 v{HX+2}, 16, v{HX+2}")
    rows_scatter(*(f"v{ZA+i}" for i in range(4)))
    h, h2, hd = f"v{ZA}", f"v{ZA+1}", f"v{ZA+2}"
    if tm: rbf(h, h)
    a(f"v_add_f32 {h}, {h}, v{HX+2}")
    a(f"v_cvt_pk_bf16_f32 {hd}, {h}, {h}"); a(f"v_and_b32 {h}, {HI}, {hd}")
    stat = [lambda st=st, r=r: dpp("v_add_f32", r, r, r, f"row_ror:{st}") for st in (8, 4, 2, 1) for r in (h, h2)]
    def f2pre(t):
        if t < fill and not f2lds: stat[t]()
        if t == 4 and w2at == "mid": w2loads("m")
    if f2lds:
        a(f"ds_write_b32 {VX}, {hd}")
        a(f"ds_read_b128 {v4(ZB)}, {VY}"); a(f"ds_read_b128 {v4(Q)}, {VY} offset:16")
        a(f"v_mul_f32 {h2}, {h}, {h}")
        for f_ in stat: f_()
        fill = 8
        def lsrc(t):
            if t == 0: a("s_waitcnt lgkmcnt(1)")
            if t == 4: a("s_waitcnt lgkmcnt(0)")
        lsrc.reg = lambda t: f"v{(ZB if t < 4 else Q) + t % 4}"
        lsrc(0); selector(B[0], lsrc.reg(0))
        for t in range(8):
            if t < 7: lsrc(t + 1); selector(B[(t + 1) & 1], lsrc.reg(t + 1))
            f2pre(t)
            mfma(W13[t], B[t & 1], first=(t == 0))
    else:
        a(f"v_mul_f32 {h2}, {h}, {h}")
        mfma_chain(8, bcast_src(hd), lambda t: W13[t], pre=f2pre)
    if w2at == "end": w2loads("e")
    stamp("f2a")
    for f_ in stat[fill:]: f_()
    a(f"v_permlane16_swap_b32 {h}, {h2}"); a(f"v_add_f32 {h}, {h}, {h2}")
    a(f"v_mov_b32 {h2}, {h}"); a(f"v_permlane32_swap_b32 {h}, {h2}"); a(f"v_add_f32 {h}, {h}, {h2}")
    for r in range(4): a(f"v_permlane32_swap_b32 v{D+r}, v{E+r}")
    a("s_mov_b64 exec, 0x00010001")
    a(f"ds_write_b32 {VW}, {h} offset:{L_ST}")
    a("s_mov_b64 exec, -1")
    for r in range(4): a(f"v_add_f32_dpp v{D+r}, v{E+r}, v{D+r} row_ror:8 row_mask:0x3 bank_mask:0xf")
    setexec(PLAIN)
    a(f"ds_write_b128 {VM}, {v4(D)}")
    a("s_mov_b64 exec, -1")
    a("s_waitcnt lgkmcnt(0)"); a("s_barrier")
    stamp("b6")
    a(f"s_cmp_ge_u32 {WAVE}, 4"); a("s_cbranch_scc1 L_done")
    mu, var = f"v{T[0]}", f"v{T[1]}"
    a(f"ds_read_b64 v[{T[0]}:{T[1]}], {VS} offset:{L_ST}")
    RD = [ZA, ZB, Q, HX, E]
    for i in range(4): a(f"ds_read_b128 {v4(RD[i])}, {VR} offset:{L_P + 512*i}")
    a(f"ds_read_b128 {v4(RD[4])}, {V8} offset:{L_P + 512*8}")
    if w2at == "b6": w2loads("b")
    a("s_waitcnt lgkmcnt(5)")
    assert not tm
    p2 = lambda r: f"v[{r}:{r+1}]"
    if pk:
        adds = [lambda i=i, r=r: a(f"v_pk_add_f32 {p2(ZA+r)}, {p2(ZA+r)}, {p2(RD[i]+r)}" if i < 4 else f"v_pk_fma_f32 {p2(ZA+r)}, {p2(RD[i]+r)}, s[10:11], {p2(ZA+r)}")
                for i in range(1, 5) for r in (0, 2)]
    else:
        adds = [lambda i=i, r=r: [a(f"v_add_f32 v{ZA+q}, v{ZA+q}, v{RD[i]+q}" if i < 4 else f"v_fmac_f32 v{ZA+q}, 0.5, v{RD[i]+q}") for q in (r, r + 1)]
                for i in range(1, 5) for r in (0, 2)]
    red = lambda st: (dpp("v_add_f32", mu, mu, mu, f"row_ror:{st}"), dpp("v_add_f32", var, var, var, f"row_ror:{st}"))
    red(8); a("s_waitcnt lgkmcnt(3)"); adds[0](); red(4); adds[1](); red(2)
    a("s_waitcnt lgkmcnt(2)"); adds[2](); red(1); adds[3]()
    a(f"v_mul_f32 {mu}, {f32(1/576)}, {mu}"); a(f"v_mul_f32 {var}, {f32(1/576)}, {var}")
    a("s_waitcnt lgkmcnt(1)"); adds[4](); a(f"v_fma_f32 {var}, -{mu}, {mu}, {var}"); adds[5](); a(f"v_max_f32 {var}, 0, {var}")
    a("s_waitcnt lgkmcnt(0)"); adds[6](); a(f"v_add_f32 {var}, {f32(1e-5)}, {var}"); adds[7]()
    stamp("f3a")
    a(f"v_rsq_f32 {var}, {var}")
    a(f"v_permlane16_swap_b32 v{ZA}, v{ZA+1}"); a(f"v_permlane16_swap_b32 v{ZA+2}, v{ZA+3}")
    a(f"v_fma_f32 v{ZA}, v{ZA+1}, -{mu}, v{ZA}"); a(f"v_fma_f32 v{ZA+2}, v{ZA+3}, -{mu}, v{ZA+2}")
    a(f"v_permlane32_swap_b32 v{ZA}, v{ZA+2}"); a(f"v_add_f32 v{ZA}, v{ZA}, v{ZA+2}")
    e = [f"v{T[i]}" for i in range(4)]
    g, ot = f"v{ZA}", f"v{ZA+2}"
    a(f"v_mul_f32 {g}, {g}, {var}")
    a(f"v_mul_f32 {ot}, {f32(-1.4426950408889634)}, {g}"); a(f"v_exp_f32 {ot}, {ot}")
    dpp("v_mul_f32", g, g, g, "row_ror:8")
    a(f"v_add_f32 {ot}, 1.0, {ot}"); a(f"v_rcp_f32 {ot}, {ot}"); a(f"v_mul_f32 {g}, {g}, {ot}")
    a(f"v_cvt_pk_bf16_f32 {g}, {g}, {g}")
    stamp("f3b")
    ACC = [D, Q, E]
    src = bcast_src(g); src(0)
    for t in range(4):
        selector(B[t & 1], src.reg(t))
        if t < 3: src(t + 1)
        for b in range(3):
            a(f"s_waitcnt vmcnt({11 - 3*t - b})")
            mfma(G2[4*b+t], B[t & 1], first=(t == 0), dst=ACC[b])
    stamp("f3c")
    a(f"s_mov_b32 s10, {16*9216 if rmaj else 1024}"); a(f"s_mov_b32 s11, {32*9216 if rmaj else 2048}")
    for b in range(3):
        if b == 2: a(f"s_cmp_lg_u32 {WAVE}, 0"); a("s_cbranch_scc1 L_done")
        d = ACC[b]
        if b: a("s_mov_b64 exec, -1")
        for r in range(4): a(f"v_permlane32_swap_b32 v{d+r}, {e[r]}")
        for r in range(4): dpp("v_add_f32", f"v{d+r}", e[r], f"v{d+r}", "row_ror:8")
        for r in range(4): a(f"v_and_or_b32 v{d+r}, v{d+r}, {TMASK}, {VTAG}")
        a("s_mov_b64 exec, 0x00ff00ff")
        a(f"buffer_store_dwordx4 {v4(d)}, {VO}, {sWS}, {('0', 's10', 's11')[b]} offen sc1")
        if b == 1: stamp("pub")
    stamp("pub")
    a("s_branch L_done")

    a.mark("end")
    a.label("L_red")
    a.mark("chain", "P_red", "L_warm2")
    PA_, HH = F[0], F[1]
    a(f"s_sub_u32 {ROLE}, {RID}, 216")
    a(f"v_and_b32 v{T[4]}, 3, {LANE}"); a(f"v_lshrrev_b32 v{T[5]}, 4, {LANE}")
    a(f"s_lshr_b32 s3, {ROLE}, 1"); a("s_lshl_b32 s3, s3, 5"); a(f"s_and_b32 s62, {ROLE}, 1"); a("s_lshl_b32 s62, s62, 2"); a("s_add_u32 s3, s3, s62")
    a(f"v_lshl_add_u32 {VL}, v{T[5]}, 3, v{T[4]}"); a(f"v_add_u32 {VL}, s3, {VL}"); a(f"v_lshlrev_b32 {VL}, 1, {VL}")
    a(f"v_lshl_add_u32 {VF}, v{T[5]}, 2, v{T[4]}"); a(f"v_mul_u32_u24 {VF}, 48, {VF}")
    a(f"s_lshl_b32 s3, {WAVE}, 2"); a(f"v_add_u32 {VM}, s3, {VF}")
    a(f"s_cmp_lg_u32 {WAVE}, 0"); a("s_cbranch_scc1 L_red_h3")
    a(f"buffer_load_ushort v{Q}, {VL}, {sX}, 0 offen")
    a(f"s_lshr_b32 s62, {ROLE}, 2"); a("s_lshl_b32 s62, s62, 11"); a(f"s_and_b32 s3, {ROLE}, 3"); a("s_lshl_b32 s3, s3, 6")
    a("s_add_u32 s3, s3, s62"); z2base()
    a(f"v_bfe_u32 {VKV}, {LANE}, 2, 3"); a(f"v_lshlrev_b32 {VKV}, 8, {VKV}"); a(f"v_lshl_add_u32 {VKV}, v{T[4]}, 4, {VKV}")
    a(f"v_add_u32 {VKV}, s3, {VKV}")
    poll("L_p2r", [f"buffer_load_dwordx4 {v4(HH)}, {VKV}, {sWS}, 0 offen sc1"], [HH], 2)
    hv = [f"v{HH+i}" for i in range(4)]
    for i in range(4): a(f"v_and_b32 {hv[i]}, {TMASK}, {hv[i]}")
    rows_scatter(*hv)
    allred16(hv[:1], steps=(4, 8))
    a(f"v_mul_f32 {hv[0]}, 0.5, {hv[0]}")
    if tm: rbf(hv[0], hv[0])
    a(f"v_lshlrev_b32 v{Q}, 16, v{Q}"); a(f"v_add_f32 {hv[0]}, {hv[0]}, v{Q}"); rbf(hv[0], hv[0])
    stamp("got")
    a.label("L_red_h3")
    if rmaj:
        a(f"s_mul_i32 s3, {ROLE}, 9216"); a(f"s_lshl_b32 s62, {WAVE}, 10"); a("s_add_u32 s3, s3, s62"); a(f"s_add_u32 s3, s3, {P3}")
        a(f"v_lshl_add_u32 {VW}, {LANE}, 4, s3")
    else:
        a(f"v_lshrrev_b32 {VW}, 2, {LANE}"); a(f"s_lshl_b32 s3, {WAVE}, 4"); a(f"v_add_u32 {VW}, s3, {VW}")
        a(f"v_mul_u32_u24 {VW}, 2304, {VW}"); a(f"v_lshl_add_u32 {VW}, v{T[4]}, 4, {VW}")
        a(f"s_lshl_b32 s3, {ROLE}, 6"); a(f"s_add_u32 s3, s3, {P3}"); a(f"v_add_u32 {VW}, s3, {VW}")
    ppoll("L_p3", lambda i, r: f"buffer_load_dwordx4 {v4(r)}, {VW}, {sWS}, 0 offen sc1", [PA_], [[F[2+k]] for k in range(PD3)], sleep3, SP3)
    stamp("pub")
    pv = [f"v{PA_+i}" for i in range(4)]
    rows_scatter(*pv)
    allred16(pv[:1], steps=(4, 8))
    setexec(0x000F000F000F000F)
    a(f"ds_write_b32 {VM}, {pv[0]} offset:{L_P}")
    a("s_waitcnt lgkmcnt(0)"); a("s_barrier")
    a(f"s_cmp_lg_u32 {WAVE}, 0"); a("s_cbranch_scc1 L_done")
    a(f"ds_read_b128 {v4(PA_)}, {VF} offset:{L_P}"); a(f"ds_read_b128 {v4(B[0])}, {VF} offset:{L_P+16}"); a(f"ds_read_b32 v{B[1]}, {VF} offset:{L_P+32}")
    a("s_waitcnt lgkmcnt(1)")
    add4(PA_, B[0])
    a(f"v_add_f32 {pv[0]}, {pv[0]}, {pv[1]}"); a(f"v_add_f32 {pv[2]}, {pv[2]}, {pv[3]}")
    a("s_waitcnt lgkmcnt(0)")
    a(f"v_add_f32 {pv[0]}, {pv[0]}, v{B[1]}"); a(f"v_add_f32 {pv[0]}, {pv[0]}, {pv[2]}")
    if tm: rbf(pv[0], pv[0])
    a(f"v_add_f32 {pv[0]}, {pv[0]}, {hv[0]}")
    if delta: a(f"v_add_f32 {pv[0]}, {f32(delta)}, {pv[0]}")
    a(f"v_cvt_pk_bf16_f32 {pv[0]}, {pv[0]}, {pv[0]}")
    a(f"buffer_store_short {pv[0]}, {VL}, {sOUT}, 0 offen")
    a(f"s_cmp_lg_u32 {ROLE}, 0"); a("s_cbranch_scc1 L_done")
    a("s_mov_b64 exec, 1")
    a(f"v_mov_b32 v{T[0]}, {EP1}"); a(f"v_mov_b32 v{T[1]}, {EPOCH}")
    a(f"buffer_store_dword v{T[0]}, v{T[1]}, {sWS}, 0 offen")
    if amp:
        a("s_memrealtime s[94:95]"); a("s_waitcnt lgkmcnt(0)")
        a("s_sub_u32 s3, s94, s92"); a(f"s_mul_i32 s3, s3, {amp}"); a("s_min_u32 s3, s3, 30000")
        a.label("L_amp"); a("s_memrealtime s[90:91]"); a("s_waitcnt lgkmcnt(0)"); a("s_sub_u32 s62, s90, s94")
        a("s_cmp_lt_u32 s62, s3"); a("s_cbranch_scc1 L_amp")

    a.mark("end")
    a.label("L_done")
    if diag == 2:
        stamp("end")
        a("s_mov_b64 exec, 1"); a("s_waitcnt lgkmcnt(0)")
        a("s_mov_b32 s76, s24"); a("s_mov_b32 s77, s25"); a("s_movk_i32 s78, 256"); a("s_mov_b32 s79, 0x20000")
        a("s_not_b32 s3, s80"); a("v_mov_b32 v16, s3"); a("v_mov_b32 v17, 0")
        a("buffer_atomic_umax v16, v17, s[76:79], 0 offen sc1")
        a("v_mov_b32 v18, s80"); a("buffer_atomic_umax v18, v17, s[76:79], 0 offen offset:4 sc1")
        a("v_mov_b32 v19, s88"); a("buffer_atomic_umax v19, v17, s[76:79], 0 offen offset:8 sc1")
        a("v_mov_b32 v20, s94"); a("buffer_atomic_umax v20, v17, s[76:79], 0 offen offset:12 sc1")
        a(f"s_cmp_eq_u32 {WAVE}, 8"); a("s_cbranch_scc1 L_exit")
        a("v_mov_b32 v21, s82"); a("buffer_atomic_umax v21, v17, s[76:79], 0 offen offset:16 sc1")
        a("v_mov_b32 v22, s84"); a("buffer_atomic_umax v22, v17, s[76:79], 0 offen offset:20 sc1")
        a("v_mov_b32 v23, s86"); a("buffer_atomic_umax v23, v17, s[76:79], 0 offen offset:24 sc1")
    elif diag:
        stamp("end")
        a("s_mov_b64 exec, 1"); a("s_waitcnt lgkmcnt(0)")
        a(f"s_mul_i32 s3, {RID}, 9"); a(f"s_add_u32 s3, s3, {WAVE}"); a("s_lshl_b32 s3, s3, 5"); a(f"s_add_u32 s3, s3, {STAMP}")
        a("v_mov_b32 v28, s3")
        for i in range(8): a(f"v_mov_b32 v{16+i}, s{80+2*i}")
        a(f"buffer_store_dwordx4 v[16:19], v28, {sWS}, 0 offen"); a(f"buffer_store_dwordx4 v[20:23], v28, {sWS}, 0 offen offset:16")
    a.label("L_exit")
    a("s_endpgm")
    a.label("L_end")
    a.place_pads(pads)
    body = a.finalize()
    out = HEADER + """; One launch, 256 workgroups (one per CU) of 8 streaming waves + 1 helper wave; written with an own generator script.
;  - workgroup b owns head 4*(b&7) + ((b>>3)&3), keys 1024*(b>>5)..+1023. The helper computes LN(x) and a 72-row share of
;    q = LN(x).wq; the eight shares of a head are exchanged through d_ws while the streaming waves already fetch K.
;  - scores by v_dot2 + row reductions, softmax with the true maximum (per wave, then per workgroup, then per head),
;    p.V and all weight products by MFMA with a one-value-per-column selector operand.
;  - after the stream: roles by b: 0..143 SwiGLU slices (32 columns), 144..215 output-projection tiles, 216..251 final sums.
;  - hand-offs carry a tag (launch number read from d_ws word 0, advanced at the end) in every word, so stale or random
;    workspace contents are never taken for data; every wait loop is bounded.
;  - die placement only affects speed: a same-die copy of the first hand-off is read only after the die numbers of all its
;    producers were checked at run time; single-word loads of w1/w3/w2 lines are cache prefetches.
"""
    if diag: out += "; stamps: " + " ".join(names) + "\n"
    out += "; @launch grid=(256,1,1) block=(576,1,1) lds=9216\n"
    out += '.amdgcn_target "amdgcn-amd-amdhsa--gfx950"\n.text\n' + f".globl {KNAME}\n.p2align 8\n.type {KNAME},@function\n"
    out += body
    out += f""".section .rodata,"a"
.p2align 6
.amdhsa_kernel {KNAME}
  .amdhsa_next_free_vgpr 168
  .amdhsa_next_free_sgpr 100
  .amdhsa_accum_offset 168
  .amdhsa_group_segment_fixed_size 0
  .amdhsa_kernarg_size 96
  .amdhsa_user_sgpr_count 2
  .amdhsa_user_sgpr_kernarg_segment_ptr 1
  .amdhsa_system_sgpr_workgroup_id_x 1
.end_amdhsa_kernel
"""
    return out

if __name__ == "__main__":
    kw = eval("dict(" + (sys.argv[2] if len(sys.argv) > 2 else "") + ")")
    open(sys.argv[1], "w").write(gen(**kw))
```

```python
import sys, struct
sys.path.insert(0, "work")
from asmlib import Asm

KNAME = "sequential_preLN__mha_block_cached__glu_gated_swiglu__decode_kernel"
HEADER = open("sequential_preLN__mha_block_cached__glu_gated_swiglu__decode.s.ref").read().split("; Override launch")[0]

def f32(x): return "0x%08x" % struct.unpack("<I", struct.pack("<f", x))[0]

EPOCH, O1, ML, Z2, P3, Q0, STAMP = 0, 0x10000, 0x30000, 0x32000, 0x40000, 0xa0000, 0x100000
Z2R, Z2S = 0x140000, 0x8000
KD = 0x3a000
XC, FAST = 0x38000, 0x200000
L_ST, L_MW, L_LW, L_Q, L_H, L_P = 0, 128, 160, 256, 512, 4096

def gen(Wn=4, nK=18, qsleep=32, EW=8, jB2=9, dyn=0, Ww=13, Wv=None, wqpol='nt', w2mode='first', tu=2, fast1=1, pads=0, now13=0, kvg=0, rperm=2, gpol='nt', dpol=None, xb=1, evp=(4,), yp=2, ev0=6, ev1=64, evmask=0x55, evh=18, evt=None, evw=2, dwait=0, pre=0, gs=0, ge=0, pk=1, tm=0, delta=0, qfast=0, qsl2=0, skipz=1, trim=1, thr=None, nA=24, nE=64, thr_at='B1', thr_par=0, nE2=None, amp=0, Walt=None, W0=0, n0=0, gate=None, w2at='end', f2lds=1, cyc=0, rmaj=1, fill=4, t2='red', SD2=0, SP2=2, SP3=0, adapt=None, jA=14, par=None, rep2=1, PD1=1, PD2=1, PD3=1, pub2x4=1, mpoll=1, tpos=0, pol="nt", wpol="", diag=0, codepf=0, sleep2=0, sleep3=0):
    a = Asm()
    LANE = "v0"; MASK = [4, 5, 6, 7]; Q = 8; D = 12; B = [16, 20]
    VKV, VW, VM, VL, VF, VG, VTAG = "v24", "v25", "v26", "v27", "v1", "v2", "v3"
    T = [28 + i for i in range(8)]
    S = 36
    SLOT0, NSLOT = 52, 29
    sK, sV, sWQ, sX, sWS, sG, sOUT = "s[32:35]", "s[36:39]", "s[40:43]", "s[44:47]", "s[48:51]", "s[52:55]", "s[56:59]"
    WAVE, HEAD, SPLIT, TAG = "s28", "s29", "s30", "s31"
    RID = "s79"; L_ROLE = 192
    assert not (dyn and EW)
    Wv = Wv or Wn
    if adapt: Wv = adapt[2]
    if par: Wn = Wv = max(par)
    SCALE, LOG2E, HI, TMASK, TLOW, ROLE, CNT, EP1 = "s64", "s65", "s66", "s67", "s68", "s69", "s70", "s71"
    v4 = lambda r: f"v[{r}:{r+3}]"
    stamps = []
    names = diag.split() if isinstance(diag, str) else ["start", "q", "kend", "vend", "tail", "got", "pub", "end"]
    def stamp(n):
        if diag and n in names:
            i = names.index(n); a(f"{'s_memtime' if cyc else 's_memrealtime'} s[{80+2*i}:{81+2*i}]")
    def rbf(dst, src):
        a(f"v_cvt_pk_bf16_f32 {dst}, {src}, {src}"); a(f"v_and_b32 {dst}, {HI}, {dst}")
    def dpp(op, d, s0, s1, ctl): a(f"{op}_dpp {d}, {s0}, {s1} {ctl} row_mask:0xf bank_mask:0xf")
    def allred16(regs, op="v_add_f32", steps=(8, 4, 2, 1)):
        for st in steps:
            for r in regs: dpp(op, r, r, r, f"row_ror:{st}")
    def allred_rows(r, t, op="v_add_f32"):
        a(f"v_mov_b32 {t}, {r}"); a(f"v_permlane16_swap_b32 {r}, {t}"); a(f"{op} {r}, {r}, {t}")
        a(f"v_mov_b32 {t}, {r}"); a(f"v_permlane32_swap_b32 {r}, {t}"); a(f"{op} {r}, {r}, {t}")
    def rows_scatter(r0, r1, r2, r3):
        a(f"v_permlane16_swap_b32 {r0}, {r1}"); a(f"v_permlane16_swap_b32 {r2}, {r3}")
        a(f"v_add_f32 {r0}, {r0}, {r1}"); a(f"v_add_f32 {r2}, {r2}, {r3}")
        a(f"v_permlane32_swap_b32 {r0}, {r2}"); a(f"v_add_f32 {r0}, {r0}, {r2}")
    def selector(b, src):
        for j in range(4): a(f"v_and_b32 v{b+j}, {src}, v{MASK[j]}")
    def mfma(A_, B_, first=False, dst=None):
        d = v4(D if dst is None else dst)
        a(f"v_mfma_f32_16x16x32_bf16 {d}, {v4(A_)}, {v4(B_)}, {'0' if first else d}")
    def setexec(m):
        a(f"s_mov_b32 exec_lo, {hex(m & 0xffffffff)}"); a(f"s_mov_b32 exec_hi, {hex(m >> 32)}")
    def tagcheck(quads, t0, t1, t2):
        tmp = []
        first = True
        for qd in quads:
            a(f"v_bitop3_b32 {t1}, v{qd}, v{qd+1}, {TAG} bitop3:0x7e")
            a(f"v_bitop3_b32 {t2}, v{qd+2}, v{qd+3}, {TAG} bitop3:0x7e")
            if first: a(f"v_or_b32 {t0}, {t1}, {t2}"); first = False
            else: a(f"v_or3_b32 {t0}, {t0}, {t1}, {t2}")
        a(f"v_and_b32 {t0}, {TLOW}, {t0}")
        a(f"v_cmp_ne_u32 vcc, 0, {t0}")
    def poll(name, loads, quads, sleep):
        if diag and "wts" in names and name in ("L_p1", "L_p2"): a("s_waitcnt vmcnt(0)"); stamp("wts")
        a.mark("force")
        a(f"s_mov_b32 {CNT}, 0x40000")
        a.mark("nopad", 1)
        n = len(loads)
        if not mpoll:
            a.label(name)
            for l in loads: a(l)
            a("s_waitcnt vmcnt(0)")
            tagcheck(quads, f"v{T[0]}", f"v{T[1]}", f"v{T[2]}")
            a(f"s_cbranch_vccz {name}_ok")
            if sleep: a(f"s_sleep {sleep}")
        else:
            M = [f"s[{4+2*i}:{5+2*i}]" for i in range(n)]
            for m in M: a(f"s_mov_b64 {m}, -1")
            a.label(name)
            for m, l in zip(M, loads):
                if n > 1: a(f"s_mov_b64 exec, {m}")
                a(l)
            for i, (m, qd) in enumerate(zip(M, quads)):
                if n > 1: a(f"s_mov_b64 exec, {m}")
                if i == 0: a("s_waitcnt vmcnt(0)")
                a(f"v_bitop3_b32 v{T[1]}, v{qd}, v{qd+1}, {TAG} bitop3:0x7e")
                a(f"v_bitop3_b32 v{T[2]}, v{qd+2}, v{qd+3}, {TAG} bitop3:0x7e")
                a(f"v_bitop3_b32 v{T[1]}, v{T[1]}, v{T[2]}, {TLOW} bitop3:0xa8")
                a(f"v_cmp_ne_u32 {m}, 0, v{T[1]}")
            if n == 1:
                a(f"s_and_b64 exec, {M[0]}, {M[0]}")
            else:
                a(f"s_or_b64 vcc, {M[0]}, {M[1]}")
                if n == 3: a(f"s_or_b64 vcc, vcc, {M[2]}")
            a(f"s_cbranch_scc0 {name}_ok")
            if sleep: a(f"s_sleep {sleep}")
        a(f"s_sub_u32 {CNT}, {CNT}, 1"); a(f"s_cmp_lg_u32 {CNT}, 0"); a(f"s_cbranch_scc1 {name}")
        a.label(name + "_ok")
        if mpoll: a("s_mov_b64 exec, -1")
        a.mark("nopad", 0)
        if diag and "polls" in names and name in ("L_p1", "L_p2", "L_p3"):
            i = names.index("polls"); a(f"s_sub_u32 s{80+2*i}, 0x40001, {CNT}")
    def ppoll(name, load, canon, bufs, sleep=0, space=0, first=None):
        if diag and "wts" in names and name == "L_p1": a("s_waitcnt vmcnt(0)"); stamp("wts")
        n = len(canon); depth = len(bufs)
        P = [f"s[{4+2*i}:{5+2*i}]" for i in range(n)]
        a.mark("force")
        a(f"s_mov_b32 {CNT}, 0x40000")
        a.mark("nopad", 1)
        for m in P: a(f"s_mov_b64 {m}, -1")
        for k in range(depth - 1):
            for i in range(n): a(load(i, bufs[k][i]))
            if space: a(f"s_sleep {space}")
        if first:
            assert depth == 1
            for i in range(n): a(load(i, bufs[0][i]))
            a.mark("nopad", 0); first(n); a.mark("nopad", 1)
            a(f"s_branch {name}_chk")
            a.label(name + "_re")
        a.label(name)
        for k in range(depth):
            for i in range(n):
                a(f"s_or_b64 exec, {P[i]}, 1"); a(load(i, bufs[(k + depth - 1) % depth][i]))
            if space: a(f"s_sleep {space}")
            if first: a.label(name + "_chk")
            for i in range(n):
                qd = bufs[k][i]
                a(f"s_mov_b64 exec, {P[i]}")
                if i == 0: a(f"s_waitcnt vmcnt({n * (depth - 1)})")
                if n > 1 and skipz: a(f"s_cbranch_execz {name}_z{k}{i}")
                a(f"v_bitop3_b32 v{T[1]}, v{qd}, v{qd+1}, {TAG} bitop3:0x7e")
                a(f"v_bitop3_b32 v{T[2]}, v{qd+2}, v{qd+3}, {TAG} bitop3:0x7e")
                a(f"v_bitop3_b32 v{T[1]}, v{T[1]}, v{T[2]}, {TLOW} bitop3:0xa8")
                for r in range(4): a(f"v_and_b32 v{canon[i]+r}, {TMASK}, v{qd+r}")
                a(f"v_cmp_ne_u32 {P[i]}, 0, v{T[1]}")
                if n > 1 and skipz: a.label(f"{name}_z{k}{i}")
            if diag and "h1" in names and name == "L_p2":
                h = [f"s{80+2*names.index(x)}" for x in ("h1", "h2", "h3", "m")]
                a(f"s_mov_b32 {h[2]}, {h[1]}"); a(f"s_mov_b32 {h[1]}, {h[0]}")
                a(f"s_memrealtime s[{h[0][1:]}:{int(h[0][1:])+1}]"); a("s_waitcnt lgkmcnt(0)")
                a(f"s_bcnt1_i32_b64 s3, {P[0]}"); a(f"s_bcnt1_i32_b64 s62, {P[1]}"); a("s_add_u32 s3, s3, s62"); a("s_lshr_b32 s3, s3, 4")
                a(f"s_lshl_b32 {h[3]}, {h[3]}, 4"); a(f"s_or_b32 {h[3]}, {h[3]}, s3"); a(f"s_and_b32 {h[3]}, {h[3]}, 0xffff")
            if n == 1: a(f"s_cmp_lg_u64 {P[0]}, 0")
            else:
                a(f"s_or_b64 vcc, {P[0]}, {P[1]}")
                if n == 3: a(f"s_or_b64 vcc, vcc, {P[2]}")
            a(f"s_cbranch_scc0 {name}_ok")
            if sleep: a(f"s_sleep {sleep}")
        a(f"s_sub_u32 {CNT}, {CNT}, 1"); a(f"s_cmp_lg_u32 {CNT}, 0"); a(f"s_cbranch_scc1 {name}")
        a.label(name + "_ok")
        a("s_mov_b64 exec, -1")
        a.mark("nopad", 0)
        if diag and "polls" in names and name in ("L_p1", "L_p2", "L_p3"):
            i = names.index("polls"); a(f"s_sub_u32 s{80+2*i}, 0x40001, {CNT}")
    def spoll(name, addr, regs, lanes, space):
        depth = len(regs)
        a.mark("force")
        a(f"s_mov_b32 {CNT}, 0x2000")
        a.mark("nopad", 1)
        a(f"s_mov_b64 exec, {hex(lanes)}"); a(f"s_mov_b64 s[4:5], {hex(lanes)}")
        ld = lambda r: f"buffer_load_dword v{r}, {addr}, {sWS}, 0 offen sc1"
        for k in range(depth - 1):
            a(ld(regs[k])); a(f"s_sleep {space}")
        a.label(name)
        for k in range(depth):
            a("s_or_b64 exec, s[4:5], 1"); a(ld(regs[(k + depth - 1) % depth]))
            a("s_mov_b64 exec, s[4:5]")
            a(f"s_sleep {space}")
            a(f"s_waitcnt vmcnt({depth - 1})")
            a(f"v_bitop3_b32 v{T[1]}, v{regs[k]}, {VTAG}, {TLOW} bitop3:0x28")
            a(f"v_cmp_ne_u32 s[4:5], 0, v{T[1]}")
            a("s_cmp_lg_u64 s[4:5], 0"); a(f"s_cbranch_scc0 {name}_ok")
        a(f"s_sub_u32 {CNT}, {CNT}, 1"); a(f"s_cmp_lg_u32 {CNT}, 0"); a(f"s_cbranch_scc1 {name}")
        a.label(name + "_ok")
        a("s_mov_b64 exec, -1")
        a.mark("nopad", 0)
    def mfma_chain(n, src_of, A_of, pre=None):
        src_of(0)
        for t in range(n):
            selector(B[t & 1], src_of.reg(t))
            if t + 1 < n: src_of(t + 1)
            if pre: pre(t)
            mfma(A_of(t), B[t & 1], first=(t == 0))

    a.label(KNAME)
    a("s_cmp_ge_u32 s2, 256"); a("s_cbranch_scc1 L_exit")
    if diag:
        for i in range(8): a(f"s_mov_b32 s{80+2*i}, 0")
    stamp("start")
    if amp: a("s_memrealtime s[92:93]")
    a("s_load_dwordx16 s[4:19], s[0:1], 0"); a("s_load_dwordx8 s[20:27], s[0:1], 64")
    a("v_lshrrev_b32 v1, 6, v0"); a("v_and_b32 v0, 63, v0")
    a(f"v_readfirstlane_b32 {WAVE}, v1")
    a(f"s_and_b32 {HEAD}, s2, 7"); a(f"s_lshl_b32 {HEAD}, {HEAD}, 2"); a("s_bfe_u32 s3, s2, 0x20003"); a(f"s_add_u32 {HEAD}, {HEAD}, s3")
    a(f"s_lshr_b32 {SPLIT}, s2, 5")
    a(f"v_lshlrev_b32 v{T[0]}, 4, {LANE}")
    a("s_movk_i32 s46, 1152"); a("s_mov_b32 s47, 0x20000")
    a(f"s_sub_u32 {WAVE}, {WAVE}, 1"); a("s_cbranch_scc1 L_helper")
    a(f"s_lshl_b32 s60, {HEAD}, 21"); a(f"s_lshl_b32 s61, {SPLIT}, 18"); a("s_add_u32 s62, s60, s61")
    a("s_mov_b32 s34, 0x40000"); a("s_mov_b32 s35, 0x20000"); a("s_mov_b32 s38, 0x40000"); a("s_mov_b32 s39, 0x20000")
    if kvg:
        a(f"s_lshl_b32 s3, {WAVE}, 8"); a(f"v_and_b32 {VKV}, 0xf0, v{T[0]}"); a(f"v_lshrrev_b32 v{T[1]}, 4, {LANE}")
        a(f"v_lshl_add_u32 {VKV}, v{T[1]}, {8 + kvg}, {VKV}"); a(f"v_add_u32 {VKV}, s3, {VKV}")
    else:
        a(f"s_lshl_b32 s3, {WAVE}, 10"); a(f"v_add_u32 {VKV}, s3, v{T[0]}")
    a("s_mov_b32 s60, 0")
    if evt:
        a("s_getreg_b32 s72, hwreg(HW_REG_XCC_ID, 0, 3)"); a("s_lshl_b32 s72, s72, 2")
        a(f"s_lshr_b32 s72, {hex(sum((t // 2) << (4 * i) for i, t in enumerate(evt)))}, s72"); a("s_and_b32 s72, s72, 15"); a("s_lshl_b32 s72, s72, 1")
    if evp:
        a("s_getreg_b32 s72, hwreg(HW_REG_XCC_ID, 0, 3)"); a(f"s_lshr_b32 s72, {0xff & ~evmask}, s72"); a("s_and_b32 s72, s72, 1")
        a("s_mov_b32 s73, 0")
    if par: a("s_getreg_b32 s72, hwreg(HW_REG_XCC_ID, 0, 1)"); a("s_mov_b32 vcc_lo, s72"); a("s_mov_b32 vcc_hi, 0")
    a("s_waitcnt lgkmcnt(0)")
    stamp("karg")
    a("s_add_u32 s32, s6, s62"); a("s_addc_u32 s33, s7, 0")

    def late_setup():
        a(f"s_load_dword {EP1}, s[26:27], {EPOCH}")
        a("s_mov_b32 s44, s4"); a("s_mov_b32 s45, s5"); a("s_mov_b32 s43, 0x20000")
        a("s_mov_b32 s48, s26"); a("s_mov_b32 s49, s27"); a("s_mov_b32 s50, 0x400000"); a("s_mov_b32 s51, 0x20000")
        a("s_mov_b32 s56, s22"); a("s_mov_b32 s57, s23"); a("s_movk_i32 s58, 1152"); a("s_mov_b32 s59, 0x20000")
        a(f"s_mov_b32 {SCALE}, {f32(128 ** -0.5)}"); a(f"s_mov_b32 {LOG2E}, {f32(1.4426950408889634)}")
        a(f"s_mov_b32 {HI}, 0xffff0000"); a(f"s_mov_b32 {TMASK}, 0xfffff000"); a(f"s_movk_i32 {TLOW}, 0xfff")
        a(f"v_and_b32 v{T[4]}, 1, {LANE}"); a(f"v_lshlrev_b32 v{T[4]}, 4, v{T[4]}")
        a(f"v_mov_b32 v{T[5]}, 0xffff"); a(f"v_lshlrev_b32 v{T[5]}, v{T[4]}, v{T[5]}")
        a(f"v_bfe_u32 v{T[4]}, {LANE}, 1, 2")
        for j in range(4):
            a(f"v_cmp_eq_u32 vcc, {j}, v{T[4]}"); a(f"v_cndmask_b32 v{MASK[j]}, 0, v{T[5]}, vcc")
        if dyn: a("s_mov_b32 s96, s24"); a("s_mov_b32 s97, s25"); a("s_movk_i32 s98, 256"); a("s_mov_b32 s99, 0x20000")
        if not dyn:
            a("s_lshr_b32 s24, s2, 3")
            if rperm:
                c1 = rperm - 1
                a("s_lshr_b32 s3, s2, 5"); a("s_and_b32 s78, s24, 3")
                a(f"s_cmp_gt_u32 s78, {c1}"); a("s_cselect_b32 s62, 1, 0"); a("s_sub_u32 s62, s78, s62")
                a("s_lshl_b32 s62, s62, 3"); a("s_add_u32 s62, s62, s3"); a("s_add_u32 s62, s62, 3")
                a("s_add_u32 s24, s3, 24"); a("s_cmp_lt_u32 s3, 3"); a("s_cselect_b32 s24, s3, s24")
                a(f"s_cmp_eq_u32 s78, {c1}"); a("s_cselect_b32 s24, s24, s62")
            a("s_and_b32 s3, s2, 7"); a("s_mul_i32 s78, s3, 18"); a("s_add_u32 s78, s78, s24")
            a("s_lshl_b32 s62, s24, 3"); a("s_add_u32 s62, s62, s3")
            a("s_cmp_lt_u32 s24, 18"); a(f"s_cselect_b32 {RID}, s78, s62")
            role_setup()
    def role_setup():
        u = role_setup.n = getattr(role_setup, "n", 0) + 1
        a("s_mov_b32 s55, 0x20000")
        a(f"s_cmp_lt_u32 {RID}, 144"); a(f"s_cbranch_scc0 L_r1_{u}")
        a(f"s_mov_b32 {ROLE}, {RID}")
        a(f"s_mul_i32 s3, {ROLE}, {32*1152}"); a("s_add_u32 s52, s20, s3"); a("s_addc_u32 s53, s21, 0")
        a(f"s_mov_b32 s54, 0"); a("s_mov_b32 s63, 0x40000000")
        a(f"s_lshl_b32 s3, {WAVE}, 7")
        a(f"s_branch L_r2_{u}")
        a.label(f"L_r1_{u}")
        a(f"s_sub_u32 {ROLE}, {RID}, 144"); a(f"s_lshr_b32 {ROLE}, {ROLE}, 3")
        a(f"s_and_b32 s3, {RID}, 7"); a(f"s_mul_i32 s3, s3, {512*1152}"); a(f"s_lshl_b32 s62, {ROLE}, 7")
        a(f"s_sub_u32 s54, {512*1152}, s62"); a("s_add_u32 s3, s3, s62")
        a(f"s_cmp_lt_u32 {RID}, 216"); a("s_cselect_b32 s54, s54, 0"); a("s_cselect_b32 s3, s3, 0")
        a("s_add_u32 s52, s12, s3"); a("s_addc_u32 s53, s13, 0")
        a(f"s_mov_b32 s63, {32*1152}"); a(f"s_mul_i32 s3, {WAVE}, {64*1152}")
        a.label(f"L_r2_{u}")
        a("s_movk_i32 s76, 4608"); a("s_add_u32 s77, s63, s76")
        a(f"v_lshrrev_b32 v{T[4]}, 4, {LANE}"); a(f"v_bfe_u32 v{T[5]}, {LANE}, 3, 1"); a(f"v_lshl_add_u32 v{T[4]}, v{T[4]}, 3, v{T[5]}")
        a(f"v_mul_u32_u24 v{T[4]}, 1152, v{T[4]}")
        a(f"v_and_b32 v{T[5]}, 7, {LANE}"); a(f"v_lshl_add_u32 v{T[4]}, v{T[5]}, 4, v{T[4]}")
        a(f"v_add_u32 {VG}, s3, v{T[4]}")
    def touch_setup():
        a("s_mov_b32 s3, s24"); a("s_sub_u32 s62, s3, 9"); a("s_cmp_lt_u32 s3, 18"); a("s_cselect_b32 s62, s3, s62")
        a("s_mul_i32 s62, s62, 26"); a("s_sub_u32 s42, 576, s62"); a("s_min_u32 s42, s42, 26")
        a("s_mul_i32 s42, s42, 9216"); a(f"s_sub_u32 s42, s42, {9216-1152}")
        a("s_sub_u32 s3, s3, 18"); a("s_cmp_lt_u32 s3, 9"); a("s_cselect_b32 s42, 0, s42"); a("s_cselect_b32 s62, 0, s62")
        a("s_mul_i32 s62, s62, 9216"); a("s_and_b32 s3, s2, 7"); a("s_mul_i32 s3, s3, 1152"); a("s_add_u32 s62, s62, s3")
        a(f"s_bitcmp1_b32 {WAVE}, 0"); a("s_cselect_b32 s40, s18, s16"); a("s_cselect_b32 s41, s19, s17")
        a("s_add_u32 s40, s40, s62"); a("s_addc_u32 s41, s41, 0")
        if gate: a("s_mov_b32 s15, s42"); a("s_mov_b32 s14, 0")
        if tu > 1:
            a("s_mov_b32 s14, s42")
            if tu == 2: a(f"s_bitcmp1_b32 {WAVE}, 0")
            else: a(f"s_cmp_ge_u32 {WAVE}, {tu - 1}")
            a("s_cselect_b32 s42, 0, s42"); a("s_cselect_b32 s14, s14, 0")
    def touch_lane(dst):
        a(f"s_lshr_b32 s3, {WAVE}, 1"); a("s_lshl_b32 s3, s3, 6"); a(f"v_add_u32 v{T[1]}, s3, {LANE}")
        a(f"s_mov_b32 s3, {-(-(1 << 32) // 9)}"); a(f"v_mul_hi_u32 v{T[2]}, v{T[1]}, s3")
        a(f"v_mul_u32_u24 v{T[3]}, 9, v{T[2]}"); a(f"v_sub_u32 v{T[1]}, v{T[1]}, v{T[3]}")
        a(f"v_mul_u32_u24 v{T[2]}, 9216, v{T[2]}"); a(f"v_lshl_add_u32 {dst}, v{T[1]}, 7, v{T[2]}")
    def gload(i, r):
        so = ("0", "s76", "s63", "s77")[i >> 1]
        a(f"buffer_load_dwordx4 {v4(r)}, {VG}, {sG}, {so} offen offset:{(i & 1) * 2304} {wpol if gpol is None else gpol}")
    def bcast_src(src):
        def f(t):
            d = f.reg(t)
            a(f"v_mov_b32_dpp {d}, {src} row_newbcast:{2*t} row_mask:0xf bank_mask:0x3")
            a(f"v_mov_b32_dpp {d}, {src} row_newbcast:{2*t+1} row_mask:0xf bank_mask:0xc")
        f.reg = lambda t: f"v{T[6 + (t & 1)]}"
        return f
    def part_addr(dst, two):
        a(f"s_lshl_b32 s3, {WAVE}, 9"); a(f"s_add_u32 s3, s3, {L_P}")
        a(f"v_lshrrev_b32 {dst}, 4, {LANE}"); a(f"v_lshlrev_b32 {dst}, 7, {dst}")
        a(f"v_and_b32 v{T[7]}, 7, {LANE}"); a(f"v_lshl_add_u32 {dst}, v{T[7]}, 4, {dst}"); a(f"v_add_u32 {dst}, s3, {dst}")
    def add4(d, x):
        if pk:
            for r in (0, 2): a(f"v_pk_add_f32 v[{d+r}:{d+r+1}], v[{d+r}:{d+r+1}], v[{x+r}:{x+r+1}]")
        else:
            for r in range(4): a(f"v_add_f32 v{d+r}, v{d+r}, v{x+r}")
    def sum_parts(addr, dst, tmp, n, stride):
        regs = [dst] + tmp[:n-1]
        for i in range(n): a(f"ds_read_b128 {v4(regs[i])}, {addr} offset:{L_P + i * stride}")
        for i in range(1, n):
            a(f"s_waitcnt lgkmcnt({n-1-i})")
            add4(dst, regs[i])
    def tag_setup():
        a(f"s_add_u32 {EP1}, {EP1}, 1"); a(f"s_and_b32 {TAG}, {EP1}, 0xfff"); a(f"v_mov_b32 {VTAG}, {TAG}")

    order = []; free = list(range(NSLOT)); slot_of = {}
    def alloc(item):
        s = free.pop(0); slot_of[item] = SLOT0 + 4 * s; return slot_of[item]
    def release(item): free.append((slot_of[item] - SLOT0) // 4)
    def issue(item):
        k, i = item
        if k == "k" or k == "v":
            r = alloc(item)
            if item == ("v", 0): a("s_mov_b32 s60, 0")
            a(f"buffer_load_dwordx4 {v4(r)}, {VKV}, {sK if k == 'k' else sV}, s60 offen {pol}")
            if kvg:
                sp = lambda n: (((n >> kvg) << (kvg + 2)) | (n & ((1 << kvg) - 1))) * 256
                d = sp(8 * (i + 1)) - sp(8 * i)
                a(f"s_addk_i32 s60, {d}" if d < 32768 else f"s_add_u32 s60, s60, {d}")
            else: a("s_addk_i32 s60, 0x2000")
        elif k == "t":
            if gate:
                a("s_waitcnt lgkmcnt(0)"); a(f"v_readfirstlane_b32 s3, v{Q}")
                a("s_cmp_eq_u32 s3, 0"); a("s_cselect_b32 s14, s15, s14"); a("s_cselect_b32 s42, 0, s42")
            a(f"buffer_load_dword v{S+12}, v{S}, s[40:43], 0 offen"); assert st["pv"] >= 25 or tpos
        elif k == "g":
            r = alloc(item)
            gload(i, r)
        order.append(item)
    known = [-1]
    def wait_idx(idx):
        if idx > known[0]:
            a(f"s_waitcnt vmcnt({len(order) - 1 - idx})"); known[0] = idx
    def wait_item(item): wait_idx(order.index(item))
    def landed(item): return item in order and order.index(item) <= known[0]

    PLAIN, TWO = 0x00FF00FF00FF00FF, 0xFF00FF0000FF00FF
    VP = VW
    def task_qfin():
        a("s_barrier")
        a(f"ds_read_b128 {v4(Q)}, v{T[0]} offset:{L_Q}")
        a("s_waitcnt lgkmcnt(0)")
        tag_setup()
        stamp("q")
    def task_kq(q):
        wait_item(("k", 4*q+3))
        for x in range(4):
            r = slot_of[("k", 4*q+x)]
            for i in range(4):
                a(f"v_dot2_f32_bf16 v{T[x]}, v{r+i}, v{Q+i}, {'0' if i == 0 else 'v%d' % T[x]}")
            release(("k", 4*q+x))
        allred16([f"v{T[x]}" for x in range(4)])
        a(f"v_cvt_pk_bf16_f32 v{T[4]}, v{T[0]}, v{T[1]}"); a(f"v_cvt_pk_bf16_f32 v{T[5]}, v{T[2]}, v{T[3]}")
        a(f"v_lshlrev_b32 v{T[0]}, 16, v{T[4]}"); a(f"v_and_b32 v{T[1]}, {HI}, v{T[4]}")
        a(f"v_lshlrev_b32 v{T[2]}, 16, v{T[5]}"); a(f"v_and_b32 v{T[3]}, {HI}, v{T[5]}")
        for x in range(4): a(f"v_mul_f32 v{T[x]}, {SCALE}, v{T[x]}")
        a(f"v_cvt_pk_bf16_f32 v{S+2*q}, v{T[0]}, v{T[1]}"); a(f"v_cvt_pk_bf16_f32 v{S+2*q+1}, v{T[2]}, v{T[3]}")
        a(f"v_max3_f32 {VM}, {VM}, v{T[0]}, v{T[1]}"); a(f"v_max3_f32 {VM}, {VM}, v{T[2]}, v{T[3]}")
    PA, PB = f"v{T[5]}", f"v{T[6]}"
    def prep_pv(j):
        if j % 2 == 0:
            a(f"v_lshlrev_b32 {PA}, 16, v{S+j//2}"); a(f"v_and_b32 {PB}, {HI}, v{S+j//2}")
            a(f"v_fma_f32 {PA}, {PA}, {LOG2E}, -{VF}"); a(f"v_fma_f32 {PB}, {PB}, {LOG2E}, -{VF}")
            a(f"v_exp_f32 {PA}, {PA}"); a(f"v_exp_f32 {PB}, {PB}")
        p = PA if j % 2 == 0 else PB
        a(f"v_cvt_pk_bf16_f32 v{T[0]}, {p}, {p}"); a(f"v_add_f32 {VL}, {VL}, {p}")
        selector(B[j & 1], f"v{T[0]}")
    def task_smax():
        allred_rows(VM, f"v{T[0]}", "v_max_f32"); rbf(VM, VM)
        a(f"s_lshl_b32 s3, {WAVE}, 2"); a(f"v_mov_b32 v{T[0]}, s3")
        a(f"ds_write_b32 v{T[0]}, {VM} offset:{L_MW}")
        a(f"v_mul_f32 {VF}, {LOG2E}, {VM}")
        stamp("kend")
        if yp == 2: a("s_setprio 0")
        prep_pv(0)
    def wgmax(dst):
        a(f"v_mov_b32 v{T[0]}, 0")
        a(f"ds_read_b128 {v4(Q)}, v{T[0]} offset:{L_MW}"); a(f"ds_read_b128 v[{T[1]+1}:{T[1]+4}], v{T[0]} offset:{L_MW+16}")
        a("s_waitcnt lgkmcnt(0)")
        a(f"v_max3_f32 {dst}, v{Q}, v{Q+1}, v{Q+2}"); a(f"v_max3_f32 {dst}, {dst}, v{Q+3}, v{T[1]+1}")
        a(f"v_max3_f32 {dst}, {dst}, v{T[1]+2}, v{T[1]+3}"); a(f"v_max_f32 {dst}, {dst}, v{T[1]+4}")
    def task_pv(j):
        wait_item(("v", j))
        mfma(slot_of[("v", j)], B[j & 1], first=(j == 0)); release(("v", j))
        if j == jB2:
            assert j % 2 == 1
            a("s_waitcnt lgkmcnt(0)"); a("s_barrier")
            wgmax(f"v{T[1]}")
            a(f"v_sub_f32 {VM}, {VM}, v{T[1]}"); a(f"v_mul_f32 {VM}, {LOG2E}, {VM}"); a(f"v_exp_f32 {VM}, {VM}")
            a(f"v_mul_f32 {VF}, {LOG2E}, v{T[1]}")
            if tu: touch_lane(f"v{S}")
            a(f"v_mul_f32 {VL}, {VL}, {VM}")
            for r in range(4): a(f"v_mul_f32 v{D+r}, v{D+r}, {VM}")
        if j == 30:
            prep_pv(31)
            allred_rows(VL, f"v{T[0]}")
            a(f"s_lshl_b32 s3, {WAVE}, 2"); a(f"v_mov_b32 v{T[0]}, s3"); a(f"ds_write_b32 v{T[0]}, {VL} offset:{L_LW}")
            return
        if j < 31: prep_pv(j + 1)

    seq = [("k", i) for i in range(32)] + [("v", i) for i in range(32)] + [("g", i) for i in range(EW)]
    if gs:
        seq = [it for it in seq if it[0] != "g"]
        for i in range(EW):
            seq.insert(seq.index(("v", 31 - ge - (EW - 1 - i) * gs)) + 1, ("g", i))
    if tu: seq.insert(seq.index(("v", 31)) + 1 - tpos, ("t", 0))
    def xbar(tag):
        if xb > 1: a(f"s_sub_u32 s3, {RID}, 144"); a("s_cmp_lt_u32 s3, 72"); a(f"s_cbranch_scc{1 if xb == 2 else 0} L_xb{tag}")
        a("s_barrier")
        if xb > 1: a.label(f"L_xb{tag}")
    st = dict(q=False, kq=0, sm=False, pv=0)
    def run_ready(force=False):
        did = False; n = 0
        if not st["q"]: return False
        if st["kq"] < 8:
            it = ("k", 4 * st["kq"] + 3)
            if landed(it) or (force and it in order): task_kq(st["kq"]); st["kq"] += 1; did = True
            if st["kq"] == 8: task_smax(); st["sm"] = True
            return did
        while st["pv"] < 32 and n < 2 and (landed(("v", st["pv"])) or (force and not did and ("v", st["pv"]) in order)):
            task_pv(st["pv"]); st["pv"] += 1; n += 1; did = True
        return did
    for n, item in enumerate(seq):
        if n == (min(par) if par else (W0 or Wn)):
            a("s_add_u32 s36, s8, s62"); a("s_addc_u32 s37, s9, 0")
            late_setup()
            if yp: a(f"s_cmp_lt_u32 {WAVE}, 4"); a("s_cbranch_scc1 L_yp"); a("s_setprio 1"); a.label("L_yp")
            if tu: touch_setup()
            if evp: assert ev0 > n; a("s_mov_b64 vcc, s[72:73]")
            elif par: a("s_mov_b32 vcc_lo, s72"); a("s_mov_b32 vcc_hi, 0")
            part_addr(VP, False)
            a(f"v_and_b32 v{T[0]}, 0xf0, v{T[0]}")
            a(f"v_mov_b32 {VM}, 0xff800000"); a(f"v_mov_b32 {VL}, 0")
        W = Wv if item[0] in "vgt" else Wn
        if n < n0: W = W0
        if Walt and n >= 8: W = Walt[n % len(Walt)]
        if item[0] in "kv":
            prev = [i for i, it in enumerate(order) if it[0] in "kv"]
            if adapt and item[0] == "v":
                if item[1] == jA - 1:
                    a(f"v_mov_b32 v{Q}, 0"); a(f"ds_read_b32 v{Q}, v{Q} offset:{L_ROLE+8}")
                if item[1] == jA:
                    a("s_waitcnt lgkmcnt(0)"); a(f"v_readfirstlane_b32 s72, v{Q}"); st["mode"] = True
                    if diag and "rank" in names: a(f"s_add_u32 s{80+2*names.index('rank')}, s72, 1")
                W = Wv if st.get("mode") else Wn
            if thr and n == nA - 1:
                a(f"v_mov_b32 v{T[7]}, 0"); a(f"ds_read_b32 v{T[7]}, v{T[7]} offset:{L_ROLE+8}")
                a("s_waitcnt lgkmcnt(0)"); a(f"v_readfirstlane_b32 s72, v{T[7]}")
                if diag and "rank" in names: a(f"s_add_u32 s{80+2*names.index('rank')}, s72, 1")
            if len(prev) >= W: wait_idx(prev[-W])
            if evt and ev0 <= n < max(evt):
                a(f"s_cmp_le_u32 s72, {n}"); a(f"s_cbranch_scc1 L_ev{n}"); a(f"s_waitcnt vmcnt({len(order) - 1 - prev[-evw]})"); a.label(f"L_ev{n}")
            if evp and ev0 <= n < evh:
                a(f"s_cbranch_vccnz L_ev{n}"); a(f"s_waitcnt vmcnt({len(order) - 1 - prev[-2]})"); a.label(f"L_ev{n}")
            elif evp and ev0 <= n < ev1 and evp[n % len(evp)] < W:
                a(f"s_cbranch_vccnz L_ev{n}"); a(f"s_waitcnt vmcnt({len(order) - 1 - prev[-evp[n % len(evp)]]})"); a.label(f"L_ev{n}")
            if thr and nA <= n < nE:
                u = f"L_th{n}"; used = False; cur = W
                for ci, (below, pat) in reversed(list(enumerate(thr))):
                    w_ = pat[n % len(pat)]
                    if ci == 1 and nE2 and n >= nE2: continue
                    if w_ >= cur: continue
                    a(f"s_cmp_ge_u32 s72, {below}"); a(f"s_cbranch_scc1 {u}")
                    a(f"s_waitcnt vmcnt({len(order) - 1 - prev[-w_]})"); used = True; cur = w_
                if used: a.label(u)
            if n == W: stamp("k0")
            if n == W + 4: stamp("k4")
            if par and len(prev) >= min(par):
                u = f"L_pw{n}"
                a(f"s_cbranch_{'vccnz' if par[1] > par[0] else 'vccz'} {u}")
                a(f"s_waitcnt vmcnt({len(order) - 1 - prev[-min(par)]})")
                a.label(u)
            if adapt and st.get("mode") and item[0] == "v":
                u = f"L_aw{item[1]}"
                a(f"s_cmp_ge_u32 s72, {adapt[4]}"); a(f"s_cbranch_scc1 {u}")
                a(f"s_waitcnt vmcnt({len(order) - 1 - prev[-adapt[1]]})")
                if adapt[0] != adapt[1]:
                    a(f"s_cmp_ge_u32 s72, {adapt[3]}"); a(f"s_cbranch_scc1 {u}")
                    a(f"s_waitcnt vmcnt({len(order) - 1 - prev[-adapt[0]]})")
                a.label(u)
        while not free: assert run_ready(force=True)
        if xb and n and seq[n - 1] == ("v", 31): xbar("s")
        if gate and item == ("v", 31): a(f"v_mov_b32 v{Q}, 0"); a(f"ds_read_b32 v{Q}, v{Q} offset:{L_ROLE+8}")
        issue(item)
        if n == nK - 1: task_qfin(); st["q"] = True
        run_ready()
    while st["pv"] < 31: assert run_ready(force=True)
    setexec(PLAIN) if st["pv"] == 32 else None
    if st["pv"] == 31:
        task_pv(31); st["pv"] = 32; setexec(PLAIN)
    stamp("vend")
    if yp == 1: a("s_setprio 0")
    a(f"ds_write_b128 {VP}, {v4(D)}")
    a("s_mov_b64 exec, -1")
    a("s_waitcnt lgkmcnt(0)"); stamp("oadd"); a("s_barrier")
    if dyn:
        a(f"v_mov_b32 v{T[0]}, 0"); a(f"ds_read_b32 v{T[0]}, v{T[0]} offset:{L_ROLE}")
        a("s_waitcnt lgkmcnt(0)"); a(f"v_readfirstlane_b32 {RID}, v{T[0]}")
        role_setup()
    if fast1:
        a(f"v_mov_b32 v{T[0]}, 0"); a(f"ds_read_b32 v{T[0]}, v{T[0]} offset:{L_ROLE+4}")
        a("s_waitcnt lgkmcnt(0)"); a(f"v_readfirstlane_b32 s61, v{T[0]}")
    else: a("s_mov_b32 s61, 0")
    def b4(tag):
        if tag: a(f"s_cmp_eq_u32 {WAVE}, 8"); a(f"s_cbranch_scc1 L_b4{tag}")
        a("s_barrier")
        if tu > 1 or gate: a("s_mov_b32 s42, s14"); a(f"buffer_load_dword v{S+11}, v{S}, s[40:43], 0 offen")
        if tag: a.label(f"L_b4{tag}")
    if not pre: b4("")
    for i in range(EW, 8): alloc(("g", i))
    G = [slot_of[("g", i)] for i in range(8)]
    F = [SLOT0 + 4 * s for s in free]
    assert len(F) >= 20
    a("s_branch L_tail")

    a.label("L_helper")
    a("s_setprio 3")
    a(f"s_mov_b32 {WAVE}, 8")
    a(f"s_lshl_b32 s63, {HEAD}, 8"); a(f"s_sub_u32 s42, {576*8192}, s63"); a("s_mov_b32 s43, 0x20000")
    a(f"v_lshrrev_b32 v{T[1]}, 4, {LANE}"); a(f"v_mul_u32_u24 v{T[2]}, 18, v{T[1]}")
    a(f"s_mul_i32 s3, {SPLIT}, 72"); a(f"v_add_u32 v{T[2]}, s3, v{T[2]}")
    a(f"v_and_b32 v{T[3]}, 0xf0, v{T[0]}"); a(f"v_lshl_add_u32 {VW}, v{T[2]}, 13, v{T[3]}")
    a(f"v_lshlrev_b32 v{T[2]}, 1, v{T[2]}")
    a("s_mov_b32 s61, 0")
    a("s_waitcnt lgkmcnt(0)")
    a("s_mov_b32 s44, s4"); a("s_mov_b32 s45, s5")
    a("s_add_u32 s40, s10, s63"); a("s_addc_u32 s41, s11, 0")
    x0, x1 = SLOT0, SLOT0 + 4
    WQ = [SLOT0 + 8 + 4 * i for i in range(18)]
    a(f"buffer_load_dwordx4 {v4(x0)}, v{T[0]}, {sX}, 0 offen"); a(f"buffer_load_dwordx4 {v4(x1)}, v{T[0]}, {sX}, 0 offen offset:1024")
    a(f"buffer_load_dwordx4 {v4(S)}, v{T[2]}, {sX}, 0 offen"); a(f"buffer_load_dwordx4 {v4(S+4)}, v{T[2]}, {sX}, 0 offen offset:16")
    a(f"buffer_load_dword v{S+8}, v{T[2]}, {sX}, 0 offen offset:32")
    for t in range(18):
        a(f"buffer_load_dwordx4 {v4(WQ[t])}, {VW}, {sWQ}, s61 offen {wqpol}"); a("s_addk_i32 s61, 0x2000")
    CPF = 1 if codepf > 1 else 0
    def codetouch():
        u = codetouch.n = getattr(codetouch, "n", 0) + 1
        a("s_getpc_b64 s[74:75]"); a.label(f"L_pc{u}")
        a(f"s_sub_u32 s74, s74, L_pc{u}-{KNAME}"); a("s_subb_u32 s75, s75, 0")
        a("s_lshr_b32 s3, s2, 3"); a("s_lshl_b32 s3, s3, 10")
        a(f"v_lshl_add_u32 v{T[5]}, {LANE}, 7, s3"); a(f"v_min_u32 v{T[5]}, L_end-{KNAME}-4, v{T[5]}")
        a("s_mov_b64 exec, 0xff"); a(f"global_load_dword v{T[5]}, v{T[5]}, s[74:75]"); a("s_mov_b64 exec, -1")
    late_setup()
    a("s_mov_b32 s35, 0x20000"); a("s_mov_b32 s39, 0x20000")
    a(f"v_mov_b32 v{B[0]}, 0"); a(f"v_lshlrev_b32 v{T[1]}, 2, {LANE}")
    a(f"ds_write_b32 v{T[1]}, v{B[0]} offset:{L_ST}")
    a(f"v_mov_b32 {VKV}, v{T[0]}")
    if CPF: codetouch()
    a(f"s_waitcnt vmcnt({18+CPF})")
    U = [B[0] + i for i in range(8)]
    for i in range(4):
        a(f"v_lshlrev_b32 v{U[2*i]}, 16, v{x0+i}"); a(f"v_and_b32 v{U[2*i+1]}, {HI}, v{x0+i}")
    U2 = [x0 + i for i in range(4)] + [Q + i for i in range(4)]
    for i in range(4): a(f"v_lshlrev_b32 v{U2[2*i]}, 16, v{x1+i}")
    for i in range(4): a(f"v_and_b32 v{U2[2*i+1]}, {HI}, v{x1+i}")
    sm = f"v{T[0]}"; t_ = f"v{T[1]}"; q2 = f"v{T[2]}"
    a(f"v_add_f32 {sm}, v{U[0]}, v{U[1]}")
    for r in U[2:] + U2: a(f"v_add_f32 {sm}, {sm}, v{r}")
    allred16([sm]); allred_rows(sm, t_)
    a(f"v_mul_f32 {sm}, {f32(1/576)}, {sm}")
    for r in U: a(f"v_sub_f32 v{r}, v{r}, {sm}")
    a(f"v_mul_f32 {q2}, v{U[0]}, v{U[0]}")
    for r in U[1:]: a(f"v_fmac_f32 {q2}, v{r}, v{r}")
    a("s_mov_b64 exec, 0xff")
    for r in U2: a(f"v_sub_f32 v{r}, v{r}, {sm}")
    for r in U2: a(f"v_fmac_f32 {q2}, v{r}, v{r}")
    a("s_mov_b64 exec, -1")
    allred16([q2]); allred_rows(q2, t_)
    a(f"v_mul_f32 {q2}, {f32(1/576)}, {q2}")
    rbf(sm, sm); rbf(q2, q2)
    a(f"v_add_f32 {q2}, {f32(1e-5)}, {q2}"); rbf(q2, q2)
    a(f"v_sqrt_f32 {q2}, {q2}"); rbf(q2, q2)
    a(f"v_rcp_f32 {q2}, {q2}")
    for i in range(9):
        lo, hi = f"v{T[3]}", f"v{T[4]}"
        a(f"v_lshlrev_b32 {lo}, 16, v{S+i}"); a(f"v_and_b32 {hi}, {HI}, v{S+i}")
        a(f"v_sub_f32 {lo}, {lo}, {sm}"); a(f"v_sub_f32 {hi}, {hi}, {sm}")
        a(f"v_cvt_pk_bf16_f32 v{S+i}, {lo}, {hi}")
        a(f"v_lshlrev_b32 {lo}, 16, v{S+i}"); a(f"v_and_b32 {hi}, {HI}, v{S+i}")
        a(f"v_mul_f32 {lo}, {lo}, {q2}"); a(f"v_mul_f32 {hi}, {hi}, {q2}")
        a(f"v_cvt_pk_bf16_f32 v{S+i}, {lo}, {hi}")
    a("s_mov_b32 s72, 0x01000100"); a("s_mov_b32 s73, 0x03020302")
    a("s_waitcnt lgkmcnt(0)")
    tag_setup()
    a(f"s_lshl_b32 s3, {HEAD}, 13"); a(f"s_add_u32 s3, s3, {Q0}"); a(f"v_add_u32 {VL}, s3, {VKV}")
    a(f"s_lshl_b32 s62, {SPLIT}, 10")
    a("s_mov_b32 s74, 0xff00ff00"); a("s_mov_b32 s75, 0xff00ff00")
    for t in range(18):
        b = B[t & 1]
        a(f"v_perm_b32 v{T[0]}, v{S+t//2}, v{S+t//2}, {'s73' if t & 1 else 's72'}")
        selector(b, f"v{T[0]}")
        a(f"s_waitcnt vmcnt({17-t+CPF})")
        mfma(WQ[t], b, first=(t == 0))
    a(f"v_mov_b32 v{B[0]+1}, {EP1}"); a(f"v_mov_b32 v{B[0]+3}, {EP1}")
    a(f"v_cndmask_b32 v{B[0]}, v{D}, v{D+2}, s[74:75]"); a(f"v_cndmask_b32 v{B[0]+2}, v{D+1}, v{D+3}, s[74:75]")
    if qfast:
        a(f"s_add_u32 s3, s62, {FAST}"); a(f"buffer_store_dwordx4 {v4(B[0])}, {VL}, {sWS}, s3 offen")
    a(f"buffer_store_dwordx4 {v4(B[0])}, {VL}, {sWS}, s62 offen sc1")
    stamp("qpub")
    if fast1:
        a("s_getreg_b32 s78, hwreg(HW_REG_XCC_ID, 0, 4)")
        a(f"s_lshl_b32 s3, {EP1}, 4"); a("s_or_b32 s3, s3, s78"); a(f"v_mov_b32 v{T[0]}, s3")
        a("s_and_b32 s3, s2, 7"); a("s_lshl_b32 s3, s3, 5"); a("s_lshr_b32 s62, s2, 3"); a("s_add_u32 s3, s3, s62")
        a("s_lshl_b32 s3, s3, 2"); a(f"s_add_u32 s3, s3, {XC}"); a(f"v_mov_b32 v{T[1]}, s3")
        a("s_mov_b64 exec, 1"); a(f"buffer_store_dword v{T[0]}, v{T[1]}, {sWS}, 0 offen sc1"); a("s_mov_b64 exec, -1")
        a(f"s_mov_b32 s61, {FAST}")
    a(f"v_lshrrev_b32 {VF}, 3, {LANE}"); a(f"v_lshlrev_b32 {VF}, 5, {VF}"); a(f"v_and_b32 v{T[1]}, 7, {LANE}"); a(f"v_lshl_add_u32 {VF}, v{T[1]}, 1, {VF}")
    a(f"s_mov_b32 s60, {FAST if qfast else 0}"); a("s_add_u32 s62, s60, 0x1000")
    if qsleep: a(f"s_sleep {qsleep}")
    a(f"s_mov_b32 {CNT}, 0x40000")
    a.label("L_pq")
    for i in range(8): a(f"buffer_load_dwordx4 {v4(WQ[i])}, {VL}, {sWS}, {'s60' if i < 4 else 's62'} offen offset:{(i & 3) * 1024} sc1")
    for i in range(8):
        a(f"s_waitcnt vmcnt({7-i})")
        a(f"v_bitop3_b32 v{T[1]}, v{WQ[i]+1}, v{WQ[i]+3}, {EP1} bitop3:0x7e")
        a(f"v_mov_b32 v{T[0]}, v{T[1]}" if i == 0 else f"v_or_b32 v{T[0]}, v{T[0]}, v{T[1]}")
    a(f"v_cmp_ne_u32 vcc, 0, v{T[0]}")
    a("s_cbranch_vccz L_pq_ok")
    if qsl2: a(f"s_sleep {qsl2}")
    if qfast: a(f"s_cmp_gt_u32 {CNT}, {0x40000 - qfast + 1}"); a("s_cselect_b32 s60, s60, 0"); a("s_add_u32 s62, s60, 0x1000")
    a(f"s_sub_u32 {CNT}, {CNT}, 1"); a(f"s_cmp_lg_u32 {CNT}, 0"); a("s_cbranch_scc1 L_pq")
    a.label("L_pq_ok")
    if diag and "polls" in names:
        i = names.index("polls"); a(f"s_sub_u32 s{80+2*i}, 0x40001, {CNT}")
    for i in range(1, 8):
        a(f"v_add_f32 v{WQ[0]}, v{WQ[0]}, v{WQ[i]}"); a(f"v_add_f32 v{WQ[0]+2}, v{WQ[0]+2}, v{WQ[i]+2}")
    a(f"v_cvt_pk_bf16_f32 v{WQ[0]}, v{WQ[0]}, v{WQ[0]+2}")
    a(f"ds_write_b16 {VF}, v{WQ[0]} offset:{L_Q}"); a(f"ds_write_b16_d16_hi {VF}, v{WQ[0]} offset:{L_Q + 16}")
    a("s_waitcnt lgkmcnt(0)")
    if thr:
        a(f"v_mov_b32 v{T[0]}, 7"); a(f"v_mov_b32 v{T[1]}, 0"); a(f"ds_write_b32 v{T[1]}, v{T[0]} offset:{L_ROLE+8}")
        a("s_waitcnt lgkmcnt(0)")
    if adapt:
        a(f"v_mov_b32 v{T[0]}, {adapt[3]}"); a(f"v_mov_b32 v{T[1]}, 0"); a(f"ds_write_b32 v{T[1]}, v{T[0]} offset:{L_ROLE+8}")
        a("s_waitcnt lgkmcnt(0)")
    stamp("qgot")
    a("s_barrier")
    def progress():
        a("s_lshr_b32 s3, s2, 3"); a("s_lshl_b32 s3, s3, 7"); a(f"s_add_u32 s72, s3, {KD}")
        a("s_and_b32 s73, s2, 7"); a("s_lshl_b32 s3, s73, 2")
        a(f"v_mov_b32 v{S+4}, {EP1}"); a(f"v_mov_b32 v{S+5}, s3"); a(f"v_lshlrev_b32 v{S+6}, 2, {LANE}")
        a("s_mov_b64 exec, 0xff"); a(f"buffer_load_dword v{S+7}, v{S+6}, {sWS}, s72 offen sc1")
        a("s_mov_b64 exec, 1"); a(f"buffer_store_dword v{S+4}, v{S+5}, {sWS}, s72 offen sc1")
        a("s_mov_b64 exec, 0xff"); a("s_waitcnt vmcnt(1)")
        a(f"v_cmp_eq_u32 vcc, {EP1}, v{S+7}"); a("s_mov_b64 exec, -1")
        if thr_par: a("s_and_b32 s3, s2, 1"); a("s_lshl_b32 s3, 0x55, s3"); a("s_and_b32 vcc_lo, vcc_lo, s3")
        a("s_bcnt1_i32_b32 s3, vcc_lo")
        a(f"v_mov_b32 v{S+4}, s3"); a(f"v_mov_b32 v{S+5}, 0"); a(f"ds_write_b32 v{S+5}, v{S+4} offset:{L_ROLE+8}")
    if thr and thr_at == "B1": progress()
    a(f"v_mov_b32 v{T[0]}, {VKV}")
    if codepf: codetouch()
    if pads:
        a("s_mov_b64 exec, 0"); a("s_cbranch_execz P_pub_0")
        a.label("L_warm1")
        a(f"s_cmp_lt_u32 {RID}, 144"); a("s_cbranch_scc1 P_ffn_0")
        a(f"s_cmp_lt_u32 {RID}, 216"); a("s_cbranch_scc1 P_wo_0")
        a("s_branch P_red_0")
        a.label("L_warm2")
        a("s_mov_b64 exec, -1")
    a(f"s_lshl_b32 s3, {HEAD}, 3"); a(f"s_add_u32 s3, s3, {SPLIT}")
    a(f"s_lshl_b32 s62, s3, 9"); a(f"s_add_u32 s62, s62, {O1}"); a(f"v_add_u32 {VW}, s62, v{T[0]}")
    a("s_lshl_b32 s62, s3, 4"); a(f"s_add_u32 s62, s62, {ML}"); a(f"v_writelane_b32 {VW}, s62, 32")
    a(f"v_and_b32 {VKV}, 0x1f0, v{T[0]}"); a(f"v_lshrrev_b32 v{T[1]}, 5, {LANE}"); a(f"v_lshl_add_u32 {VKV}, v{T[1]}, 11, {VKV}")
    HT = [Q, B[0], B[1]]
    def half_sum():
        if not trim:
            for r in range(4): a(f"v_mov_b32 v{T[r]}, v{D+r}")
        for r in range(4): a(f"v_permlane32_swap_b32 v{D+r}, v{T[r]}")
        add4(D, T[0])
    a("s_barrier")
    if dyn:
        a(f"v_mov_b32 {VL}, 1"); a(f"v_mov_b32 {VF}, 0")
        a("s_mov_b64 exec, 1")
        a(f"buffer_atomic_add {VL}, {VF}, s[96:99], 0 offen sc0 sc1")
        a("s_mov_b64 exec, -1")
    if adapt or (thr and thr_at == "B2"): progress()
    def groups_done():
        a("s_mov_b64 exec, 0xff"); a(f"buffer_load_dword v{S+7}, v{S+6}, {sWS}, 0 offen sc1"); a("s_waitcnt vmcnt(0)")
        a(f"v_bitop3_b32 v{S+7}, v{S+7}, {VTAG}, {TLOW} bitop3:0x28"); a(f"v_cmp_eq_u32 vcc, 0, v{S+7}"); a("s_mov_b64 exec, -1")
        a("s_bcnt1_i32_b32 s3, vcc_lo")
    if gate:
        assert rep2
        a("s_and_b32 s3, s2, 7"); a("s_lshl_b32 s3, s3, 15"); a(f"s_add_u32 s3, s3, {Z2R}"); a(f"v_lshl_add_u32 v{S+6}, {LANE}, 8, s3")
        groups_done()
        a(f"s_cmp_ge_u32 s3, {gate[0]}"); a("s_cselect_b32 s72, 1, 0")
        a(f"v_mov_b32 v{S+4}, s72"); a(f"v_mov_b32 v{S+5}, 0"); a(f"ds_write_b32 v{S+5}, v{S+4} offset:{L_ROLE+8}")
        if diag and "rank" in names: a(f"s_add_u32 s{80+2*names.index('rank')}, s3, 1")
    if fast1:
        a("s_and_b32 s3, s2, 7"); a("s_lshl_b32 s3, s3, 7"); a(f"s_add_u32 s3, s3, {XC}")
        a(f"v_and_b32 v{S}, 31, {LANE}"); a(f"v_lshlrev_b32 v{S}, 2, v{S}")
        a(f"buffer_load_dword v{S}, v{S}, {sWS}, s3 offen sc1")
    wgmax(VM)
    if dyn:
        a("s_waitcnt vmcnt(0)")
        stamp("claim")
        a(f"v_readfirstlane_b32 {RID}, {VL}")
        a("s_mov_b64 exec, 1"); a(f"ds_write_b32 {VF}, {VL} offset:{L_ROLE}"); a("s_mov_b64 exec, -1")
        role_setup()
        a("s_waitcnt lgkmcnt(0)")
    if fast1:
        a("s_waitcnt vmcnt(0)")
        a(f"s_lshl_b32 s3, {EP1}, 4"); a("s_or_b32 s3, s3, s78")
        a(f"v_cmp_ne_u32 vcc, s3, v{S}")
        a("s_cmp_eq_u32 vcc_lo, 0"); a(f"s_cselect_b32 s3, {FAST}, 0")
        a(f"v_mov_b32 v{T[0]}, s3"); a(f"v_mov_b32 {VF}, 0"); a(f"ds_write_b32 {VF}, v{T[0]} offset:{L_ROLE+4}")
        a("s_waitcnt lgkmcnt(0)")
    a(f"v_mov_b32 {VF}, 0")
    if xb: xbar("h")
    a.mark("chain", "P_pub", "L_warm1")
    a("s_barrier")
    a(f"ds_read_b128 {v4(F[0])}, {VF} offset:{L_LW}"); a(f"ds_read_b128 {v4(F[1])}, {VF} offset:{L_LW+16}")
    stamp("b3")
    sum_parts(VKV, D, HT, 4, 512)
    add4(F[0], F[1])
    half_sum()
    a(f"v_add_f32 v{F[0]}, v{F[0]}, v{F[0]+1}"); a(f"v_add_f32 v{F[0]+2}, v{F[0]+2}, v{F[0]+3}")
    a("s_mov_b32 exec_lo, 0"); a("s_mov_b32 exec_hi, 1")
    a(f"v_add_f32 v{D+1}, v{F[0]}, v{F[0]+2}"); a(f"v_mov_b32 v{D}, {VM}"); a(f"v_mov_b32 v{D+2}, {VM}"); a(f"v_mov_b32 v{D+3}, {VM}")
    a("s_mov_b32 exec_lo, -1")
    for i in range(4): a(f"v_and_or_b32 v{D+i}, v{D+i}, {TMASK}, {VTAG}")
    if fast1: a(f"buffer_store_dwordx4 {v4(D)}, {VW}, {sWS}, s61 offen")
    a(f"buffer_store_dwordx4 {v4(D)}, {VW}, {sWS}, 0 offen sc1")
    stamp("ostore")
    a("s_mov_b64 exec, -1")
    if gate:
        a.mark("nopad", 1)
        a(f"s_sub_u32 s3, {RID}, 144"); a("s_cmp_lt_u32 s3, 72"); a("s_cbranch_scc1 L_gate_ok")
        a("s_cmp_lg_u32 s72, 0"); a("s_cbranch_scc1 L_gate_ok")
        a(f"s_mov_b32 {CNT}, 0x40000")
        a.label("L_gate")
        groups_done()
        a(f"s_cmp_ge_u32 s3, {gate[1]}"); a("s_cbranch_scc1 L_gate_ok")
        a("s_sleep 2")
        a(f"s_sub_u32 {CNT}, {CNT}, 1"); a(f"s_cmp_lg_u32 {CNT}, 0"); a("s_cbranch_scc1 L_gate")
        a.label("L_gate_ok")
        a.mark("nopad", 0)
    if pre: a(f"s_sub_u32 s3, {RID}, 144"); a("s_cmp_lt_u32 s3, 72"); a("s_cbranch_scc1 L_wo_pub")
    a("s_barrier")
    a("s_setprio 0")

    a.label("L_tail")
    stamp("tail")
    a(f"s_cmp_lt_u32 {RID}, 144"); a("s_cbranch_scc1 L_ffn")
    a(f"s_cmp_lt_u32 {RID}, 216"); a("s_cbranch_scc1 L_wo")
    if pre: b4("r")
    if t2 == "red":
        a("s_and_b32 s3, s2, 7"); a(f"s_mul_i32 s3, s3, {576*1152}")
        a("s_sub_u32 s62, s24, 27"); a(f"s_mul_i32 s62, s62, {1037*128}")
        a(f"s_sub_u32 s42, {576*1152}, s62"); a(f"s_min_u32 s42, s42, {1037*128}"); a("s_add_u32 s3, s3, s62")
        a("s_add_u32 s40, s20, s3"); a("s_addc_u32 s41, s21, 0")
        a(f"s_lshl_b32 s3, {WAVE}, 14"); a(f"v_lshl_add_u32 v{T[0]}, {LANE}, 7, s3"); a("s_movk_i32 s3, 0x2000")
        a(f"buffer_load_dword v{S+14}, v{T[0]}, s[40:43], 0 offen"); a(f"buffer_load_dword v{S+15}, v{T[0]}, s[40:43], s3 offen")
    a(f"s_cmp_lt_u32 {RID}, 252"); a("s_cbranch_scc1 L_red")
    a("s_branch L_done")
    a.mark("end")

    a.label("L_wo")
    a.mark("chain", "P_wo", "L_warm2")
    a(f"s_cmp_eq_u32 {WAVE}, 8"); a("s_cbranch_scc1 L_wo_pub")
    OA, OB, MLr = F[0], F[1], F[2]
    for i in range(EW, 8):
        if i - EW >= Ww: a(f"s_waitcnt vmcnt({Ww-1})")
        gload(i, G[i])
    a(f"s_and_b32 s3, {RID}, 7"); a("s_lshl_b32 s3, s3, 2"); a(f"s_lshr_b32 s62, {WAVE}, 1"); a("s_add_u32 s3, s3, s62")
    a(f"s_lshl_b32 s62, s3, 12"); a(f"s_and_b32 s60, {WAVE}, 1"); a("s_lshl_b32 s60, s60, 8"); a("s_add_u32 s62, s62, s60")
    a(f"s_add_u32 s62, s62, {O1}")
    a(f"v_lshrrev_b32 v{T[4]}, 4, {LANE}"); a(f"v_and_b32 v{T[5]}, 15, {LANE}")
    a(f"v_lshlrev_b32 {VKV}, 9, v{T[4]}"); a(f"v_lshl_add_u32 {VKV}, v{T[5]}, 4, {VKV}"); a(f"v_add_u32 {VKV}, s62, {VKV}")
    a("s_lshl_b32 s62, s3, 7"); a(f"s_add_u32 s62, s62, {ML}")
    a(f"v_bfe_u32 v{T[6]}, {LANE}, 3, 1"); a(f"v_lshl_add_u32 v{T[6]}, v{T[6]}, 2, v{T[4]}")
    a(f"v_lshlrev_b32 {VW}, 4, v{T[6]}"); a(f"v_add_u32 {VW}, s62, {VW}")
    part_addr(VM, True)
    a("s_mov_b32 s74, 0xff00ff00"); a("s_mov_b32 s75, 0xff00ff00")
    ld1 = lambda i, r: (f"buffer_load_dwordx4 {v4(r)}, {VW}, {sWS}, s61 offen sc1",
                        f"buffer_load_dwordx4 {v4(r)}, {VKV}, {sWS}, s61 offen sc1",
                        f"buffer_load_dwordx4 {v4(r)}, {VKV}, {sWS}, s61 offen offset:2048 sc1")[i]
    ppoll("L_p1", ld1, [MLr, OA, OB], [F[3+3*k:6+3*k] for k in range(PD1)])
    stamp("got")
    m1, l1, m2, l2, M, t = (f"v{T[i]}" for i in range(6))
    m1, l1 = f"v{MLr}", f"v{MLr+1}"
    dpp("v_max_f32", M, m1, m1, "row_ror:8"); allred_rows(M, t, "v_max_f32")
    a(f"v_sub_f32 {m1}, {m1}, {M}"); a(f"v_mul_f32 {m1}, {LOG2E}, {m1}"); a(f"v_exp_f32 {m1}, {m1}")
    a(f"v_mul_f32 {l1}, {l1}, {m1}")
    a(f"v_mov_b32_dpp {m2}, {m1} row_ror:8 row_mask:0xf bank_mask:0xf")
    dpp("v_add_f32", l1, l1, l1, "row_ror:8")
    a(f"v_cndmask_b32 {l2}, {m1}, {m2}, s[74:75]"); a(f"v_cndmask_b32 {m2}, {m2}, {m1}, s[74:75]")
    for i in range(4): a(f"v_mul_f32 v{OA+i}, v{OA+i}, {l2}")
    for i in range(4): a(f"v_fmac_f32 v{OA+i}, v{OB+i}, {m2}")
    a(f"v_mov_b32 {t}, {l1}")
    a(f"v_permlane16_swap_b32 v{OA}, v{OA+1}"); a(f"v_permlane16_swap_b32 {l1}, {t}"); a(f"v_permlane16_swap_b32 v{OA+2}, v{OA+3}")
    a(f"v_add_f32 {l1}, {l1}, {t}"); a(f"v_add_f32 v{OA}, v{OA}, v{OA+1}"); a(f"v_mov_b32 {t}, {l1}"); a(f"v_add_f32 v{OA+2}, v{OA+2}, v{OA+3}")
    a(f"v_permlane32_swap_b32 {l1}, {t}"); a(f"v_permlane32_swap_b32 v{OA}, v{OA+2}")
    a(f"v_add_f32 {l1}, {l1}, {t}"); a(f"v_add_f32 v{OA}, v{OA}, v{OA+2}")
    a(f"v_rcp_f32 {l1}, {l1}")
    a(f"v_mul_f32 v{OA}, v{OA}, {l1}")
    a(f"v_cvt_pk_bf16_f32 v{OA}, v{OA}, v{OA}")
    stamp("f2a")
    mfma_chain(8, bcast_src(f"v{OA}"), lambda t: G[t])
    stamp("f3a")
    if pre: a("s_barrier")
    setexec(TWO)
    a(f"ds_write_b128 {VM}, {v4(D)}")
    a("s_waitcnt lgkmcnt(0)"); a("s_barrier")
    a("s_branch L_done")
    a.label("L_wo_pub")
    a(f"s_and_b32 s3, {RID}, 7"); a("s_lshl_b32 s3, s3, 8"); a(f"s_lshl_b32 s62, {ROLE}, 11"); a("s_add_u32 s3, s3, s62"); a(f"s_add_u32 s3, s3, {Z2R if rep2 else Z2}")
    a(f"v_lshrrev_b32 v{T[4]}, 4, {LANE}"); a(f"v_and_b32 v{T[5]}, 15, {LANE}"); a(f"v_lshlrev_b32 v{T[5]}, 4, v{T[5]}")
    a(f"v_lshl_add_u32 {VKV}, v{T[4]}, 10, v{T[5]}")
    a(f"v_lshl_add_u32 {VW}, v{T[4]}, {15 if rep2 else 2}, v{T[5]}"); a(f"v_add_u32 {VW}, s3, {VW}")
    a(f"s_mov_b32 s62, {4*Z2S}")
    if pre: a("s_barrier")
    a("s_barrier")
    stamp("b6")
    sum_parts(VKV, D, HT, 4, 256)
    if rep2:
        for sw in ("32", "16"):
            for r in ((0, 2) if pk else range(4)): a(f"v_pk_mov_b32 v[{T[r]}:{T[r]+1}], v[{D+r}:{D+r+1}], v[{D+r}:{D+r+1}] op_sel:[0,1]" if pk else f"v_mov_b32 v{T[r]}, v{D+r}")
            for r in range(4): a(f"v_permlane{sw}_swap_b32 v{D+r}, v{T[r]}")
            add4(D, T[0])
        for r in range(4): a(f"v_and_or_b32 v{D+r}, v{D+r}, {TMASK}, {VTAG}")
        a(f"buffer_store_dwordx4 {v4(D)}, {VW}, {sWS}, 0 offen sc1")
        a(f"buffer_store_dwordx4 {v4(D)}, {VW}, {sWS}, s62 offen sc1")
    elif pub2x4:
        for sw in ("32", "16"):
            for r in range(4): a(f"v_permlane{sw}_swap_b32 v{D+r}, v{T[r]}")
            for r in range(4): a(f"v_add_f32 v{D+r}, v{D+r}, v{T[r]}")
        a("s_mov_b64 exec, 0xffff")
        for r in range(4): a(f"v_and_or_b32 v{D+r}, v{D+r}, {TMASK}, {VTAG}")
        a(f"buffer_store_dwordx4 {v4(D)}, {VW}, {sWS}, 0 offen sc1")
    else:
        rows_scatter(*(f"v{D+i}" for i in range(4)))
        a(f"v_and_or_b32 v{D}, v{D}, {TMASK}, {VTAG}")
        a(f"buffer_store_dword v{D}, {VW}, {sWS}, 0 offen sc1")
    stamp("pub")
    a("s_branch L_done")

    a.mark("end")
    a.label("L_ffn")
    a.mark("chain", "P_ffn", "L_warm2")
    W13 = F[0:8]; ZA, ZB = F[9], F[10]; HX = F[11]
    AD = f"v[{HX}:{HX+1}]"
    a(f"s_mov_b32 s54, {0 if now13 > 1 else 32*1152}")
    G2 = G + [F[8], F[14], F[15], F[16]]
    def w2loads(tag):
        a(f"s_cmp_ge_u32 {WAVE}, 4"); a(f"s_cbranch_scc1 L_w2{tag}")
        for t in range(4):
            for b in range(3):
                so = (("0", "s76"), ("0", "s76"), ("s12", "s13"))[b][t >> 1]
                a(f"buffer_load_dwordx4 {v4(G2[4*b+t])}, {VG}, {sG}, {so} offen offset:{(t & 1) * 2304 + 512 * b} {wpol}")
        a.label(f"L_w2{tag}")
    a(f"s_cmp_eq_u32 {WAVE}, 0"); a("s_cselect_b32 s12, 0, 0x40000000"); a("s_add_u32 s13, s12, s76")
    a(f"v_lshrrev_b32 v{T[4]}, 4, {LANE}"); a(f"v_bfe_u32 v{T[5]}, {LANE}, 3, 1"); a(f"v_lshl_add_u32 v{T[6]}, v{T[4]}, 3, v{T[5]}")
    a(f"s_lshl_b32 s3, {WAVE}, 6"); a(f"v_add_u32 v{T[6]}, s3, v{T[6]}"); a(f"v_mul_u32_u24 v{T[6]}, 9216, v{T[6]}")
    a(f"v_and_b32 v{T[7]}, 3, {LANE}"); a(f"v_lshl_add_u32 v{T[6]}, v{T[7]}, 4, v{T[6]}")
    a(f"s_lshl_b32 s62, {ROLE}, 6"); a(f"v_add_u32 v{T[6]}, s62, v{T[6]}")
    a("s_mov_b32 s74, 0xf0f0f0f0"); a("s_mov_b32 s75, 0xf0f0f0f0")
    a(f"v_mov_b32 v{HX}, s16"); a(f"v_mov_b32 v{HX+1}, s17"); a(f"v_mov_b32 v{HX+2}, s18"); a(f"v_mov_b32 v{HX+3}, s19")
    a(f"v_cndmask_b32 v{HX}, v{HX}, v{HX+2}, s[74:75]"); a(f"v_cndmask_b32 v{HX+1}, v{HX+1}, v{HX+3}, s[74:75]")
    a(f"v_add_co_u32 v{HX}, vcc, v{HX}, v{T[6]}"); a(f"v_addc_co_u32 v{HX+1}, vcc, 0, v{HX+1}, vcc")
    a(f"s_movk_i32 s72, {2*9216}"); a("s_mov_b32 s73, 0"); a(f"s_mov_b32 s10, {26*9216}"); a("s_mov_b32 s11, 0")
    if pre: b4("f")
    if dwait: a("s_waitcnt vmcnt(0)")
    if dwait > 1: a("s_barrier")
    for tt in range(8):
        if not now13: a(f"global_load_dwordx4 {v4(W13[tt])}, {AD}, off {wpol if dpol is None else dpol}")
        if tt < 7: a(f"v_lshl_add_u64 {AD}, {'s[10:11]' if tt == 3 else 's[72:73]'}, 0, {AD}")
    a(f"v_lshl_add_u32 {VL}, v{T[5]}, 2, v{T[4]}"); a(f"v_and_b32 v{T[6]}, 7, {LANE}"); a(f"v_lshl_add_u32 {VL}, {VL}, 3, v{T[6]}")
    a(f"v_add_u32 {VL}, s3, {VL}"); a(f"v_lshlrev_b32 {VL}, 1, {VL}")
    a(f"buffer_load_ushort v{HX+2}, {VL}, {sX}, 0 offen")
    def z2base():
        if rep2: a("s_and_b32 s62, s2, 7"); a("s_lshl_b32 s62, s62, 15"); a("s_add_u32 s3, s3, s62")
        a(f"s_add_u32 s3, s3, {Z2R if rep2 else Z2}")
    a(f"v_and_b32 v{T[5]}, 15, {LANE}")
    a(f"s_lshl_b32 s3, {WAVE}, 11"); z2base()
    a(f"v_lshlrev_b32 {VKV}, 8, v{T[4]}"); a(f"v_lshl_add_u32 {VKV}, v{T[5]}, 4, {VKV}"); a(f"v_add_u32 {VKV}, s3, {VKV}")
    part_addr(VM, True)
    a(f"v_bfe_u32 {VW}, {LANE}, 4, 1"); a(f"v_lshlrev_b32 {VW}, 2, {VW}"); a(f"s_lshl_b32 s3, {WAVE}, 3"); a(f"v_add_u32 {VW}, s3, {VW}")
    VR, VO, VS, V8 = (f"v{S+i}" for i in (1, 2, 3, 8)); E = S + 4
    a(f"v_and_b32 {V8}, 31, {LANE}"); a(f"v_lshlrev_b32 {V8}, 4, {V8}")
    a(f"v_lshrrev_b32 {VR}, 5, {LANE}"); a(f"v_lshl_add_u32 {VR}, {VR}, 11, {V8}")
    if rmaj:
        a(f"s_lshl_b32 s3, {ROLE}, 6"); a(f"s_mul_i32 s62, {WAVE}, {4*9216}"); a("s_add_u32 s3, s3, s62"); a(f"s_add_u32 s3, s3, {P3}")
        a(f"v_bfe_u32 {VO}, {LANE}, 2, 1"); a(f"v_lshl_add_u32 {VO}, v{T[4]}, 1, {VO}"); a(f"v_mul_u32_u24 {VO}, 9216, {VO}")
        a(f"v_and_b32 v{T[7]}, 3, {LANE}"); a(f"v_lshl_add_u32 {VO}, v{T[7]}, 4, {VO}"); a(f"v_add_u32 {VO}, s3, {VO}")
    else:
        a(f"s_mul_i32 s3, {ROLE}, 2304"); a(f"s_lshl_b32 s62, {WAVE}, 8"); a("s_add_u32 s3, s3, s62"); a(f"s_add_u32 s3, s3, {P3}")
        a(f"v_lshlrev_b32 {VO}, 7, v{T[4]}"); a(f"v_lshl_add_u32 {VO}, v{T[6]}, 4, {VO}"); a(f"v_add_u32 {VO}, s3, {VO}")
    a("s_mov_b32 s10, 0.5"); a("s_mov_b32 s11, 0.5")
    a(f"v_lshlrev_b32 {VS}, 3, v{T[5]}")
    def colsums(n):
        a(f"v_mov_b32 v{T[0]}, 0x3f803f80"); selector(B[0], f"v{T[0]}")
        for t in range(8):
            a(f"s_waitcnt vmcnt({n + 1 + 7 - t})")
            mfma(W13[t], B[0], first=(t == 0), dst=Q)
        stamp("wts")
        for r in range(4): a(f"v_permlane32_swap_b32 v{Q+r}, v{B[1]+r}")
        for r in range(4): dpp("v_add_f32", f"v{E+r}", f"v{B[1]+r}", f"v{Q+r}", "row_ror:8")
        if w2at == "after": a("s_waitcnt vmcnt(0)"); w2loads("a"); a("s_branch L_p2_re")
    ld2 = lambda i, r: f"buffer_load_dwordx4 {v4(r)}, {VKV}, {sWS}, 0 offen offset:{1024*i} sc1"
    if f2lds:
        VX, VY = f"v{S+9}", f"v{S+10}"
        a(f"s_lshl_b32 s3, {WAVE}, 8"); a(f"s_add_u32 s3, s3, {L_H}")
        a(f"v_and_b32 {VX}, 1, {LANE}"); a(f"v_lshl_add_u32 {VX}, v{T[4]}, 1, {VX}"); a(f"v_lshlrev_b32 {VX}, 5, {VX}")
        a(f"v_bfe_u32 v{T[7]}, {LANE}, 1, 3"); a(f"v_lshl_add_u32 {VX}, v{T[7]}, 2, {VX}"); a(f"v_add_u32 {VX}, s3, {VX}")
        a(f"v_lshrrev_b32 {VY}, 3, {LANE}"); a(f"v_lshl_add_u32 {VY}, {VY}, 5, s3")
    ppoll("L_p2", ld2, [ZA, ZB], [F[12:14]], sleep2, first=colsums)
    stamp("got")
    if w2at == "got": w2loads("g")
    add4(ZA, ZB)
    a(f"v_lshlrev_b32 v{HX+2}, 16, v{HX+2}")
    rows_scatter(*(f"v{ZA+i}" for i in range(4)))
    h, h2, hd = f"v{ZA}", f"v{ZA+1}", f"v{ZA+2}"
    if tm: rbf(h, h)
    a(f"v_add_f32 {h}, {h}, v{HX+2}")
    a(f"v_cvt_pk_bf16_f32 {hd}, {h}, {h}"); a(f"v_and_b32 {h}, {HI}, {hd}")
    stat = [lambda st=st, r=r: dpp("v_add_f32", r, r, r, f"row_ror:{st}") for st in (8, 4, 2, 1) for r in (h, h2)]
    def f2pre(t):
        if t < fill and not f2lds: stat[t]()
        if t == 4 and w2at == "mid": w2loads("m")
    if f2lds:
        a(f"ds_write_b32 {VX}, {hd}")
        a(f"ds_read_b128 {v4(ZB)}, {VY}"); a(f"ds_read_b128 {v4(Q)}, {VY} offset:16")
        a(f"v_mul_f32 {h2}, {h}, {h}")
        for f_ in stat: f_()
        fill = 8
        def lsrc(t):
            if t == 0: a("s_waitcnt lgkmcnt(1)")
            if t == 4: a("s_waitcnt lgkmcnt(0)")
        lsrc.reg = lambda t: f"v{(ZB if t < 4 else Q) + t % 4}"
        lsrc(0); selector(B[0], lsrc.reg(0))
        for t in range(8):
            if t < 7: lsrc(t + 1); selector(B[(t + 1) & 1], lsrc.reg(t + 1))
            f2pre(t)
            mfma(W13[t], B[t & 1], first=(t == 0))
    else:
        a(f"v_mul_f32 {h2}, {h}, {h}")
        mfma_chain(8, bcast_src(hd), lambda t: W13[t], pre=f2pre)
    if w2at == "end": w2loads("e")
    stamp("f2a")
    for f_ in stat[fill:]: f_()
    a(f"v_permlane16_swap_b32 {h}, {h2}"); a(f"v_add_f32 {h}, {h}, {h2}")
    a(f"v_mov_b32 {h2}, {h}"); a(f"v_permlane32_swap_b32 {h}, {h2}"); a(f"v_add_f32 {h}, {h}, {h2}")
    for r in range(4): a(f"v_permlane32_swap_b32 v{D+r}, v{E+r}")
    a("s_mov_b64 exec, 0x00010001")
    a(f"ds_write_b32 {VW}, {h} offset:{L_ST}")
    a("s_mov_b64 exec, -1")
    for r in range(4): a(f"v_add_f32_dpp v{D+r}, v{E+r}, v{D+r} row_ror:8 row_mask:0x3 bank_mask:0xf")
    setexec(PLAIN)
    a(f"ds_write_b128 {VM}, {v4(D)}")
    a("s_mov_b64 exec, -1")
    a("s_waitcnt lgkmcnt(0)"); a("s_barrier")
    stamp("b6")
    a(f"s_cmp_ge_u32 {WAVE}, 4"); a("s_cbranch_scc1 L_done")
    mu, var = f"v{T[0]}", f"v{T[1]}"
    a(f"ds_read_b64 v[{T[0]}:{T[1]}], {VS} offset:{L_ST}")
    RD = [ZA, ZB, Q, HX, E]
    for i in range(4): a(f"ds_read_b128 {v4(RD[i])}, {VR} offset:{L_P + 512*i}")
    a(f"ds_read_b128 {v4(RD[4])}, {V8} offset:{L_P + 512*8}")
    if w2at == "b6": w2loads("b")
    a("s_waitcnt lgkmcnt(5)")
    assert not tm
    p2 = lambda r: f"v[{r}:{r+1}]"
    if pk:
        adds = [lambda i=i, r=r: a(f"v_pk_add_f32 {p2(ZA+r)}, {p2(ZA+r)}, {p2(RD[i]+r)}" if i < 4 else f"v_pk_fma_f32 {p2(ZA+r)}, {p2(RD[i]+r)}, s[10:11], {p2(ZA+r)}")
                for i in range(1, 5) for r in (0, 2)]
    else:
        adds = [lambda i=i, r=r: [a(f"v_add_f32 v{ZA+q}, v{ZA+q}, v{RD[i]+q}" if i < 4 else f"v_fmac_f32 v{ZA+q}, 0.5, v{RD[i]+q}") for q in (r, r + 1)]
                for i in range(1, 5) for r in (0, 2)]
    red = lambda st: (dpp("v_add_f32", mu, mu, mu, f"row_ror:{st}"), dpp("v_add_f32", var, var, var, f"row_ror:{st}"))
    red(8); a("s_waitcnt lgkmcnt(3)"); adds[0](); red(4); adds[1](); red(2)
    a("s_waitcnt lgkmcnt(2)"); adds[2](); red(1); adds[3]()
    a(f"v_mul_f32 {mu}, {f32(1/576)}, {mu}"); a(f"v_mul_f32 {var}, {f32(1/576)}, {var}")
    a("s_waitcnt lgkmcnt(1)"); adds[4](); a(f"v_fma_f32 {var}, -{mu}, {mu}, {var}"); adds[5](); a(f"v_max_f32 {var}, 0, {var}")
    a("s_waitcnt lgkmcnt(0)"); adds[6](); a(f"v_add_f32 {var}, {f32(1e-5)}, {var}"); adds[7]()
    stamp("f3a")
    a(f"v_rsq_f32 {var}, {var}")
    a(f"v_permlane16_swap_b32 v{ZA}, v{ZA+1}"); a(f"v_permlane16_swap_b32 v{ZA+2}, v{ZA+3}")
    a(f"v_fma_f32 v{ZA}, v{ZA+1}, -{mu}, v{ZA}"); a(f"v_fma_f32 v{ZA+2}, v{ZA+3}, -{mu}, v{ZA+2}")
    a(f"v_permlane32_swap_b32 v{ZA}, v{ZA+2}"); a(f"v_add_f32 v{ZA}, v{ZA}, v{ZA+2}")
    e = [f"v{T[i]}" for i in range(4)]
    g, ot = f"v{ZA}", f"v{ZA+2}"
    a(f"v_mul_f32 {g}, {g}, {var}")
    a(f"v_mul_f32 {ot}, {f32(-1.4426950408889634)}, {g}"); a(f"v_exp_f32 {ot}, {ot}")
    dpp("v_mul_f32", g, g, g, "row_ror:8")
    a(f"v_add_f32 {ot}, 1.0, {ot}"); a(f"v_rcp_f32 {ot}, {ot}"); a(f"v_mul_f32 {g}, {g}, {ot}")
    a(f"v_cvt_pk_bf16_f32 {g}, {g}, {g}")
    stamp("f3b")
    ACC = [D, Q, E]
    src = bcast_src(g); src(0)
    for t in range(4):
        selector(B[t & 1], src.reg(t))
        if t < 3: src(t + 1)
        for b in range(3):
            a(f"s_waitcnt vmcnt({11 - 3*t - b})")
            mfma(G2[4*b+t], B[t & 1], first=(t == 0), dst=ACC[b])
    stamp("f3c")
    a(f"s_mov_b32 s10, {16*9216 if rmaj else 1024}"); a(f"s_mov_b32 s11, {32*9216 if rmaj else 2048}")
    for b in range(3):
        if b == 2: a(f"s_cmp_lg_u32 {WAVE}, 0"); a("s_cbranch_scc1 L_done")
        d = ACC[b]
        if b: a("s_mov_b64 exec, -1")
        for r in range(4): a(f"v_permlane32_swap_b32 v{d+r}, {e[r]}")
        for r in range(4): dpp("v_add_f32", f"v{d+r}", e[r], f"v{d+r}", "row_ror:8")
        for r in range(4): a(f"v_and_or_b32 v{d+r}, v{d+r}, {TMASK}, {VTAG}")
        a("s_mov_b64 exec, 0x00ff00ff")
        a(f"buffer_store_dwordx4 {v4(d)}, {VO}, {sWS}, {('0', 's10', 's11')[b]} offen sc1")
        if b == 1: stamp("pub")
    stamp("pub")
    a("s_branch L_done")

    a.mark("end")
    a.label("L_red")
    a.mark("chain", "P_red", "L_warm2")
    PA_, HH = F[0], F[1]
    a(f"s_sub_u32 {ROLE}, {RID}, 216")
    a(f"v_and_b32 v{T[4]}, 3, {LANE}"); a(f"v_lshrrev_b32 v{T[5]}, 4, {LANE}")
    a(f"s_lshr_b32 s3, {ROLE}, 1"); a("s_lshl_b32 s3, s3, 5"); a(f"s_and_b32 s62, {ROLE}, 1"); a("s_lshl_b32 s62, s62, 2"); a("s_add_u32 s3, s3, s62")
    a(f"v_lshl_add_u32 {VL}, v{T[5]}, 3, v{T[4]}"); a(f"v_add_u32 {VL}, s3, {VL}"); a(f"v_lshlrev_b32 {VL}, 1, {VL}")
    a(f"v_lshl_add_u32 {VF}, v{T[5]}, 2, v{T[4]}"); a(f"v_mul_u32_u24 {VF}, 48, {VF}")
    a(f"s_lshl_b32 s3, {WAVE}, 2"); a(f"v_add_u32 {VM}, s3, {VF}")
    a(f"s_cmp_lg_u32 {WAVE}, 0"); a("s_cbranch_scc1 L_red_h3")
    a(f"buffer_load_ushort v{Q}, {VL}, {sX}, 0 offen")
    a(f"s_lshr_b32 s62, {ROLE}, 2"); a("s_lshl_b32 s62, s62, 11"); a(f"s_and_b32 s3, {ROLE}, 3"); a("s_lshl_b32 s3, s3, 6")
    a("s_add_u32 s3, s3, s62"); z2base()
    a(f"v_bfe_u32 {VKV}, {LANE}, 2, 3"); a(f"v_lshlrev_b32 {VKV}, 8, {VKV}"); a(f"v_lshl_add_u32 {VKV}, v{T[4]}, 4, {VKV}")
    a(f"v_add_u32 {VKV}, s3, {VKV}")
    poll("L_p2r", [f"buffer_load_dwordx4 {v4(HH)}, {VKV}, {sWS}, 0 offen sc1"], [HH], 2)
    hv = [f"v{HH+i}" for i in range(4)]
    for i in range(4): a(f"v_and_b32 {hv[i]}, {TMASK}, {hv[i]}")
    rows_scatter(*hv)
    allred16(hv[:1], steps=(4, 8))
    a(f"v_mul_f32 {hv[0]}, 0.5, {hv[0]}")
    if tm: rbf(hv[0], hv[0])
    a(f"v_lshlrev_b32 v{Q}, 16, v{Q}"); a(f"v_add_f32 {hv[0]}, {hv[0]}, v{Q}"); rbf(hv[0], hv[0])
    stamp("got")
    a.label("L_red_h3")
    if rmaj:
        a(f"s_mul_i32 s3, {ROLE}, 9216"); a(f"s_lshl_b32 s62, {WAVE}, 10"); a("s_add_u32 s3, s3, s62"); a(f"s_add_u32 s3, s3, {P3}")
        a(f"v_lshl_add_u32 {VW}, {LANE}, 4, s3")
    else:
        a(f"v_lshrrev_b32 {VW}, 2, {LANE}"); a(f"s_lshl_b32 s3, {WAVE}, 4"); a(f"v_add_u32 {VW}, s3, {VW}")
        a(f"v_mul_u32_u24 {VW}, 2304, {VW}"); a(f"v_lshl_add_u32 {VW}, v{T[4]}, 4, {VW}")
        a(f"s_lshl_b32 s3, {ROLE}, 6"); a(f"s_add_u32 s3, s3, {P3}"); a(f"v_add_u32 {VW}, s3, {VW}")
    ppoll("L_p3", lambda i, r: f"buffer_load_dwordx4 {v4(r)}, {VW}, {sWS}, 0 offen sc1", [PA_], [[F[2+k]] for k in range(PD3)], sleep3, SP3)
    stamp("pub")
    pv = [f"v{PA_+i}" for i in range(4)]
    rows_scatter(*pv)
    allred16(pv[:1], steps=(4, 8))
    setexec(0x000F000F000F000F)
    a(f"ds_write_b32 {VM}, {pv[0]} offset:{L_P}")
    a("s_waitcnt lgkmcnt(0)"); a("s_barrier")
    a(f"s_cmp_lg_u32 {WAVE}, 0"); a("s_cbranch_scc1 L_done")
    a(f"ds_read_b128 {v4(PA_)}, {VF} offset:{L_P}"); a(f"ds_read_b128 {v4(B[0])}, {VF} offset:{L_P+16}"); a(f"ds_read_b32 v{B[1]}, {VF} offset:{L_P+32}")
    a("s_waitcnt lgkmcnt(1)")
    add4(PA_, B[0])
    a(f"v_add_f32 {pv[0]}, {pv[0]}, {pv[1]}"); a(f"v_add_f32 {pv[2]}, {pv[2]}, {pv[3]}")
    a("s_waitcnt lgkmcnt(0)")
    a(f"v_add_f32 {pv[0]}, {pv[0]}, v{B[1]}"); a(f"v_add_f32 {pv[0]}, {pv[0]}, {pv[2]}")
    if tm: rbf(pv[0], pv[0])
    a(f"v_add_f32 {pv[0]}, {pv[0]}, {hv[0]}")
    if delta: a(f"v_add_f32 {pv[0]}, {f32(delta)}, {pv[0]}")
    a(f"v_cvt_pk_bf16_f32 {pv[0]}, {pv[0]}, {pv[0]}")
    a(f"buffer_store_short {pv[0]}, {VL}, {sOUT}, 0 offen")
    a(f"s_cmp_lg_u32 {ROLE}, 0"); a("s_cbranch_scc1 L_done")
    a("s_mov_b64 exec, 1")
    a(f"v_mov_b32 v{T[0]}, {EP1}"); a(f"v_mov_b32 v{T[1]}, {EPOCH}")
    a(f"buffer_store_dword v{T[0]}, v{T[1]}, {sWS}, 0 offen")
    if amp:
        a("s_memrealtime s[94:95]"); a("s_waitcnt lgkmcnt(0)")
        a("s_sub_u32 s3, s94, s92"); a(f"s_mul_i32 s3, s3, {amp}"); a("s_min_u32 s3, s3, 30000")
        a.label("L_amp"); a("s_memrealtime s[90:91]"); a("s_waitcnt lgkmcnt(0)"); a("s_sub_u32 s62, s90, s94")
        a("s_cmp_lt_u32 s62, s3"); a("s_cbranch_scc1 L_amp")

    a.mark("end")
    a.label("L_done")
    if diag == 2:
        stamp("end")
        a("s_mov_b64 exec, 1"); a("s_waitcnt lgkmcnt(0)")
        a("s_mov_b32 s76, s24"); a("s_mov_b32 s77, s25"); a("s_movk_i32 s78, 256"); a("s_mov_b32 s79, 0x20000")
        a("s_not_b32 s3, s80"); a("v_mov_b32 v16, s3"); a("v_mov_b32 v17, 0")
        a("buffer_atomic_umax v16, v17, s[76:79], 0 offen sc1")
        a("v_mov_b32 v18, s80"); a("buffer_atomic_umax v18, v17, s[76:79], 0 offen offset:4 sc1")
        a("v_mov_b32 v19, s88"); a("buffer_atomic_umax v19, v17, s[76:79], 0 offen offset:8 sc1")
        a("v_mov_b32 v20, s94"); a("buffer_atomic_umax v20, v17, s[76:79], 0 offen offset:12 sc1")
        a(f"s_cmp_eq_u32 {WAVE}, 8"); a("s_cbranch_scc1 L_exit")
        a("v_mov_b32 v21, s82"); a("buffer_atomic_umax v21, v17, s[76:79], 0 offen offset:16 sc1")
        a("v_mov_b32 v22, s84"); a("buffer_atomic_umax v22, v17, s[76:79], 0 offen offset:20 sc1")
        a("v_mov_b32 v23, s86"); a("buffer_atomic_umax v23, v17, s[76:79], 0 offen offset:24 sc1")
    elif diag:
        stamp("end")
        a("s_mov_b64 exec, 1"); a("s_waitcnt lgkmcnt(0)")
        a(f"s_mul_i32 s3, {RID}, 9"); a(f"s_add_u32 s3, s3, {WAVE}"); a("s_lshl_b32 s3, s3, 5"); a(f"s_add_u32 s3, s3, {STAMP}")
        a("v_mov_b32 v28, s3")
        for i in range(8): a(f"v_mov_b32 v{16+i}, s{80+2*i}")
        a(f"buffer_store_dwordx4 v[16:19], v28, {sWS}, 0 offen"); a(f"buffer_store_dwordx4 v[20:23], v28, {sWS}, 0 offen offset:16")
    a.label("L_exit")
    a("s_endpgm")
    a.label("L_end")
    a.place_pads(pads)
    body = a.finalize()
    out = HEADER + """; One launch, 256 workgroups (one per CU) of 8 streaming waves + 1 helper wave; written with an own generator script.
;  - workgroup b owns head 4*(b&7) + ((b>>3)&3), keys 1024*(b>>5)..+1023. The helper computes LN(x) and a 72-row share of
;    q = LN(x).wq; the eight shares of a head are exchanged through d_ws while the streaming waves already fetch K.
;  - scores by v_dot2 + row reductions, softmax with the true maximum (per wave, then per workgroup, then per head),
;    p.V and all weight products by MFMA with a one-value-per-column selector operand.
;  - after the stream: roles by b: 0..143 SwiGLU slices (32 columns), 144..215 output-projection tiles, 216..251 final sums.
;  - hand-offs carry a tag (launch number read from d_ws word 0, advanced at the end) in every word, so stale or random
;    workspace contents are never taken for data; every wait loop is bounded.
;  - die placement only affects speed: a same-die copy of the first hand-off is read only after the die numbers of all its
;    producers were checked at run time; single-word loads of w1/w3/w2 lines are cache prefetches.
"""
    if diag: out += "; stamps: " + " ".join(names) + "\n"
    out += "; @launch grid=(256,1,1) block=(576,1,1) lds=9216\n"
    out += '.amdgcn_target "amdgcn-amd-amdhsa--gfx950"\n.text\n' + f".globl {KNAME}\n.p2align 8\n.type {KNAME},@function\n"
    out += body
    out += f""".section .rodata,"a"
.p2align 6
.amdhsa_kernel {KNAME}
  .amdhsa_next_free_vgpr 168
  .amdhsa_next_free_sgpr {100 if (diag or dyn or amp) else 80}
  .amdhsa_accum_offset 168
  .amdhsa_group_segment_fixed_size 0
  .amdhsa_kernarg_size 96
  .amdhsa_user_sgpr_count 2
  .amdhsa_user_sgpr_kernarg_segment_ptr 1
  .amdhsa_system_sgpr_workgroup_id_x 1
.end_amdhsa_kernel
"""
    return out

if __name__ == "__main__":
    kw = eval("dict(" + (sys.argv[2] if len(sys.argv) > 2 else "") + ")")
    open(sys.argv[1], "w").write(gen(**kw))
```

```python
import sys, struct
sys.path.insert(0, "work")
from asmlib import Asm

KNAME = "sequential_preLN__mha_block_cached__glu_gated_swiglu__decode_kernel"
HEADER = open("sequential_preLN__mha_block_cached__glu_gated_swiglu__decode.s.ref").read().split("; Override launch")[0]

def f32(x): return "0x%08x" % struct.unpack("<I", struct.pack("<f", x))[0]

EPOCH, O1, ML, Z2, P3, Q0, STAMP = 0, 0x10000, 0x30000, 0x32000, 0x40000, 0xa0000, 0x100000
Z2R, Z2S = 0x140000, 0x8000
KD = 0x3a000
XC, FAST = 0x38000, 0x200000
L_ST, L_MW, L_LW, L_Q, L_H, L_P = 0, 128, 160, 256, 512, 4096

def gen(Wn=4, nK=18, qsleep=32, EW=8, jB2=9, dyn=0, Ww=13, Wv=None, wqpol='nt', w2mode='first', tu=2, fast1=1, pads=0, now13=0, nb=0, kvg=0, rperm=2, gpol='nt', dpol=None, xb=1, evp=(4,), yp=2, ev0=6, ev1=64, evmask=0x55, evh=18, evt=None, evw=2, dwait=0, pre=0, gs=0, ge=0, pk=1, tm=0, delta=0, qfast=0, qsl2=0, skipz=1, trim=1, thr=None, nA=24, nE=64, thr_at='B1', thr_par=0, nE2=None, amp=0, Walt=None, W0=0, n0=0, gate=None, w2at='end', f2lds=1, cyc=0, rmaj=1, fill=4, t2='red', SD2=0, SP2=2, SP3=0, adapt=None, jA=14, par=None, rep2=1, PD1=1, PD2=1, PD3=1, pub2x4=1, mpoll=1, tpos=0, pol="nt", wpol="", diag=0, codepf=0, sleep2=0, sleep3=0):
    a = Asm()
    LANE = "v0"; MASK = [4, 5, 6, 7]; Q = 8; D = 12; B = [16, 20]
    VKV, VW, VM, VL, VF, VG, VTAG = "v24", "v25", "v26", "v27", "v1", "v2", "v3"
    T = [28 + i for i in range(8)]
    S = 36
    SLOT0, NSLOT = 52, 29
    sK, sV, sWQ, sX, sWS, sG, sOUT = "s[32:35]", "s[36:39]", "s[40:43]", "s[44:47]", "s[48:51]", "s[52:55]", "s[56:59]"
    WAVE, HEAD, SPLIT, TAG = "s28", "s29", "s30", "s31"
    RID = "s79"; L_ROLE = 192; L_QF, L_MF = 208, 224
    assert not (dyn and EW)
    Wv = Wv or Wn
    if adapt: Wv = adapt[2]
    if par: Wn = Wv = max(par)
    SCALE, LOG2E, HI, TMASK, TLOW, ROLE, CNT, EP1 = "s64", "s65", "s66", "s67", "s68", "s69", "s70", "s71"
    v4 = lambda r: f"v[{r}:{r+3}]"
    stamps = []
    names = diag.split() if isinstance(diag, str) else ["start", "q", "kend", "vend", "tail", "got", "pub", "end"]
    def stamp(n):
        if diag and n in names:
            i = names.index(n); a(f"{'s_memtime' if cyc else 's_memrealtime'} s[{80+2*i}:{81+2*i}]")
    def rbf(dst, src):
        a(f"v_cvt_pk_bf16_f32 {dst}, {src}, {src}"); a(f"v_and_b32 {dst}, {HI}, {dst}")
    def dpp(op, d, s0, s1, ctl): a(f"{op}_dpp {d}, {s0}, {s1} {ctl} row_mask:0xf bank_mask:0xf")
    def allred16(regs, op="v_add_f32", steps=(8, 4, 2, 1)):
        for st in steps:
            for r in regs: dpp(op, r, r, r, f"row_ror:{st}")
    def allred_rows(r, t, op="v_add_f32"):
        a(f"v_mov_b32 {t}, {r}"); a(f"v_permlane16_swap_b32 {r}, {t}"); a(f"{op} {r}, {r}, {t}")
        a(f"v_mov_b32 {t}, {r}"); a(f"v_permlane32_swap_b32 {r}, {t}"); a(f"{op} {r}, {r}, {t}")
    def rows_scatter(r0, r1, r2, r3):
        a(f"v_permlane16_swap_b32 {r0}, {r1}"); a(f"v_permlane16_swap_b32 {r2}, {r3}")
        a(f"v_add_f32 {r0}, {r0}, {r1}"); a(f"v_add_f32 {r2}, {r2}, {r3}")
        a(f"v_permlane32_swap_b32 {r0}, {r2}"); a(f"v_add_f32 {r0}, {r0}, {r2}")
    def selector(b, src):
        for j in range(4): a(f"v_and_b32 v{b+j}, {src}, v{MASK[j]}")
    def mfma(A_, B_, first=False, dst=None):
        d = v4(D if dst is None else dst)
        a(f"v_mfma_f32_16x16x32_bf16 {d}, {v4(A_)}, {v4(B_)}, {'0' if first else d}")
    def setexec(m):
        a(f"s_mov_b32 exec_lo, {hex(m & 0xffffffff)}"); a(f"s_mov_b32 exec_hi, {hex(m >> 32)}")
    def tagcheck(quads, t0, t1, t2):
        tmp = []
        first = True
        for qd in quads:
            a(f"v_bitop3_b32 {t1}, v{qd}, v{qd+1}, {TAG} bitop3:0x7e")
            a(f"v_bitop3_b32 {t2}, v{qd+2}, v{qd+3}, {TAG} bitop3:0x7e")
            if first: a(f"v_or_b32 {t0}, {t1}, {t2}"); first = False
            else: a(f"v_or3_b32 {t0}, {t0}, {t1}, {t2}")
        a(f"v_and_b32 {t0}, {TLOW}, {t0}")
        a(f"v_cmp_ne_u32 vcc, 0, {t0}")
    def poll(name, loads, quads, sleep):
        if diag and "wts" in names and name in ("L_p1", "L_p2"): a("s_waitcnt vmcnt(0)"); stamp("wts")
        a.mark("force")
        a(f"s_mov_b32 {CNT}, 0x40000")
        a.mark("nopad", 1)
        n = len(loads)
        if not mpoll:
            a.label(name)
            for l in loads: a(l)
            a("s_waitcnt vmcnt(0)")
            tagcheck(quads, f"v{T[0]}", f"v{T[1]}", f"v{T[2]}")
            a(f"s_cbranch_vccz {name}_ok")
            if sleep: a(f"s_sleep {sleep}")
        else:
            M = [f"s[{4+2*i}:{5+2*i}]" for i in range(n)]
            for m in M: a(f"s_mov_b64 {m}, -1")
            a.label(name)
            for m, l in zip(M, loads):
                if n > 1: a(f"s_mov_b64 exec, {m}")
                a(l)
            for i, (m, qd) in enumerate(zip(M, quads)):
                if n > 1: a(f"s_mov_b64 exec, {m}")
                if i == 0: a("s_waitcnt vmcnt(0)")
                a(f"v_bitop3_b32 v{T[1]}, v{qd}, v{qd+1}, {TAG} bitop3:0x7e")
                a(f"v_bitop3_b32 v{T[2]}, v{qd+2}, v{qd+3}, {TAG} bitop3:0x7e")
                a(f"v_bitop3_b32 v{T[1]}, v{T[1]}, v{T[2]}, {TLOW} bitop3:0xa8")
                a(f"v_cmp_ne_u32 {m}, 0, v{T[1]}")
            if n == 1:
                a(f"s_and_b64 exec, {M[0]}, {M[0]}")
            else:
                a(f"s_or_b64 vcc, {M[0]}, {M[1]}")
                if n == 3: a(f"s_or_b64 vcc, vcc, {M[2]}")
            a(f"s_cbranch_scc0 {name}_ok")
            if sleep: a(f"s_sleep {sleep}")
        a(f"s_sub_u32 {CNT}, {CNT}, 1"); a(f"s_cmp_lg_u32 {CNT}, 0"); a(f"s_cbranch_scc1 {name}")
        a.label(name + "_ok")
        if mpoll: a("s_mov_b64 exec, -1")
        a.mark("nopad", 0)
        if diag and "polls" in names and name in ("L_p1", "L_p2", "L_p3"):
            i = names.index("polls"); a(f"s_sub_u32 s{80+2*i}, 0x40001, {CNT}")
    def ppoll(name, load, canon, bufs, sleep=0, space=0, first=None):
        if diag and "wts" in names and name == "L_p1": a("s_waitcnt vmcnt(0)"); stamp("wts")
        n = len(canon); depth = len(bufs)
        P = [f"s[{4+2*i}:{5+2*i}]" for i in range(n)]
        a.mark("force")
        a(f"s_mov_b32 {CNT}, 0x40000")
        a.mark("nopad", 1)
        for m in P: a(f"s_mov_b64 {m}, -1")
        for k in range(depth - 1):
            for i in range(n): a(load(i, bufs[k][i]))
            if space: a(f"s_sleep {space}")
        if first:
            assert depth == 1
            for i in range(n): a(load(i, bufs[0][i]))
            a.mark("nopad", 0); first(n); a.mark("nopad", 1)
            a(f"s_branch {name}_chk")
            a.label(name + "_re")
        a.label(name)
        for k in range(depth):
            for i in range(n):
                a(f"s_or_b64 exec, {P[i]}, 1"); a(load(i, bufs[(k + depth - 1) % depth][i]))
            if space: a(f"s_sleep {space}")
            if first: a.label(name + "_chk")
            for i in range(n):
                qd = bufs[k][i]
                a(f"s_mov_b64 exec, {P[i]}")
                if i == 0: a(f"s_waitcnt vmcnt({n * (depth - 1)})")
                if n > 1 and skipz: a(f"s_cbranch_execz {name}_z{k}{i}")
                a(f"v_bitop3_b32 v{T[1]}, v{qd}, v{qd+1}, {TAG} bitop3:0x7e")
                a(f"v_bitop3_b32 v{T[2]}, v{qd+2}, v{qd+3}, {TAG} bitop3:0x7e")
                a(f"v_bitop3_b32 v{T[1]}, v{T[1]}, v{T[2]}, {TLOW} bitop3:0xa8")
                for r in range(4): a(f"v_and_b32 v{canon[i]+r}, {TMASK}, v{qd+r}")
                a(f"v_cmp_ne_u32 {P[i]}, 0, v{T[1]}")
                if n > 1 and skipz: a.label(f"{name}_z{k}{i}")
            if diag and "h1" in names and name == "L_p2":
                h = [f"s{80+2*names.index(x)}" for x in ("h1", "h2", "h3", "m")]
                a(f"s_mov_b32 {h[2]}, {h[1]}"); a(f"s_mov_b32 {h[1]}, {h[0]}")
                a(f"s_memrealtime s[{h[0][1:]}:{int(h[0][1:])+1}]"); a("s_waitcnt lgkmcnt(0)")
                a(f"s_bcnt1_i32_b64 s3, {P[0]}"); a(f"s_bcnt1_i32_b64 s62, {P[1]}"); a("s_add_u32 s3, s3, s62"); a("s_lshr_b32 s3, s3, 4")
                a(f"s_lshl_b32 {h[3]}, {h[3]}, 4"); a(f"s_or_b32 {h[3]}, {h[3]}, s3"); a(f"s_and_b32 {h[3]}, {h[3]}, 0xffff")
            if n == 1: a(f"s_cmp_lg_u64 {P[0]}, 0")
            else:
                a(f"s_or_b64 vcc, {P[0]}, {P[1]}")
                if n == 3: a(f"s_or_b64 vcc, vcc, {P[2]}")
            a(f"s_cbranch_scc0 {name}_ok")
            if sleep: a(f"s_sleep {sleep}")
        a(f"s_sub_u32 {CNT}, {CNT}, 1"); a(f"s_cmp_lg_u32 {CNT}, 0"); a(f"s_cbranch_scc1 {name}")
        a.label(name + "_ok")
        a("s_mov_b64 exec, -1")
        a.mark("nopad", 0)
        if diag and "polls" in names and name in ("L_p1", "L_p2", "L_p3"):
            i = names.index("polls"); a(f"s_sub_u32 s{80+2*i}, 0x40001, {CNT}")
    def spoll(name, addr, regs, lanes, space):
        depth = len(regs)
        a.mark("force")
        a(f"s_mov_b32 {CNT}, 0x2000")
        a.mark("nopad", 1)
        a(f"s_mov_b64 exec, {hex(lanes)}"); a(f"s_mov_b64 s[4:5], {hex(lanes)}")
        ld = lambda r: f"buffer_load_dword v{r}, {addr}, {sWS}, 0 offen sc1"
        for k in range(depth - 1):
            a(ld(regs[k])); a(f"s_sleep {space}")
        a.label(name)
        for k in range(depth):
            a("s_or_b64 exec, s[4:5], 1"); a(ld(regs[(k + depth - 1) % depth]))
            a("s_mov_b64 exec, s[4:5]")
            a(f"s_sleep {space}")
            a(f"s_waitcnt vmcnt({depth - 1})")
            a(f"v_bitop3_b32 v{T[1]}, v{regs[k]}, {VTAG}, {TLOW} bitop3:0x28")
            a(f"v_cmp_ne_u32 s[4:5], 0, v{T[1]}")
            a("s_cmp_lg_u64 s[4:5], 0"); a(f"s_cbranch_scc0 {name}_ok")
        a(f"s_sub_u32 {CNT}, {CNT}, 1"); a(f"s_cmp_lg_u32 {CNT}, 0"); a(f"s_cbranch_scc1 {name}")
        a.label(name + "_ok")
        a("s_mov_b64 exec, -1")
        a.mark("nopad", 0)
    def mfma_chain(n, src_of, A_of, pre=None):
        src_of(0)
        for t in range(n):
            selector(B[t & 1], src_of.reg(t))
            if t + 1 < n: src_of(t + 1)
            if pre: pre(t)
            mfma(A_of(t), B[t & 1], first=(t == 0))

    a.label(KNAME)
    a("s_cmp_ge_u32 s2, 256"); a("s_cbranch_scc1 L_exit")
    if diag:
        for i in range(8): a(f"s_mov_b32 s{80+2*i}, 0")
    stamp("start")
    if amp: a("s_memrealtime s[92:93]")
    a("s_load_dwordx16 s[4:19], s[0:1], 0"); a("s_load_dwordx8 s[20:27], s[0:1], 64")
    a("v_lshrrev_b32 v1, 6, v0"); a("v_and_b32 v0, 63, v0")
    a(f"v_readfirstlane_b32 {WAVE}, v1")
    a(f"s_and_b32 {HEAD}, s2, 7"); a(f"s_lshl_b32 {HEAD}, {HEAD}, 2"); a("s_bfe_u32 s3, s2, 0x20003"); a(f"s_add_u32 {HEAD}, {HEAD}, s3")
    a(f"s_lshr_b32 {SPLIT}, s2, 5")
    a(f"v_lshlrev_b32 v{T[0]}, 4, {LANE}")
    a("s_movk_i32 s46, 1152"); a("s_mov_b32 s47, 0x20000")
    a(f"s_sub_u32 {WAVE}, {WAVE}, 1"); a("s_cbranch_scc1 L_helper")
    a(f"s_lshl_b32 s60, {HEAD}, 21"); a(f"s_lshl_b32 s61, {SPLIT}, 18"); a("s_add_u32 s62, s60, s61")
    a("s_mov_b32 s34, 0x40000"); a("s_mov_b32 s35, 0x20000"); a("s_mov_b32 s38, 0x40000"); a("s_mov_b32 s39, 0x20000")
    if kvg:
        a(f"s_lshl_b32 s3, {WAVE}, 8"); a(f"v_and_b32 {VKV}, 0xf0, v{T[0]}"); a(f"v_lshrrev_b32 v{T[1]}, 4, {LANE}")
        a(f"v_lshl_add_u32 {VKV}, v{T[1]}, {8 + kvg}, {VKV}"); a(f"v_add_u32 {VKV}, s3, {VKV}")
    else:
        a(f"s_lshl_b32 s3, {WAVE}, 10"); a(f"v_add_u32 {VKV}, s3, v{T[0]}")
    a("s_mov_b32 s60, 0")
    if evt:
        a("s_getreg_b32 s72, hwreg(HW_REG_XCC_ID, 0, 3)"); a("s_lshl_b32 s72, s72, 2")
        a(f"s_lshr_b32 s72, {hex(sum((t // 2) << (4 * i) for i, t in enumerate(evt)))}, s72"); a("s_and_b32 s72, s72, 15"); a("s_lshl_b32 s72, s72, 1")
    if evp:
        a("s_getreg_b32 s72, hwreg(HW_REG_XCC_ID, 0, 3)"); a(f"s_lshr_b32 s72, {0xff & ~evmask}, s72"); a("s_and_b32 s72, s72, 1")
        a("s_mov_b32 s73, 0")
    if par: a("s_getreg_b32 s72, hwreg(HW_REG_XCC_ID, 0, 1)"); a("s_mov_b32 vcc_lo, s72"); a("s_mov_b32 vcc_hi, 0")
    a("s_waitcnt lgkmcnt(0)")
    stamp("karg")
    a("s_add_u32 s32, s6, s62"); a("s_addc_u32 s33, s7, 0")

    def late_setup():
        a(f"s_load_dword {EP1}, s[26:27], {EPOCH}")
        a("s_mov_b32 s44, s4"); a("s_mov_b32 s45, s5"); a("s_mov_b32 s43, 0x20000")
        a("s_mov_b32 s48, s26"); a("s_mov_b32 s49, s27"); a("s_mov_b32 s50, 0x400000"); a("s_mov_b32 s51, 0x20000")
        a("s_mov_b32 s56, s22"); a("s_mov_b32 s57, s23"); a("s_movk_i32 s58, 1152"); a("s_mov_b32 s59, 0x20000")
        a(f"s_mov_b32 {SCALE}, {f32(128 ** -0.5)}"); a(f"s_mov_b32 {LOG2E}, {f32(1.4426950408889634)}")
        a(f"s_mov_b32 {HI}, 0xffff0000"); a(f"s_mov_b32 {TMASK}, 0xfffff000"); a(f"s_movk_i32 {TLOW}, 0xfff")
        a(f"v_and_b32 v{T[4]}, 1, {LANE}"); a(f"v_lshlrev_b32 v{T[4]}, 4, v{T[4]}")
        a(f"v_mov_b32 v{T[5]}, 0xffff"); a(f"v_lshlrev_b32 v{T[5]}, v{T[4]}, v{T[5]}")
        a(f"v_bfe_u32 v{T[4]}, {LANE}, 1, 2")
        for j in range(4):
            a(f"v_cmp_eq_u32 vcc, {j}, v{T[4]}"); a(f"v_cndmask_b32 v{MASK[j]}, 0, v{T[5]}, vcc")
        if dyn: a("s_mov_b32 s96, s24"); a("s_mov_b32 s97, s25"); a("s_movk_i32 s98, 256"); a("s_mov_b32 s99, 0x20000")
        if not dyn:
            a("s_lshr_b32 s24, s2, 3")
            if rperm:
                c1 = rperm - 1
                a("s_lshr_b32 s3, s2, 5"); a("s_and_b32 s78, s24, 3")
                a(f"s_cmp_gt_u32 s78, {c1}"); a("s_cselect_b32 s62, 1, 0"); a("s_sub_u32 s62, s78, s62")
                a("s_lshl_b32 s62, s62, 3"); a("s_add_u32 s62, s62, s3"); a("s_add_u32 s62, s62, 3")
                a("s_add_u32 s24, s3, 24"); a("s_cmp_lt_u32 s3, 3"); a("s_cselect_b32 s24, s3, s24")
                a(f"s_cmp_eq_u32 s78, {c1}"); a("s_cselect_b32 s24, s24, s62")
            a("s_and_b32 s3, s2, 7"); a("s_mul_i32 s78, s3, 18"); a("s_add_u32 s78, s78, s24")
            a("s_lshl_b32 s62, s24, 3"); a("s_add_u32 s62, s62, s3")
            a("s_cmp_lt_u32 s24, 18"); a(f"s_cselect_b32 {RID}, s78, s62")
            role_setup()
    def role_setup():
        u = role_setup.n = getattr(role_setup, "n", 0) + 1
        a("s_mov_b32 s55, 0x20000")
        a(f"s_cmp_lt_u32 {RID}, 144"); a(f"s_cbranch_scc0 L_r1_{u}")
        a(f"s_mov_b32 {ROLE}, {RID}")
        a(f"s_mul_i32 s3, {ROLE}, {32*1152}"); a("s_add_u32 s52, s20, s3"); a("s_addc_u32 s53, s21, 0")
        a(f"s_mov_b32 s54, 0"); a("s_mov_b32 s63, 0x40000000")
        a(f"s_lshl_b32 s3, {WAVE}, 7")
        a(f"s_branch L_r2_{u}")
        a.label(f"L_r1_{u}")
        a(f"s_sub_u32 {ROLE}, {RID}, 144"); a(f"s_lshr_b32 {ROLE}, {ROLE}, 3")
        a(f"s_and_b32 s3, {RID}, 7"); a(f"s_mul_i32 s3, s3, {512*1152}"); a(f"s_lshl_b32 s62, {ROLE}, 7")
        a(f"s_sub_u32 s54, {512*1152}, s62"); a("s_add_u32 s3, s3, s62")
        a(f"s_cmp_lt_u32 {RID}, 216"); a("s_cselect_b32 s54, s54, 0"); a("s_cselect_b32 s3, s3, 0")
        a("s_add_u32 s52, s12, s3"); a("s_addc_u32 s53, s13, 0")
        a(f"s_mov_b32 s63, {32*1152}"); a(f"s_mul_i32 s3, {WAVE}, {64*1152}")
        a.label(f"L_r2_{u}")
        a("s_movk_i32 s76, 4608"); a("s_add_u32 s77, s63, s76")
        a(f"v_lshrrev_b32 v{T[4]}, 4, {LANE}"); a(f"v_bfe_u32 v{T[5]}, {LANE}, 3, 1"); a(f"v_lshl_add_u32 v{T[4]}, v{T[4]}, 3, v{T[5]}")
        a(f"v_mul_u32_u24 v{T[4]}, 1152, v{T[4]}")
        a(f"v_and_b32 v{T[5]}, 7, {LANE}"); a(f"v_lshl_add_u32 v{T[4]}, v{T[5]}, 4, v{T[4]}")
        a(f"v_add_u32 {VG}, s3, v{T[4]}")
    def touch_setup():
        a("s_mov_b32 s3, s24"); a("s_sub_u32 s62, s3, 9"); a("s_cmp_lt_u32 s3, 18"); a("s_cselect_b32 s62, s3, s62")
        a("s_mul_i32 s62, s62, 26"); a("s_sub_u32 s42, 576, s62"); a("s_min_u32 s42, s42, 26")
        a("s_mul_i32 s42, s42, 9216"); a(f"s_sub_u32 s42, s42, {9216-1152}")
        a("s_sub_u32 s3, s3, 18"); a("s_cmp_lt_u32 s3, 9"); a("s_cselect_b32 s42, 0, s42"); a("s_cselect_b32 s62, 0, s62")
        a("s_mul_i32 s62, s62, 9216"); a("s_and_b32 s3, s2, 7"); a("s_mul_i32 s3, s3, 1152"); a("s_add_u32 s62, s62, s3")
        a(f"s_bitcmp1_b32 {WAVE}, 0"); a("s_cselect_b32 s40, s18, s16"); a("s_cselect_b32 s41, s19, s17")
        a("s_add_u32 s40, s40, s62"); a("s_addc_u32 s41, s41, 0")
        if gate: a("s_mov_b32 s15, s42"); a("s_mov_b32 s14, 0")
        if tu > 1:
            a("s_mov_b32 s14, s42")
            if tu == 2: a(f"s_bitcmp1_b32 {WAVE}, 0")
            else: a(f"s_cmp_ge_u32 {WAVE}, {tu - 1}")
            a("s_cselect_b32 s42, 0, s42"); a("s_cselect_b32 s14, s14, 0")
    def touch_lane(dst):
        a(f"s_lshr_b32 s3, {WAVE}, 1"); a("s_lshl_b32 s3, s3, 6"); a(f"v_add_u32 v{T[1]}, s3, {LANE}")
        a(f"s_mov_b32 s3, {-(-(1 << 32) // 9)}"); a(f"v_mul_hi_u32 v{T[2]}, v{T[1]}, s3")
        a(f"v_mul_u32_u24 v{T[3]}, 9, v{T[2]}"); a(f"v_sub_u32 v{T[1]}, v{T[1]}, v{T[3]}")
        a(f"v_mul_u32_u24 v{T[2]}, 9216, v{T[2]}"); a(f"v_lshl_add_u32 {dst}, v{T[1]}, 7, v{T[2]}")
    def gload(i, r):
        so = ("0", "s76", "s63", "s77")[i >> 1]
        a(f"buffer_load_dwordx4 {v4(r)}, {VG}, {sG}, {so} offen offset:{(i & 1) * 2304} {wpol if gpol is None else gpol}")
    def bcast_src(src):
        def f(t):
            d = f.reg(t)
            a(f"v_mov_b32_dpp {d}, {src} row_newbcast:{2*t} row_mask:0xf bank_mask:0x3")
            a(f"v_mov_b32_dpp {d}, {src} row_newbcast:{2*t+1} row_mask:0xf bank_mask:0xc")
        f.reg = lambda t: f"v{T[6 + (t & 1)]}"
        return f
    def part_addr(dst, two):
        a(f"s_lshl_b32 s3, {WAVE}, 9"); a(f"s_add_u32 s3, s3, {L_P}")
        a(f"v_lshrrev_b32 {dst}, 4, {LANE}"); a(f"v_lshlrev_b32 {dst}, 7, {dst}")
        a(f"v_and_b32 v{T[7]}, 7, {LANE}"); a(f"v_lshl_add_u32 {dst}, v{T[7]}, 4, {dst}"); a(f"v_add_u32 {dst}, s3, {dst}")
    def add4(d, x):
        if pk:
            for r in (0, 2): a(f"v_pk_add_f32 v[{d+r}:{d+r+1}], v[{d+r}:{d+r+1}], v[{x+r}:{x+r+1}]")
        else:
            for r in range(4): a(f"v_add_f32 v{d+r}, v{d+r}, v{x+r}")
    def sum_parts(addr, dst, tmp, n, stride):
        regs = [dst] + tmp[:n-1]
        for i in range(n): a(f"ds_read_b128 {v4(regs[i])}, {addr} offset:{L_P + i * stride}")
        for i in range(1, n):
            a(f"s_waitcnt lgkmcnt({n-1-i})")
            add4(dst, regs[i])
    def tag_setup():
        a(f"s_add_u32 {EP1}, {EP1}, 1"); a(f"s_and_b32 {TAG}, {EP1}, 0xfff"); a(f"v_mov_b32 {VTAG}, {TAG}")

    order = []; free = list(range(NSLOT)); slot_of = {}
    def alloc(item):
        s = free.pop(0); slot_of[item] = SLOT0 + 4 * s; return slot_of[item]
    def release(item): free.append((slot_of[item] - SLOT0) // 4)
    def issue(item):
        k, i = item
        if k == "k" or k == "v":
            r = alloc(item)
            if item == ("v", 0): a("s_mov_b32 s60, 0")
            a(f"buffer_load_dwordx4 {v4(r)}, {VKV}, {sK if k == 'k' else sV}, s60 offen {pol}")
            if kvg:
                sp = lambda n: (((n >> kvg) << (kvg + 2)) | (n & ((1 << kvg) - 1))) * 256
                d = sp(8 * (i + 1)) - sp(8 * i)
                a(f"s_addk_i32 s60, {d}" if d < 32768 else f"s_add_u32 s60, s60, {d}")
            else: a("s_addk_i32 s60, 0x2000")
        elif k == "t":
            if gate:
                a("s_waitcnt lgkmcnt(0)"); a(f"v_readfirstlane_b32 s3, v{Q}")
                a("s_cmp_eq_u32 s3, 0"); a("s_cselect_b32 s14, s15, s14"); a("s_cselect_b32 s42, 0, s42")
            a(f"buffer_load_dword v{S+12}, v{S}, s[40:43], 0 offen"); assert st["pv"] >= 25 or tpos
        elif k == "g":
            r = alloc(item)
            gload(i, r)
        order.append(item)
    known = [-1]
    def wait_idx(idx):
        if idx > known[0]:
            a(f"s_waitcnt vmcnt({len(order) - 1 - idx})"); known[0] = idx
    def wait_item(item): wait_idx(order.index(item))
    def landed(item): return item in order and order.index(item) <= known[0]

    PLAIN, TWO = 0x00FF00FF00FF00FF, 0xFF00FF0000FF00FF
    VP = VW
    def task_qfin():
        stamp("b1arr")
        if nb & 1:
            a(f"v_mov_b32 v{T[1]}, 0"); a(f"s_mov_b32 {CNT}, 0x400000")
            a.label("L_qw")
            a(f"ds_read_b32 v{T[2]}, v{T[1]} offset:{L_QF}"); a(f"ds_read_b128 {v4(Q)}, v{T[0]} offset:{L_Q}")
            a(f"s_sub_u32 {CNT}, {CNT}, 1"); a("s_cbranch_scc1 L_qw_ok")
            a("s_waitcnt lgkmcnt(0)"); a(f"v_readfirstlane_b32 s3, v{T[2]}"); a("s_cmp_eq_u32 s3, 0"); a("s_cbranch_scc1 L_qw")
            a.label("L_qw_ok")
        else:
            a("s_barrier")
            a(f"ds_read_b128 {v4(Q)}, v{T[0]} offset:{L_Q}")
        a("s_waitcnt lgkmcnt(0)")
        tag_setup()
        stamp("q")
    def task_kq(q):
        wait_item(("k", 4*q+3))
        for x in range(4):
            r = slot_of[("k", 4*q+x)]
            for i in range(4):
                a(f"v_dot2_f32_bf16 v{T[x]}, v{r+i}, v{Q+i}, {'0' if i == 0 else 'v%d' % T[x]}")
            release(("k", 4*q+x))
        allred16([f"v{T[x]}" for x in range(4)])
        a(f"v_cvt_pk_bf16_f32 v{T[4]}, v{T[0]}, v{T[1]}"); a(f"v_cvt_pk_bf16_f32 v{T[5]}, v{T[2]}, v{T[3]}")
        a(f"v_lshlrev_b32 v{T[0]}, 16, v{T[4]}"); a(f"v_and_b32 v{T[1]}, {HI}, v{T[4]}")
        a(f"v_lshlrev_b32 v{T[2]}, 16, v{T[5]}"); a(f"v_and_b32 v{T[3]}, {HI}, v{T[5]}")
        for x in range(4): a(f"v_mul_f32 v{T[x]}, {SCALE}, v{T[x]}")
        a(f"v_cvt_pk_bf16_f32 v{S+2*q}, v{T[0]}, v{T[1]}"); a(f"v_cvt_pk_bf16_f32 v{S+2*q+1}, v{T[2]}, v{T[3]}")
        a(f"v_max3_f32 {VM}, {VM}, v{T[0]}, v{T[1]}"); a(f"v_max3_f32 {VM}, {VM}, v{T[2]}, v{T[3]}")
    PA, PB = f"v{T[5]}", f"v{T[6]}"
    def prep_pv(j):
        if j % 2 == 0:
            a(f"v_lshlrev_b32 {PA}, 16, v{S+j//2}"); a(f"v_and_b32 {PB}, {HI}, v{S+j//2}")
            a(f"v_fma_f32 {PA}, {PA}, {LOG2E}, -{VF}"); a(f"v_fma_f32 {PB}, {PB}, {LOG2E}, -{VF}")
            a(f"v_exp_f32 {PA}, {PA}"); a(f"v_exp_f32 {PB}, {PB}")
        p = PA if j % 2 == 0 else PB
        a(f"v_cvt_pk_bf16_f32 v{T[0]}, {p}, {p}"); a(f"v_add_f32 {VL}, {VL}, {p}")
        selector(B[j & 1], f"v{T[0]}")
    def task_smax():
        allred_rows(VM, f"v{T[0]}", "v_max_f32"); rbf(VM, VM)
        a(f"s_lshl_b32 s3, {WAVE}, 2"); a(f"v_mov_b32 v{T[0]}, s3")
        a(f"ds_write_b32 v{T[0]}, {VM} offset:{L_MW}")
        if nb & 2: a(f"v_mov_b32 v{T[1]}, 1"); a(f"ds_write_b32 v{T[0]}, v{T[1]} offset:{L_MF}")
        a(f"v_mul_f32 {VF}, {LOG2E}, {VM}")
        stamp("kend")
        if yp == 2: a("s_setprio 0")
        prep_pv(0)
    def wgmax(dst):
        a(f"v_mov_b32 v{T[0]}, 0")
        a(f"ds_read_b128 {v4(Q)}, v{T[0]} offset:{L_MW}"); a(f"ds_read_b128 v[{T[1]+1}:{T[1]+4}], v{T[0]} offset:{L_MW+16}")
        a("s_waitcnt lgkmcnt(0)")
        a(f"v_max3_f32 {dst}, v{Q}, v{Q+1}, v{Q+2}"); a(f"v_max3_f32 {dst}, {dst}, v{Q+3}, v{T[1]+1}")
        a(f"v_max3_f32 {dst}, {dst}, v{T[1]+2}, v{T[1]+3}"); a(f"v_max_f32 {dst}, {dst}, v{T[1]+4}")
    def task_pv(j):
        wait_item(("v", j))
        mfma(slot_of[("v", j)], B[j & 1], first=(j == 0)); release(("v", j))
        if j == jB2:
            assert j % 2 == 1
            if nb & 2:
                a(f"v_mov_b32 v{T[0]}, 0"); a(f"s_mov_b32 {CNT}, 0x400000")
                a.label("L_mw")
                a(f"ds_read_b128 {v4(Q)}, v{T[0]} offset:{L_MF}"); a(f"ds_read_b128 v[{T[1]+1}:{T[1]+4}], v{T[0]} offset:{L_MF+16}")
                a(f"s_sub_u32 {CNT}, {CNT}, 1"); a("s_cbranch_scc1 L_mw_ok")
                a("s_waitcnt lgkmcnt(0)")
                a(f"v_min3_u32 v{T[1]}, v{Q}, v{Q+1}, v{Q+2}"); a(f"v_min3_u32 v{T[1]}, v{T[1]}, v{Q+3}, v{T[1]+1}")
                a(f"v_min3_u32 v{T[1]}, v{T[1]}, v{T[1]+2}, v{T[1]+3}"); a(f"v_min_u32 v{T[1]}, v{T[1]}, v{T[1]+4}")
                a(f"v_readfirstlane_b32 s3, v{T[1]}"); a("s_cmp_eq_u32 s3, 0"); a("s_cbranch_scc1 L_mw")
                a.label("L_mw_ok")
                a("s_waitcnt lgkmcnt(0)")
            else:
                a("s_waitcnt lgkmcnt(0)"); a("s_barrier")
            wgmax(f"v{T[1]}")
            a(f"v_sub_f32 {VM}, {VM}, v{T[1]}"); a(f"v_mul_f32 {VM}, {LOG2E}, {VM}"); a(f"v_exp_f32 {VM}, {VM}")
            a(f"v_mul_f32 {VF}, {LOG2E}, v{T[1]}")
            if tu: touch_lane(f"v{S}")
            a(f"v_mul_f32 {VL}, {VL}, {VM}")
            for r in range(4): a(f"v_mul_f32 v{D+r}, v{D+r}, {VM}")
        if j == 30:
            prep_pv(31)
            allred_rows(VL, f"v{T[0]}")
            a(f"s_lshl_b32 s3, {WAVE}, 2"); a(f"v_mov_b32 v{T[0]}, s3"); a(f"ds_write_b32 v{T[0]}, {VL} offset:{L_LW}")
            return
        if j < 31: prep_pv(j + 1)

    seq = [("k", i) for i in range(32)] + [("v", i) for i in range(32)] + [("g", i) for i in range(EW)]
    if gs:
        seq = [it for it in seq if it[0] != "g"]
        for i in range(EW):
            seq.insert(seq.index(("v", 31 - ge - (EW - 1 - i) * gs)) + 1, ("g", i))
    if tu: seq.insert(seq.index(("v", 31)) + 1 - tpos, ("t", 0))
    def xbar(tag):
        if xb > 1: a(f"s_sub_u32 s3, {RID}, 144"); a("s_cmp_lt_u32 s3, 72"); a(f"s_cbranch_scc{1 if xb == 2 else 0} L_xb{tag}")
        a("s_barrier")
        if xb > 1: a.label(f"L_xb{tag}")
    st = dict(q=False, kq=0, sm=False, pv=0)
    def run_ready(force=False):
        did = False; n = 0
        if not st["q"]: return False
        if st["kq"] < 8:
            it = ("k", 4 * st["kq"] + 3)
            if landed(it) or (force and it in order): task_kq(st["kq"]); st["kq"] += 1; did = True
            if st["kq"] == 8: task_smax(); st["sm"] = True
            return did
        while st["pv"] < 32 and n < 2 and (landed(("v", st["pv"])) or (force and not did and ("v", st["pv"]) in order)):
            task_pv(st["pv"]); st["pv"] += 1; n += 1; did = True
        return did
    for n, item in enumerate(seq):
        if n == (min(par) if par else (W0 or Wn)):
            a("s_add_u32 s36, s8, s62"); a("s_addc_u32 s37, s9, 0")
            late_setup()
            if yp: a(f"s_cmp_lt_u32 {WAVE}, 4"); a("s_cbranch_scc1 L_yp"); a("s_setprio 1"); a.label("L_yp")
            if tu: touch_setup()
            if evp: assert ev0 > n; a("s_mov_b64 vcc, s[72:73]")
            elif par: a("s_mov_b32 vcc_lo, s72"); a("s_mov_b32 vcc_hi, 0")
            part_addr(VP, False)
            a(f"v_and_b32 v{T[0]}, 0xf0, v{T[0]}")
            a(f"v_mov_b32 {VM}, 0xff800000"); a(f"v_mov_b32 {VL}, 0")
            if nb: a("s_barrier")
        W = Wv if item[0] in "vgt" else Wn
        if n < n0: W = W0
        if Walt and n >= 8: W = Walt[n % len(Walt)]
        if item[0] in "kv":
            prev = [i for i, it in enumerate(order) if it[0] in "kv"]
            if adapt and item[0] == "v":
                if item[1] == jA - 1:
                    a(f"v_mov_b32 v{Q}, 0"); a(f"ds_read_b32 v{Q}, v{Q} offset:{L_ROLE+8}")
                if item[1] == jA:
                    a("s_waitcnt lgkmcnt(0)"); a(f"v_readfirstlane_b32 s72, v{Q}"); st["mode"] = True
                    if diag and "rank" in names: a(f"s_add_u32 s{80+2*names.index('rank')}, s72, 1")
                W = Wv if st.get("mode") else Wn
            if thr and n == nA - 1:
                a(f"v_mov_b32 v{T[7]}, 0"); a(f"ds_read_b32 v{T[7]}, v{T[7]} offset:{L_ROLE+8}")
                a("s_waitcnt lgkmcnt(0)"); a(f"v_readfirstlane_b32 s72, v{T[7]}")
                if diag and "rank" in names: a(f"s_add_u32 s{80+2*names.index('rank')}, s72, 1")
            if len(prev) >= W: wait_idx(prev[-W])
            if evt and ev0 <= n < max(evt):
                a(f"s_cmp_le_u32 s72, {n}"); a(f"s_cbranch_scc1 L_ev{n}"); a(f"s_waitcnt vmcnt({len(order) - 1 - prev[-evw]})"); a.label(f"L_ev{n}")
            if evp and ev0 <= n < evh:
                a(f"s_cbranch_vccnz L_ev{n}"); a(f"s_waitcnt vmcnt({len(order) - 1 - prev[-2]})"); a.label(f"L_ev{n}")
            elif evp and ev0 <= n < ev1 and evp[n % len(evp)] < W:
                a(f"s_cbranch_vccnz L_ev{n}"); a(f"s_waitcnt vmcnt({len(order) - 1 - prev[-evp[n % len(evp)]]})"); a.label(f"L_ev{n}")
            if thr and nA <= n < nE:
                u = f"L_th{n}"; used = False; cur = W
                for ci, (below, pat) in reversed(list(enumerate(thr))):
                    w_ = pat[n % len(pat)]
                    if ci == 1 and nE2 and n >= nE2: continue
                    if w_ >= cur: continue
                    a(f"s_cmp_ge_u32 s72, {below}"); a(f"s_cbranch_scc1 {u}")
                    a(f"s_waitcnt vmcnt({len(order) - 1 - prev[-w_]})"); used = True; cur = w_
                if used: a.label(u)
            if n == W: stamp("k0")
            if n == W + 4: stamp("k4")
            if par and len(prev) >= min(par):
                u = f"L_pw{n}"
                a(f"s_cbranch_{'vccnz' if par[1] > par[0] else 'vccz'} {u}")
                a(f"s_waitcnt vmcnt({len(order) - 1 - prev[-min(par)]})")
                a.label(u)
            if adapt and st.get("mode") and item[0] == "v":
                u = f"L_aw{item[1]}"
                a(f"s_cmp_ge_u32 s72, {adapt[4]}"); a(f"s_cbranch_scc1 {u}")
                a(f"s_waitcnt vmcnt({len(order) - 1 - prev[-adapt[1]]})")
                if adapt[0] != adapt[1]:
                    a(f"s_cmp_ge_u32 s72, {adapt[3]}"); a(f"s_cbranch_scc1 {u}")
                    a(f"s_waitcnt vmcnt({len(order) - 1 - prev[-adapt[0]]})")
                a.label(u)
        while not free: assert run_ready(force=True)
        if xb and n and seq[n - 1] == ("v", 31): xbar("s")
        if gate and item == ("v", 31): a(f"v_mov_b32 v{Q}, 0"); a(f"ds_read_b32 v{Q}, v{Q} offset:{L_ROLE+8}")
        issue(item)
        if n == nK - 1: task_qfin(); st["q"] = True
        run_ready()
    while st["pv"] < 31: assert run_ready(force=True)
    setexec(PLAIN) if st["pv"] == 32 else None
    if st["pv"] == 31:
        task_pv(31); st["pv"] = 32; setexec(PLAIN)
    stamp("vend")
    if yp == 1: a("s_setprio 0")
    a(f"ds_write_b128 {VP}, {v4(D)}")
    a("s_mov_b64 exec, -1")
    a("s_waitcnt lgkmcnt(0)"); stamp("oadd"); a("s_barrier")
    if dyn:
        a(f"v_mov_b32 v{T[0]}, 0"); a(f"ds_read_b32 v{T[0]}, v{T[0]} offset:{L_ROLE}")
        a("s_waitcnt lgkmcnt(0)"); a(f"v_readfirstlane_b32 {RID}, v{T[0]}")
        role_setup()
    if fast1:
        a(f"v_mov_b32 v{T[0]}, 0"); a(f"ds_read_b32 v{T[0]}, v{T[0]} offset:{L_ROLE+4}")
        a("s_waitcnt lgkmcnt(0)"); a(f"v_readfirstlane_b32 s61, v{T[0]}")
    else: a("s_mov_b32 s61, 0")
    def b4(tag):
        if tag: a(f"s_cmp_eq_u32 {WAVE}, 8"); a(f"s_cbranch_scc1 L_b4{tag}")
        a("s_barrier")
        if tu > 1 or gate: a("s_mov_b32 s42, s14"); a(f"buffer_load_dword v{S+11}, v{S}, s[40:43], 0 offen")
        if tag: a.label(f"L_b4{tag}")
    if not pre: b4("")
    for i in range(EW, 8): alloc(("g", i))
    G = [slot_of[("g", i)] for i in range(8)]
    F = [SLOT0 + 4 * s for s in free]
    assert len(F) >= 20
    a("s_branch L_tail")

    a.label("L_helper")
    a("s_setprio 3")
    a(f"s_mov_b32 {WAVE}, 8")
    a(f"s_lshl_b32 s63, {HEAD}, 8"); a(f"s_sub_u32 s42, {576*8192}, s63"); a("s_mov_b32 s43, 0x20000")
    a(f"v_lshrrev_b32 v{T[1]}, 4, {LANE}"); a(f"v_mul_u32_u24 v{T[2]}, 18, v{T[1]}")
    a(f"s_mul_i32 s3, {SPLIT}, 72"); a(f"v_add_u32 v{T[2]}, s3, v{T[2]}")
    a(f"v_and_b32 v{T[3]}, 0xf0, v{T[0]}"); a(f"v_lshl_add_u32 {VW}, v{T[2]}, 13, v{T[3]}")
    a(f"v_lshlrev_b32 v{T[2]}, 1, v{T[2]}")
    a("s_mov_b32 s61, 0")
    a("s_waitcnt lgkmcnt(0)")
    a("s_mov_b32 s44, s4"); a("s_mov_b32 s45, s5")
    a("s_add_u32 s40, s10, s63"); a("s_addc_u32 s41, s11, 0")
    x0, x1 = SLOT0, SLOT0 + 4
    WQ = [SLOT0 + 8 + 4 * i for i in range(18)]
    a(f"buffer_load_dwordx4 {v4(x0)}, v{T[0]}, {sX}, 0 offen"); a(f"buffer_load_dwordx4 {v4(x1)}, v{T[0]}, {sX}, 0 offen offset:1024")
    a(f"buffer_load_dwordx4 {v4(S)}, v{T[2]}, {sX}, 0 offen"); a(f"buffer_load_dwordx4 {v4(S+4)}, v{T[2]}, {sX}, 0 offen offset:16")
    a(f"buffer_load_dword v{S+8}, v{T[2]}, {sX}, 0 offen offset:32")
    for t in range(18):
        a(f"buffer_load_dwordx4 {v4(WQ[t])}, {VW}, {sWQ}, s61 offen {wqpol}"); a("s_addk_i32 s61, 0x2000")
    CPF = 1 if codepf > 1 else 0
    def codetouch():
        u = codetouch.n = getattr(codetouch, "n", 0) + 1
        a("s_getpc_b64 s[74:75]"); a.label(f"L_pc{u}")
        a(f"s_sub_u32 s74, s74, L_pc{u}-{KNAME}"); a("s_subb_u32 s75, s75, 0")
        a("s_lshr_b32 s3, s2, 3"); a("s_lshl_b32 s3, s3, 10")
        a(f"v_lshl_add_u32 v{T[5]}, {LANE}, 7, s3"); a(f"v_min_u32 v{T[5]}, L_end-{KNAME}-4, v{T[5]}")
        a("s_mov_b64 exec, 0xff"); a(f"global_load_dword v{T[5]}, v{T[5]}, s[74:75]"); a("s_mov_b64 exec, -1")
    late_setup()
    a("s_mov_b32 s35, 0x20000"); a("s_mov_b32 s39, 0x20000")
    a(f"v_mov_b32 v{B[0]}, 0"); a(f"v_lshlrev_b32 v{T[1]}, 2, {LANE}")
    a(f"ds_write_b32 v{T[1]}, v{B[0]} offset:{L_ST}")
    a(f"v_mov_b32 {VKV}, v{T[0]}")
    if nb: a("s_waitcnt lgkmcnt(0)"); a("s_barrier")
    if CPF: codetouch()
    a(f"s_waitcnt vmcnt({18+CPF})")
    U = [B[0] + i for i in range(8)]
    for i in range(4):
        a(f"v_lshlrev_b32 v{U[2*i]}, 16, v{x0+i}"); a(f"v_and_b32 v{U[2*i+1]}, {HI}, v{x0+i}")
    U2 = [x0 + i for i in range(4)] + [Q + i for i in range(4)]
    for i in range(4): a(f"v_lshlrev_b32 v{U2[2*i]}, 16, v{x1+i}")
    for i in range(4): a(f"v_and_b32 v{U2[2*i+1]}, {HI}, v{x1+i}")
    sm = f"v{T[0]}"; t_ = f"v{T[1]}"; q2 = f"v{T[2]}"
    a(f"v_add_f32 {sm}, v{U[0]}, v{U[1]}")
    for r in U[2:] + U2: a(f"v_add_f32 {sm}, {sm}, v{r}")
    allred16([sm]); allred_rows(sm, t_)
    a(f"v_mul_f32 {sm}, {f32(1/576)}, {sm}")
    for r in U: a(f"v_sub_f32 v{r}, v{r}, {sm}")
    a(f"v_mul_f32 {q2}, v{U[0]}, v{U[0]}")
    for r in U[1:]: a(f"v_fmac_f32 {q2}, v{r}, v{r}")
    a("s_mov_b64 exec, 0xff")
    for r in U2: a(f"v_sub_f32 v{r}, v{r}, {sm}")
    for r in U2: a(f"v_fmac_f32 {q2}, v{r}, v{r}")
    a("s_mov_b64 exec, -1")
    allred16([q2]); allred_rows(q2, t_)
    a(f"v_mul_f32 {q2}, {f32(1/576)}, {q2}")
    rbf(sm, sm); rbf(q2, q2)
    a(f"v_add_f32 {q2}, {f32(1e-5)}, {q2}"); rbf(q2, q2)
    a(f"v_sqrt_f32 {q2}, {q2}"); rbf(q2, q2)
    a(f"v_rcp_f32 {q2}, {q2}")
    for i in range(9):
        lo, hi = f"v{T[3]}", f"v{T[4]}"
        a(f"v_lshlrev_b32 {lo}, 16, v{S+i}"); a(f"v_and_b32 {hi}, {HI}, v{S+i}")
        a(f"v_sub_f32 {lo}, {lo}, {sm}"); a(f"v_sub_f32 {hi}, {hi}, {sm}")
        a(f"v_cvt_pk_bf16_f32 v{S+i}, {lo}, {hi}")
        a(f"v_lshlrev_b32 {lo}, 16, v{S+i}"); a(f"v_and_b32 {hi}, {HI}, v{S+i}")
        a(f"v_mul_f32 {lo}, {lo}, {q2}"); a(f"v_mul_f32 {hi}, {hi}, {q2}")
        a(f"v_cvt_pk_bf16_f32 v{S+i}, {lo}, {hi}")
    a("s_mov_b32 s72, 0x01000100"); a("s_mov_b32 s73, 0x03020302")
    a("s_waitcnt lgkmcnt(0)")
    tag_setup()
    a(f"s_lshl_b32 s3, {HEAD}, 13"); a(f"s_add_u32 s3, s3, {Q0}"); a(f"v_add_u32 {VL}, s3, {VKV}")
    a(f"s_lshl_b32 s62, {SPLIT}, 10")
    a("s_mov_b32 s74, 0xff00ff00"); a("s_mov_b32 s75, 0xff00ff00")
    for t in range(18):
        b = B[t & 1]
        a(f"v_perm_b32 v{T[0]}, v{S+t//2}, v{S+t//2}, {'s73' if t & 1 else 's72'}")
        selector(b, f"v{T[0]}")
        a(f"s_waitcnt vmcnt({17-t+CPF})")
        mfma(WQ[t], b, first=(t == 0))
    a(f"v_mov_b32 v{B[0]+1}, {EP1}"); a(f"v_mov_b32 v{B[0]+3}, {EP1}")
    a(f"v_cndmask_b32 v{B[0]}, v{D}, v{D+2}, s[74:75]"); a(f"v_cndmask_b32 v{B[0]+2}, v{D+1}, v{D+3}, s[74:75]")
    if qfast:
        a(f"s_add_u32 s3, s62, {FAST}"); a(f"buffer_store_dwordx4 {v4(B[0])}, {VL}, {sWS}, s3 offen")
    a(f"buffer_store_dwordx4 {v4(B[0])}, {VL}, {sWS}, s62 offen sc1")
    stamp("qpub")
    if fast1:
        a("s_getreg_b32 s78, hwreg(HW_REG_XCC_ID, 0, 4)")
        a(f"s_lshl_b32 s3, {EP1}, 4"); a("s_or_b32 s3, s3, s78"); a(f"v_mov_b32 v{T[0]}, s3")
        a("s_and_b32 s3, s2, 7"); a("s_lshl_b32 s3, s3, 5"); a("s_lshr_b32 s62, s2, 3"); a("s_add_u32 s3, s3, s62")
        a("s_lshl_b32 s3, s3, 2"); a(f"s_add_u32 s3, s3, {XC}"); a(f"v_mov_b32 v{T[1]}, s3")
        a("s_mov_b64 exec, 1"); a(f"buffer_store_dword v{T[0]}, v{T[1]}, {sWS}, 0 offen sc1"); a("s_mov_b64 exec, -1")
        a(f"s_mov_b32 s61, {FAST}")
    a(f"v_lshrrev_b32 {VF}, 3, {LANE}"); a(f"v_lshlrev_b32 {VF}, 5, {VF}"); a(f"v_and_b32 v{T[1]}, 7, {LANE}"); a(f"v_lshl_add_u32 {VF}, v{T[1]}, 1, {VF}")
    a(f"s_mov_b32 s60, {FAST if qfast else 0}"); a("s_add_u32 s62, s60, 0x1000")
    if qsleep: a(f"s_sleep {qsleep}")
    a(f"s_mov_b32 {CNT}, 0x40000")
    a.label("L_pq")
    for i in range(8): a(f"buffer_load_dwordx4 {v4(WQ[i])}, {VL}, {sWS}, {'s60' if i < 4 else 's62'} offen offset:{(i & 3) * 1024} sc1")
    for i in range(8):
        a(f"s_waitcnt vmcnt({7-i})")
        a(f"v_bitop3_b32 v{T[1]}, v{WQ[i]+1}, v{WQ[i]+3}, {EP1} bitop3:0x7e")
        a(f"v_mov_b32 v{T[0]}, v{T[1]}" if i == 0 else f"v_or_b32 v{T[0]}, v{T[0]}, v{T[1]}")
    a(f"v_cmp_ne_u32 vcc, 0, v{T[0]}")
    a("s_cbranch_vccz L_pq_ok")
    if qsl2: a(f"s_sleep {qsl2}")
    if qfast: a(f"s_cmp_gt_u32 {CNT}, {0x40000 - qfast + 1}"); a("s_cselect_b32 s60, s60, 0"); a("s_add_u32 s62, s60, 0x1000")
    a(f"s_sub_u32 {CNT}, {CNT}, 1"); a(f"s_cmp_lg_u32 {CNT}, 0"); a("s_cbranch_scc1 L_pq")
    a.label("L_pq_ok")
    if diag and "polls" in names:
        i = names.index("polls"); a(f"s_sub_u32 s{80+2*i}, 0x40001, {CNT}")
    for i in range(1, 8):
        a(f"v_add_f32 v{WQ[0]}, v{WQ[0]}, v{WQ[i]}"); a(f"v_add_f32 v{WQ[0]+2}, v{WQ[0]+2}, v{WQ[i]+2}")
    a(f"v_cvt_pk_bf16_f32 v{WQ[0]}, v{WQ[0]}, v{WQ[0]+2}")
    a(f"ds_write_b16 {VF}, v{WQ[0]} offset:{L_Q}"); a(f"ds_write_b16_d16_hi {VF}, v{WQ[0]} offset:{L_Q + 16}")
    a("s_waitcnt lgkmcnt(0)")
    if thr:
        a(f"v_mov_b32 v{T[0]}, 7"); a(f"v_mov_b32 v{T[1]}, 0"); a(f"ds_write_b32 v{T[1]}, v{T[0]} offset:{L_ROLE+8}")
        a("s_waitcnt lgkmcnt(0)")
    if adapt:
        a(f"v_mov_b32 v{T[0]}, {adapt[3]}"); a(f"v_mov_b32 v{T[1]}, 0"); a(f"ds_write_b32 v{T[1]}, v{T[0]} offset:{L_ROLE+8}")
        a("s_waitcnt lgkmcnt(0)")
    stamp("qgot")
    if nb & 1: a(f"v_mov_b32 v{T[0]}, 1"); a(f"v_mov_b32 v{T[1]}, 0"); a(f"ds_write_b32 v{T[1]}, v{T[0]} offset:{L_QF}")
    else: a("s_barrier")
    def progress():
        a("s_lshr_b32 s3, s2, 3"); a("s_lshl_b32 s3, s3, 7"); a(f"s_add_u32 s72, s3, {KD}")
        a("s_and_b32 s73, s2, 7"); a("s_lshl_b32 s3, s73, 2")
        a(f"v_mov_b32 v{S+4}, {EP1}"); a(f"v_mov_b32 v{S+5}, s3"); a(f"v_lshlrev_b32 v{S+6}, 2, {LANE}")
        a("s_mov_b64 exec, 0xff"); a(f"buffer_load_dword v{S+7}, v{S+6}, {sWS}, s72 offen sc1")
        a("s_mov_b64 exec, 1"); a(f"buffer_store_dword v{S+4}, v{S+5}, {sWS}, s72 offen sc1")
        a("s_mov_b64 exec, 0xff"); a("s_waitcnt vmcnt(1)")
        a(f"v_cmp_eq_u32 vcc, {EP1}, v{S+7}"); a("s_mov_b64 exec, -1")
        if thr_par: a("s_and_b32 s3, s2, 1"); a("s_lshl_b32 s3, 0x55, s3"); a("s_and_b32 vcc_lo, vcc_lo, s3")
        a("s_bcnt1_i32_b32 s3, vcc_lo")
        a(f"v_mov_b32 v{S+4}, s3"); a(f"v_mov_b32 v{S+5}, 0"); a(f"ds_write_b32 v{S+5}, v{S+4} offset:{L_ROLE+8}")
    if thr and thr_at == "B1": progress()
    a(f"v_mov_b32 v{T[0]}, {VKV}")
    if codepf: codetouch()
    if pads:
        a("s_mov_b64 exec, 0"); a("s_cbranch_execz P_pub_0")
        a.label("L_warm1")
        a(f"s_cmp_lt_u32 {RID}, 144"); a("s_cbranch_scc1 P_ffn_0")
        a(f"s_cmp_lt_u32 {RID}, 216"); a("s_cbranch_scc1 P_wo_0")
        a("s_branch P_red_0")
        a.label("L_warm2")
        a("s_mov_b64 exec, -1")
    a(f"s_lshl_b32 s3, {HEAD}, 3"); a(f"s_add_u32 s3, s3, {SPLIT}")
    a(f"s_lshl_b32 s62, s3, 9"); a(f"s_add_u32 s62, s62, {O1}"); a(f"v_add_u32 {VW}, s62, v{T[0]}")
    a("s_lshl_b32 s62, s3, 4"); a(f"s_add_u32 s62, s62, {ML}"); a(f"v_writelane_b32 {VW}, s62, 32")
    a(f"v_and_b32 {VKV}, 0x1f0, v{T[0]}"); a(f"v_lshrrev_b32 v{T[1]}, 5, {LANE}"); a(f"v_lshl_add_u32 {VKV}, v{T[1]}, 11, {VKV}")
    HT = [Q, B[0], B[1]]
    def half_sum():
        if not trim:
            for r in range(4): a(f"v_mov_b32 v{T[r]}, v{D+r}")
        for r in range(4): a(f"v_permlane32_swap_b32 v{D+r}, v{T[r]}")
        add4(D, T[0])
    if not nb & 2: a("s_barrier")
    if dyn:
        a(f"v_mov_b32 {VL}, 1"); a(f"v_mov_b32 {VF}, 0")
        a("s_mov_b64 exec, 1")
        a(f"buffer_atomic_add {VL}, {VF}, s[96:99], 0 offen sc0 sc1")
        a("s_mov_b64 exec, -1")
    if adapt or (thr and thr_at == "B2"): progress()
    def groups_done():
        a("s_mov_b64 exec, 0xff"); a(f"buffer_load_dword v{S+7}, v{S+6}, {sWS}, 0 offen sc1"); a("s_waitcnt vmcnt(0)")
        a(f"v_bitop3_b32 v{S+7}, v{S+7}, {VTAG}, {TLOW} bitop3:0x28"); a(f"v_cmp_eq_u32 vcc, 0, v{S+7}"); a("s_mov_b64 exec, -1")
        a("s_bcnt1_i32_b32 s3, vcc_lo")
    if gate:
        assert rep2
        a("s_and_b32 s3, s2, 7"); a("s_lshl_b32 s3, s3, 15"); a(f"s_add_u32 s3, s3, {Z2R}"); a(f"v_lshl_add_u32 v{S+6}, {LANE}, 8, s3")
        groups_done()
        a(f"s_cmp_ge_u32 s3, {gate[0]}"); a("s_cselect_b32 s72, 1, 0")
        a(f"v_mov_b32 v{S+4}, s72"); a(f"v_mov_b32 v{S+5}, 0"); a(f"ds_write_b32 v{S+5}, v{S+4} offset:{L_ROLE+8}")
        if diag and "rank" in names: a(f"s_add_u32 s{80+2*names.index('rank')}, s3, 1")
    if fast1:
        a("s_and_b32 s3, s2, 7"); a("s_lshl_b32 s3, s3, 7"); a(f"s_add_u32 s60, s3, {XC}")
        a(f"v_and_b32 v{S+1}, 31, {LANE}"); a(f"v_lshlrev_b32 v{S+1}, 2, v{S+1}")
        if nb & 2: a(f"s_mov_b32 {CNT}, 5"); a.label("L_xc"); a("s_sleep 16")
        a(f"buffer_load_dword v{S}, v{S+1}, {sWS}, s60 offen sc1")
    if not nb & 2: wgmax(VM)
    if dyn:
        a("s_waitcnt vmcnt(0)")
        stamp("claim")
        a(f"v_readfirstlane_b32 {RID}, {VL}")
        a("s_mov_b64 exec, 1"); a(f"ds_write_b32 {VF}, {VL} offset:{L_ROLE}"); a("s_mov_b64 exec, -1")
        role_setup()
        a("s_waitcnt lgkmcnt(0)")
    if fast1:
        a("s_waitcnt vmcnt(0)")
        a(f"s_lshl_b32 s3, {EP1}, 4"); a("s_or_b32 s3, s3, s78")
        a(f"v_cmp_ne_u32 vcc, s3, v{S}")
        a("s_cmp_eq_u32 vcc_lo, 0"); a(f"s_cselect_b32 s3, {FAST}, 0")
        if nb & 2:
            a("s_cbranch_scc1 L_xc_ok"); a(f"s_sub_u32 {CNT}, {CNT}, 1"); a("s_cbranch_scc0 L_xc"); a.label("L_xc_ok")
        a(f"v_mov_b32 v{T[0]}, s3"); a(f"v_mov_b32 {VF}, 0"); a(f"ds_write_b32 {VF}, v{T[0]} offset:{L_ROLE+4}")
        a("s_waitcnt lgkmcnt(0)")
    a(f"v_mov_b32 {VF}, 0")
    if xb: xbar("h")
    if nb & 2:
        assert xb == 1
        wgmax(VM)
    a.mark("chain", "P_pub", "L_warm1")
    a("s_barrier")
    a(f"ds_read_b128 {v4(F[0])}, {VF} offset:{L_LW}"); a(f"ds_read_b128 {v4(F[1])}, {VF} offset:{L_LW+16}")
    stamp("b3")
    sum_parts(VKV, D, HT, 4, 512)
    add4(F[0], F[1])
    half_sum()
    a(f"v_add_f32 v{F[0]}, v{F[0]}, v{F[0]+1}"); a(f"v_add_f32 v{F[0]+2}, v{F[0]+2}, v{F[0]+3}")
    a("s_mov_b32 exec_lo, 0"); a("s_mov_b32 exec_hi, 1")
    a(f"v_add_f32 v{D+1}, v{F[0]}, v{F[0]+2}"); a(f"v_mov_b32 v{D}, {VM}"); a(f"v_mov_b32 v{D+2}, {VM}"); a(f"v_mov_b32 v{D+3}, {VM}")
    a("s_mov_b32 exec_lo, -1")
    for i in range(4): a(f"v_and_or_b32 v{D+i}, v{D+i}, {TMASK}, {VTAG}")
    if fast1: a(f"buffer_store_dwordx4 {v4(D)}, {VW}, {sWS}, s61 offen")
    a(f"buffer_store_dwordx4 {v4(D)}, {VW}, {sWS}, 0 offen sc1")
    stamp("ostore")
    a("s_mov_b64 exec, -1")
    if gate:
        a.mark("nopad", 1)
        a(f"s_sub_u32 s3, {RID}, 144"); a("s_cmp_lt_u32 s3, 72"); a("s_cbranch_scc1 L_gate_ok")
        a("s_cmp_lg_u32 s72, 0"); a("s_cbranch_scc1 L_gate_ok")
        a(f"s_mov_b32 {CNT}, 0x40000")
        a.label("L_gate")
        groups_done()
        a(f"s_cmp_ge_u32 s3, {gate[1]}"); a("s_cbranch_scc1 L_gate_ok")
        a("s_sleep 2")
        a(f"s_sub_u32 {CNT}, {CNT}, 1"); a(f"s_cmp_lg_u32 {CNT}, 0"); a("s_cbranch_scc1 L_gate")
        a.label("L_gate_ok")
        a.mark("nopad", 0)
    if pre: a(f"s_sub_u32 s3, {RID}, 144"); a("s_cmp_lt_u32 s3, 72"); a("s_cbranch_scc1 L_wo_pub")
    a("s_barrier")
    a("s_setprio 0")

    a.label("L_tail")
    stamp("tail")
    a(f"s_cmp_lt_u32 {RID}, 144"); a("s_cbranch_scc1 L_ffn")
    a(f"s_cmp_lt_u32 {RID}, 216"); a("s_cbranch_scc1 L_wo")
    if pre: b4("r")
    if t2 == "red":
        a("s_and_b32 s3, s2, 7"); a(f"s_mul_i32 s3, s3, {576*1152}")
        a("s_sub_u32 s62, s24, 27"); a(f"s_mul_i32 s62, s62, {1037*128}")
        a(f"s_sub_u32 s42, {576*1152}, s62"); a(f"s_min_u32 s42, s42, {1037*128}"); a("s_add_u32 s3, s3, s62")
        a("s_add_u32 s40, s20, s3"); a("s_addc_u32 s41, s21, 0")
        a(f"s_lshl_b32 s3, {WAVE}, 14"); a(f"v_lshl_add_u32 v{T[0]}, {LANE}, 7, s3"); a("s_movk_i32 s3, 0x2000")
        a(f"buffer_load_dword v{S+14}, v{T[0]}, s[40:43], 0 offen"); a(f"buffer_load_dword v{S+15}, v{T[0]}, s[40:43], s3 offen")
    a(f"s_cmp_lt_u32 {RID}, 252"); a("s_cbranch_scc1 L_red")
    a("s_branch L_done")
    a.mark("end")

    a.label("L_wo")
    a.mark("chain", "P_wo", "L_warm2")
    a(f"s_cmp_eq_u32 {WAVE}, 8"); a("s_cbranch_scc1 L_wo_pub")
    OA, OB, MLr = F[0], F[1], F[2]
    for i in range(EW, 8):
        if i - EW >= Ww: a(f"s_waitcnt vmcnt({Ww-1})")
        gload(i, G[i])
    a(f"s_and_b32 s3, {RID}, 7"); a("s_lshl_b32 s3, s3, 2"); a(f"s_lshr_b32 s62, {WAVE}, 1"); a("s_add_u32 s3, s3, s62")
    a(f"s_lshl_b32 s62, s3, 12"); a(f"s_and_b32 s60, {WAVE}, 1"); a("s_lshl_b32 s60, s60, 8"); a("s_add_u32 s62, s62, s60")
    a(f"s_add_u32 s62, s62, {O1}")
    a(f"v_lshrrev_b32 v{T[4]}, 4, {LANE}"); a(f"v_and_b32 v{T[5]}, 15, {LANE}")
    a(f"v_lshlrev_b32 {VKV}, 9, v{T[4]}"); a(f"v_lshl_add_u32 {VKV}, v{T[5]}, 4, {VKV}"); a(f"v_add_u32 {VKV}, s62, {VKV}")
    a("s_lshl_b32 s62, s3, 7"); a(f"s_add_u32 s62, s62, {ML}")
    a(f"v_bfe_u32 v{T[6]}, {LANE}, 3, 1"); a(f"v_lshl_add_u32 v{T[6]}, v{T[6]}, 2, v{T[4]}")
    a(f"v_lshlrev_b32 {VW}, 4, v{T[6]}"); a(f"v_add_u32 {VW}, s62, {VW}")
    part_addr(VM, True)
    a("s_mov_b32 s74, 0xff00ff00"); a("s_mov_b32 s75, 0xff00ff00")
    ld1 = lambda i, r: (f"buffer_load_dwordx4 {v4(r)}, {VW}, {sWS}, s61 offen sc1",
                        f"buffer_load_dwordx4 {v4(r)}, {VKV}, {sWS}, s61 offen sc1",
                        f"buffer_load_dwordx4 {v4(r)}, {VKV}, {sWS}, s61 offen offset:2048 sc1")[i]
    ppoll("L_p1", ld1, [MLr, OA, OB], [F[3+3*k:6+3*k] for k in range(PD1)])
    stamp("got")
    m1, l1, m2, l2, M, t = (f"v{T[i]}" for i in range(6))
    m1, l1 = f"v{MLr}", f"v{MLr+1}"
    dpp("v_max_f32", M, m1, m1, "row_ror:8"); allred_rows(M, t, "v_max_f32")
    a(f"v_sub_f32 {m1}, {m1}, {M}"); a(f"v_mul_f32 {m1}, {LOG2E}, {m1}"); a(f"v_exp_f32 {m1}, {m1}")
    a(f"v_mul_f32 {l1}, {l1}, {m1}")
    a(f"v_mov_b32_dpp {m2}, {m1} row_ror:8 row_mask:0xf bank_mask:0xf")
    dpp("v_add_f32", l1, l1, l1, "row_ror:8")
    a(f"v_cndmask_b32 {l2}, {m1}, {m2}, s[74:75]"); a(f"v_cndmask_b32 {m2}, {m2}, {m1}, s[74:75]")
    for i in range(4): a(f"v_mul_f32 v{OA+i}, v{OA+i}, {l2}")
    for i in range(4): a(f"v_fmac_f32 v{OA+i}, v{OB+i}, {m2}")
    a(f"v_mov_b32 {t}, {l1}")
    a(f"v_permlane16_swap_b32 v{OA}, v{OA+1}"); a(f"v_permlane16_swap_b32 {l1}, {t}"); a(f"v_permlane16_swap_b32 v{OA+2}, v{OA+3}")
    a(f"v_add_f32 {l1}, {l1}, {t}"); a(f"v_add_f32 v{OA}, v{OA}, v{OA+1}"); a(f"v_mov_b32 {t}, {l1}"); a(f"v_add_f32 v{OA+2}, v{OA+2}, v{OA+3}")
    a(f"v_permlane32_swap_b32 {l1}, {t}"); a(f"v_permlane32_swap_b32 v{OA}, v{OA+2}")
    a(f"v_add_f32 {l1}, {l1}, {t}"); a(f"v_add_f32 v{OA}, v{OA}, v{OA+2}")
    a(f"v_rcp_f32 {l1}, {l1}")
    a(f"v_mul_f32 v{OA}, v{OA}, {l1}")
    a(f"v_cvt_pk_bf16_f32 v{OA}, v{OA}, v{OA}")
    stamp("f2a")
    mfma_chain(8, bcast_src(f"v{OA}"), lambda t: G[t])
    stamp("f3a")
    if pre: a("s_barrier")
    setexec(TWO)
    a(f"ds_write_b128 {VM}, {v4(D)}")
    a("s_waitcnt lgkmcnt(0)"); a("s_barrier")
    a("s_branch L_done")
    a.label("L_wo_pub")
    a(f"s_and_b32 s3, {RID}, 7"); a("s_lshl_b32 s3, s3, 8"); a(f"s_lshl_b32 s62, {ROLE}, 11"); a("s_add_u32 s3, s3, s62"); a(f"s_add_u32 s3, s3, {Z2R if rep2 else Z2}")
    a(f"v_lshrrev_b32 v{T[4]}, 4, {LANE}"); a(f"v_and_b32 v{T[5]}, 15, {LANE}"); a(f"v_lshlrev_b32 v{T[5]}, 4, v{T[5]}")
    a(f"v_lshl_add_u32 {VKV}, v{T[4]}, 10, v{T[5]}")
    a(f"v_lshl_add_u32 {VW}, v{T[4]}, {15 if rep2 else 2}, v{T[5]}"); a(f"v_add_u32 {VW}, s3, {VW}")
    a(f"s_mov_b32 s62, {4*Z2S}")
    if pre: a("s_barrier")
    a("s_barrier")
    stamp("b6")
    sum_parts(VKV, D, HT, 4, 256)
    if rep2:
        for sw in ("32", "16"):
            for r in ((0, 2) if pk else range(4)): a(f"v_pk_mov_b32 v[{T[r]}:{T[r]+1}], v[{D+r}:{D+r+1}], v[{D+r}:{D+r+1}] op_sel:[0,1]" if pk else f"v_mov_b32 v{T[r]}, v{D+r}")
            for r in range(4): a(f"v_permlane{sw}_swap_b32 v{D+r}, v{T[r]}")
            add4(D, T[0])
        for r in range(4): a(f"v_and_or_b32 v{D+r}, v{D+r}, {TMASK}, {VTAG}")
        a(f"buffer_store_dwordx4 {v4(D)}, {VW}, {sWS}, 0 offen sc1")
        a(f"buffer_store_dwordx4 {v4(D)}, {VW}, {sWS}, s62 offen sc1")
    elif pub2x4:
        for sw in ("32", "16"):
            for r in range(4): a(f"v_permlane{sw}_swap_b32 v{D+r}, v{T[r]}")
            for r in range(4): a(f"v_add_f32 v{D+r}, v{D+r}, v{T[r]}")
        a("s_mov_b64 exec, 0xffff")
        for r in range(4): a(f"v_and_or_b32 v{D+r}, v{D+r}, {TMASK}, {VTAG}")
        a(f"buffer_store_dwordx4 {v4(D)}, {VW}, {sWS}, 0 offen sc1")
    else:
        rows_scatter(*(f"v{D+i}" for i in range(4)))
        a(f"v_and_or_b32 v{D}, v{D}, {TMASK}, {VTAG}")
        a(f"buffer_store_dword v{D}, {VW}, {sWS}, 0 offen sc1")
    stamp("pub")
    a("s_branch L_done")

    a.mark("end")
    a.label("L_ffn")
    a.mark("chain", "P_ffn", "L_warm2")
    W13 = F[0:8]; ZA, ZB = F[9], F[10]; HX = F[11]
    AD = f"v[{HX}:{HX+1}]"
    a(f"s_mov_b32 s54, {0 if now13 > 1 else 32*1152}")
    G2 = G + [F[8], F[14], F[15], F[16]]
    def w2loads(tag):
        a(f"s_cmp_ge_u32 {WAVE}, 4"); a(f"s_cbranch_scc1 L_w2{tag}")
        for t in range(4):
            for b in range(3):
                so = (("0", "s76"), ("0", "s76"), ("s12", "s13"))[b][t >> 1]
                a(f"buffer_load_dwordx4 {v4(G2[4*b+t])}, {VG}, {sG}, {so} offen offset:{(t & 1) * 2304 + 512 * b} {wpol}")
        a.label(f"L_w2{tag}")
    a(f"s_cmp_eq_u32 {WAVE}, 0"); a("s_cselect_b32 s12, 0, 0x40000000"); a("s_add_u32 s13, s12, s76")
    a(f"v_lshrrev_b32 v{T[4]}, 4, {LANE}"); a(f"v_bfe_u32 v{T[5]}, {LANE}, 3, 1"); a(f"v_lshl_add_u32 v{T[6]}, v{T[4]}, 3, v{T[5]}")
    a(f"s_lshl_b32 s3, {WAVE}, 6"); a(f"v_add_u32 v{T[6]}, s3, v{T[6]}"); a(f"v_mul_u32_u24 v{T[6]}, 9216, v{T[6]}")
    a(f"v_and_b32 v{T[7]}, 3, {LANE}"); a(f"v_lshl_add_u32 v{T[6]}, v{T[7]}, 4, v{T[6]}")
    a(f"s_lshl_b32 s62, {ROLE}, 6"); a(f"v_add_u32 v{T[6]}, s62, v{T[6]}")
    a("s_mov_b32 s74, 0xf0f0f0f0"); a("s_mov_b32 s75, 0xf0f0f0f0")
    a(f"v_mov_b32 v{HX}, s16"); a(f"v_mov_b32 v{HX+1}, s17"); a(f"v_mov_b32 v{HX+2}, s18"); a(f"v_mov_b32 v{HX+3}, s19")
    a(f"v_cndmask_b32 v{HX}, v{HX}, v{HX+2}, s[74:75]"); a(f"v_cndmask_b32 v{HX+1}, v{HX+1}, v{HX+3}, s[74:75]")
    a(f"v_add_co_u32 v{HX}, vcc, v{HX}, v{T[6]}"); a(f"v_addc_co_u32 v{HX+1}, vcc, 0, v{HX+1}, vcc")
    a(f"s_movk_i32 s72, {2*9216}"); a("s_mov_b32 s73, 0"); a(f"s_mov_b32 s10, {26*9216}"); a("s_mov_b32 s11, 0")
    if pre: b4("f")
    if dwait: a("s_waitcnt vmcnt(0)")
    if dwait > 1: a("s_barrier")
    for tt in range(8):
        if not now13: a(f"global_load_dwordx4 {v4(W13[tt])}, {AD}, off {wpol if dpol is None else dpol}")
        if tt < 7: a(f"v_lshl_add_u64 {AD}, {'s[10:11]' if tt == 3 else 's[72:73]'}, 0, {AD}")
    a(f"v_lshl_add_u32 {VL}, v{T[5]}, 2, v{T[4]}"); a(f"v_and_b32 v{T[6]}, 7, {LANE}"); a(f"v_lshl_add_u32 {VL}, {VL}, 3, v{T[6]}")
    a(f"v_add_u32 {VL}, s3, {VL}"); a(f"v_lshlrev_b32 {VL}, 1, {VL}")
    a(f"buffer_load_ushort v{HX+2}, {VL}, {sX}, 0 offen")
    def z2base():
        if rep2: a("s_and_b32 s62, s2, 7"); a("s_lshl_b32 s62, s62, 15"); a("s_add_u32 s3, s3, s62")
        a(f"s_add_u32 s3, s3, {Z2R if rep2 else Z2}")
    a(f"v_and_b32 v{T[5]}, 15, {LANE}")
    a(f"s_lshl_b32 s3, {WAVE}, 11"); z2base()
    a(f"v_lshlrev_b32 {VKV}, 8, v{T[4]}"); a(f"v_lshl_add_u32 {VKV}, v{T[5]}, 4, {VKV}"); a(f"v_add_u32 {VKV}, s3, {VKV}")
    part_addr(VM, True)
    a(f"v_bfe_u32 {VW}, {LANE}, 4, 1"); a(f"v_lshlrev_b32 {VW}, 2, {VW}"); a(f"s_lshl_b32 s3, {WAVE}, 3"); a(f"v_add_u32 {VW}, s3, {VW}")
    VR, VO, VS, V8 = (f"v{S+i}" for i in (1, 2, 3, 8)); E = S + 4
    a(f"v_and_b32 {V8}, 31, {LANE}"); a(f"v_lshlrev_b32 {V8}, 4, {V8}")
    a(f"v_lshrrev_b32 {VR}, 5, {LANE}"); a(f"v_lshl_add_u32 {VR}, {VR}, 11, {V8}")
    if rmaj:
        a(f"s_lshl_b32 s3, {ROLE}, 6"); a(f"s_mul_i32 s62, {WAVE}, {4*9216}"); a("s_add_u32 s3, s3, s62"); a(f"s_add_u32 s3, s3, {P3}")
        a(f"v_bfe_u32 {VO}, {LANE}, 2, 1"); a(f"v_lshl_add_u32 {VO}, v{T[4]}, 1, {VO}"); a(f"v_mul_u32_u24 {VO}, 9216, {VO}")
        a(f"v_and_b32 v{T[7]}, 3, {LANE}"); a(f"v_lshl_add_u32 {VO}, v{T[7]}, 4, {VO}"); a(f"v_add_u32 {VO}, s3, {VO}")
    else:
        a(f"s_mul_i32 s3, {ROLE}, 2304"); a(f"s_lshl_b32 s62, {WAVE}, 8"); a("s_add_u32 s3, s3, s62"); a(f"s_add_u32 s3, s3, {P3}")
        a(f"v_lshlrev_b32 {VO}, 7, v{T[4]}"); a(f"v_lshl_add_u32 {VO}, v{T[6]}, 4, {VO}"); a(f"v_add_u32 {VO}, s3, {VO}")
    a("s_mov_b32 s10, 0.5"); a("s_mov_b32 s11, 0.5")
    a(f"v_lshlrev_b32 {VS}, 3, v{T[5]}")
    def colsums(n):
        a(f"v_mov_b32 v{T[0]}, 0x3f803f80"); selector(B[0], f"v{T[0]}")
        for t in range(8):
            a(f"s_waitcnt vmcnt({n + 1 + 7 - t})")
            mfma(W13[t], B[0], first=(t == 0), dst=Q)
        stamp("wts")
        for r in range(4): a(f"v_permlane32_swap_b32 v{Q+r}, v{B[1]+r}")
        for r in range(4): dpp("v_add_f32", f"v{E+r}", f"v{B[1]+r}", f"v{Q+r}", "row_ror:8")
        if w2at == "after": a("s_waitcnt vmcnt(0)"); w2loads("a"); a("s_branch L_p2_re")
    ld2 = lambda i, r: f"buffer_load_dwordx4 {v4(r)}, {VKV}, {sWS}, 0 offen offset:{1024*i} sc1"
    if f2lds:
        VX, VY = f"v{S+9}", f"v{S+10}"
        a(f"s_lshl_b32 s3, {WAVE}, 8"); a(f"s_add_u32 s3, s3, {L_H}")
        a(f"v_and_b32 {VX}, 1, {LANE}"); a(f"v_lshl_add_u32 {VX}, v{T[4]}, 1, {VX}"); a(f"v_lshlrev_b32 {VX}, 5, {VX}")
        a(f"v_bfe_u32 v{T[7]}, {LANE}, 1, 3"); a(f"v_lshl_add_u32 {VX}, v{T[7]}, 2, {VX}"); a(f"v_add_u32 {VX}, s3, {VX}")
        a(f"v_lshrrev_b32 {VY}, 3, {LANE}"); a(f"v_lshl_add_u32 {VY}, {VY}, 5, s3")
    ppoll("L_p2", ld2, [ZA, ZB], [F[12:14]], sleep2, first=colsums)
    stamp("got")
    if w2at == "got": w2loads("g")
    add4(ZA, ZB)
    a(f"v_lshlrev_b32 v{HX+2}, 16, v{HX+2}")
    rows_scatter(*(f"v{ZA+i}" for i in range(4)))
    h, h2, hd = f"v{ZA}", f"v{ZA+1}", f"v{ZA+2}"
    if tm: rbf(h, h)
    a(f"v_add_f32 {h}, {h}, v{HX+2}")
    a(f"v_cvt_pk_bf16_f32 {hd}, {h}, {h}"); a(f"v_and_b32 {h}, {HI}, {hd}")
    stat = [lambda st=st, r=r: dpp("v_add_f32", r, r, r, f"row_ror:{st}") for st in (8, 4, 2, 1) for r in (h, h2)]
    def f2pre(t):
        if t < fill and not f2lds: stat[t]()
        if t == 4 and w2at == "mid": w2loads("m")
    if f2lds:
        a(f"ds_write_b32 {VX}, {hd}")
        a(f"ds_read_b128 {v4(ZB)}, {VY}"); a(f"ds_read_b128 {v4(Q)}, {VY} offset:16")
        a(f"v_mul_f32 {h2}, {h}, {h}")
        for f_ in stat: f_()
        fill = 8
        def lsrc(t):
            if t == 0: a("s_waitcnt lgkmcnt(1)")
            if t == 4: a("s_waitcnt lgkmcnt(0)")
        lsrc.reg = lambda t: f"v{(ZB if t < 4 else Q) + t % 4}"
        lsrc(0); selector(B[0], lsrc.reg(0))
        for t in range(8):
            if t < 7: lsrc(t + 1); selector(B[(t + 1) & 1], lsrc.reg(t + 1))
            f2pre(t)
            mfma(W13[t], B[t & 1], first=(t == 0))
    else:
        a(f"v_mul_f32 {h2}, {h}, {h}")
        mfma_chain(8, bcast_src(hd), lambda t: W13[t], pre=f2pre)
    if w2at == "end": w2loads("e")
    stamp("f2a")
    for f_ in stat[fill:]: f_()
    a(f"v_permlane16_swap_b32 {h}, {h2}"); a(f"v_add_f32 {h}, {h}, {h2}")
    a(f"v_mov_b32 {h2}, {h}"); a(f"v_permlane32_swap_b32 {h}, {h2}"); a(f"v_add_f32 {h}, {h}, {h2}")
    for r in range(4): a(f"v_permlane32_swap_b32 v{D+r}, v{E+r}")
    a("s_mov_b64 exec, 0x00010001")
    a(f"ds_write_b32 {VW}, {h} offset:{L_ST}")
    a("s_mov_b64 exec, -1")
    for r in range(4): a(f"v_add_f32_dpp v{D+r}, v{E+r}, v{D+r} row_ror:8 row_mask:0x3 bank_mask:0xf")
    setexec(PLAIN)
    a(f"ds_write_b128 {VM}, {v4(D)}")
    a("s_mov_b64 exec, -1")
    a("s_waitcnt lgkmcnt(0)"); a("s_barrier")
    stamp("b6")
    a(f"s_cmp_ge_u32 {WAVE}, 4"); a("s_cbranch_scc1 L_done")
    mu, var = f"v{T[0]}", f"v{T[1]}"
    a(f"ds_read_b64 v[{T[0]}:{T[1]}], {VS} offset:{L_ST}")
    RD = [ZA, ZB, Q, HX, E]
    for i in range(4): a(f"ds_read_b128 {v4(RD[i])}, {VR} offset:{L_P + 512*i}")
    a(f"ds_read_b128 {v4(RD[4])}, {V8} offset:{L_P + 512*8}")
    if w2at == "b6": w2loads("b")
    a("s_waitcnt lgkmcnt(5)")
    assert not tm
    p2 = lambda r: f"v[{r}:{r+1}]"
    if pk:
        adds = [lambda i=i, r=r: a(f"v_pk_add_f32 {p2(ZA+r)}, {p2(ZA+r)}, {p2(RD[i]+r)}" if i < 4 else f"v_pk_fma_f32 {p2(ZA+r)}, {p2(RD[i]+r)}, s[10:11], {p2(ZA+r)}")
                for i in range(1, 5) for r in (0, 2)]
    else:
        adds = [lambda i=i, r=r: [a(f"v_add_f32 v{ZA+q}, v{ZA+q}, v{RD[i]+q}" if i < 4 else f"v_fmac_f32 v{ZA+q}, 0.5, v{RD[i]+q}") for q in (r, r + 1)]
                for i in range(1, 5) for r in (0, 2)]
    red = lambda st: (dpp("v_add_f32", mu, mu, mu, f"row_ror:{st}"), dpp("v_add_f32", var, var, var, f"row_ror:{st}"))
    red(8); a("s_waitcnt lgkmcnt(3)"); adds[0](); red(4); adds[1](); red(2)
    a("s_waitcnt lgkmcnt(2)"); adds[2](); red(1); adds[3]()
    a(f"v_mul_f32 {mu}, {f32(1/576)}, {mu}"); a(f"v_mul_f32 {var}, {f32(1/576)}, {var}")
    a("s_waitcnt lgkmcnt(1)"); adds[4](); a(f"v_fma_f32 {var}, -{mu}, {mu}, {var}"); adds[5](); a(f"v_max_f32 {var}, 0, {var}")
    a("s_waitcnt lgkmcnt(0)"); adds[6](); a(f"v_add_f32 {var}, {f32(1e-5)}, {var}"); adds[7]()
    stamp("f3a")
    a(f"v_rsq_f32 {var}, {var}")
    a(f"v_permlane16_swap_b32 v{ZA}, v{ZA+1}"); a(f"v_permlane16_swap_b32 v{ZA+2}, v{ZA+3}")
    a(f"v_fma_f32 v{ZA}, v{ZA+1}, -{mu}, v{ZA}"); a(f"v_fma_f32 v{ZA+2}, v{ZA+3}, -{mu}, v{ZA+2}")
    a(f"v_permlane32_swap_b32 v{ZA}, v{ZA+2}"); a(f"v_add_f32 v{ZA}, v{ZA}, v{ZA+2}")
    e = [f"v{T[i]}" for i in range(4)]
    g, ot = f"v{ZA}", f"v{ZA+2}"
    a(f"v_mul_f32 {g}, {g}, {var}")
    a(f"v_mul_f32 {ot}, {f32(-1.4426950408889634)}, {g}"); a(f"v_exp_f32 {ot}, {ot}")
    dpp("v_mul_f32", g, g, g, "row_ror:8")
    a(f"v_add_f32 {ot}, 1.0, {ot}"); a(f"v_rcp_f32 {ot}, {ot}"); a(f"v_mul_f32 {g}, {g}, {ot}")
    a(f"v_cvt_pk_bf16_f32 {g}, {g}, {g}")
    stamp("f3b")
    ACC = [D, Q, E]
    src = bcast_src(g); src(0)
    for t in range(4):
        selector(B[t & 1], src.reg(t))
        if t < 3: src(t + 1)
        for b in range(3):
            a(f"s_waitcnt vmcnt({11 - 3*t - b})")
            mfma(G2[4*b+t], B[t & 1], first=(t == 0), dst=ACC[b])
    stamp("f3c")
    a(f"s_mov_b32 s10, {16*9216 if rmaj else 1024}"); a(f"s_mov_b32 s11, {32*9216 if rmaj else 2048}")
    for b in range(3):
        if b == 2: a(f"s_cmp_lg_u32 {WAVE}, 0"); a("s_cbranch_scc1 L_done")
        d = ACC[b]
        if b: a("s_mov_b64 exec, -1")
        for r in range(4): a(f"v_permlane32_swap_b32 v{d+r}, {e[r]}")
        for r in range(4): dpp("v_add_f32", f"v{d+r}", e[r], f"v{d+r}", "row_ror:8")
        for r in range(4): a(f"v_and_or_b32 v{d+r}, v{d+r}, {TMASK}, {VTAG}")
        a("s_mov_b64 exec, 0x00ff00ff")
        a(f"buffer_store_dwordx4 {v4(d)}, {VO}, {sWS}, {('0', 's10', 's11')[b]} offen sc1")
        if b == 1: stamp("pub")
    stamp("pub")
    a("s_branch L_done")

    a.mark("end")
    a.label("L_red")
    a.mark("chain", "P_red", "L_warm2")
    PA_, HH = F[0], F[1]
    a(f"s_sub_u32 {ROLE}, {RID}, 216")
    a(f"v_and_b32 v{T[4]}, 3, {LANE}"); a(f"v_lshrrev_b32 v{T[5]}, 4, {LANE}")
    a(f"s_lshr_b32 s3, {ROLE}, 1"); a("s_lshl_b32 s3, s3, 5"); a(f"s_and_b32 s62, {ROLE}, 1"); a("s_lshl_b32 s62, s62, 2"); a("s_add_u32 s3, s3, s62")
    a(f"v_lshl_add_u32 {VL}, v{T[5]}, 3, v{T[4]}"); a(f"v_add_u32 {VL}, s3, {VL}"); a(f"v_lshlrev_b32 {VL}, 1, {VL}")
    a(f"v_lshl_add_u32 {VF}, v{T[5]}, 2, v{T[4]}"); a(f"v_mul_u32_u24 {VF}, 48, {VF}")
    a(f"s_lshl_b32 s3, {WAVE}, 2"); a(f"v_add_u32 {VM}, s3, {VF}")
    a(f"s_cmp_lg_u32 {WAVE}, 0"); a("s_cbranch_scc1 L_red_h3")
    a(f"buffer_load_ushort v{Q}, {VL}, {sX}, 0 offen")
    a(f"s_lshr_b32 s62, {ROLE}, 2"); a("s_lshl_b32 s62, s62, 11"); a(f"s_and_b32 s3, {ROLE}, 3"); a("s_lshl_b32 s3, s3, 6")
    a("s_add_u32 s3, s3, s62"); z2base()
    a(f"v_bfe_u32 {VKV}, {LANE}, 2, 3"); a(f"v_lshlrev_b32 {VKV}, 8, {VKV}"); a(f"v_lshl_add_u32 {VKV}, v{T[4]}, 4, {VKV}")
    a(f"v_add_u32 {VKV}, s3, {VKV}")
    poll("L_p2r", [f"buffer_load_dwordx4 {v4(HH)}, {VKV}, {sWS}, 0 offen sc1"], [HH], 2)
    hv = [f"v{HH+i}" for i in range(4)]
    for i in range(4): a(f"v_and_b32 {hv[i]}, {TMASK}, {hv[i]}")
    rows_scatter(*hv)
    allred16(hv[:1], steps=(4, 8))
    a(f"v_mul_f32 {hv[0]}, 0.5, {hv[0]}")
    if tm: rbf(hv[0], hv[0])
    a(f"v_lshlrev_b32 v{Q}, 16, v{Q}"); a(f"v_add_f32 {hv[0]}, {hv[0]}, v{Q}"); rbf(hv[0], hv[0])
    stamp("got")
    a.label("L_red_h3")
    if rmaj:
        a(f"s_mul_i32 s3, {ROLE}, 9216"); a(f"s_lshl_b32 s62, {WAVE}, 10"); a("s_add_u32 s3, s3, s62"); a(f"s_add_u32 s3, s3, {P3}")
        a(f"v_lshl_add_u32 {VW}, {LANE}, 4, s3")
    else:
        a(f"v_lshrrev_b32 {VW}, 2, {LANE}"); a(f"s_lshl_b32 s3, {WAVE}, 4"); a(f"v_add_u32 {VW}, s3, {VW}")
        a(f"v_mul_u32_u24 {VW}, 2304, {VW}"); a(f"v_lshl_add_u32 {VW}, v{T[4]}, 4, {VW}")
        a(f"s_lshl_b32 s3, {ROLE}, 6"); a(f"s_add_u32 s3, s3, {P3}"); a(f"v_add_u32 {VW}, s3, {VW}")
    ppoll("L_p3", lambda i, r: f"buffer_load_dwordx4 {v4(r)}, {VW}, {sWS}, 0 offen sc1", [PA_], [[F[2+k]] for k in range(PD3)], sleep3, SP3)
    stamp("pub")
    pv = [f"v{PA_+i}" for i in range(4)]
    rows_scatter(*pv)
    allred16(pv[:1], steps=(4, 8))
    setexec(0x000F000F000F000F)
    a(f"ds_write_b32 {VM}, {pv[0]} offset:{L_P}")
    a("s_waitcnt lgkmcnt(0)"); a("s_barrier")
    a(f"s_cmp_lg_u32 {WAVE}, 0"); a("s_cbranch_scc1 L_done")
    a(f"ds_read_b128 {v4(PA_)}, {VF} offset:{L_P}"); a(f"ds_read_b128 {v4(B[0])}, {VF} offset:{L_P+16}"); a(f"ds_read_b32 v{B[1]}, {VF} offset:{L_P+32}")
    a("s_waitcnt lgkmcnt(1)")
    add4(PA_, B[0])
    a(f"v_add_f32 {pv[0]}, {pv[0]}, {pv[1]}"); a(f"v_add_f32 {pv[2]}, {pv[2]}, {pv[3]}")
    a("s_waitcnt lgkmcnt(0)")
    a(f"v_add_f32 {pv[0]}, {pv[0]}, v{B[1]}"); a(f"v_add_f32 {pv[0]}, {pv[0]}, {pv[2]}")
    if tm: rbf(pv[0], pv[0])
    a(f"v_add_f32 {pv[0]}, {pv[0]}, {hv[0]}")
    if delta: a(f"v_add_f32 {pv[0]}, {f32(delta)}, {pv[0]}")
    a(f"v_cvt_pk_bf16_f32 {pv[0]}, {pv[0]}, {pv[0]}")
    a(f"buffer_store_short {pv[0]}, {VL}, {sOUT}, 0 offen")
    a(f"s_cmp_lg_u32 {ROLE}, 0"); a("s_cbranch_scc1 L_done")
    a("s_mov_b64 exec, 1")
    a(f"v_mov_b32 v{T[0]}, {EP1}"); a(f"v_mov_b32 v{T[1]}, {EPOCH}")
    a(f"buffer_store_dword v{T[0]}, v{T[1]}, {sWS}, 0 offen")
    if amp:
        a("s_memrealtime s[94:95]"); a("s_waitcnt lgkmcnt(0)")
        a("s_sub_u32 s3, s94, s92"); a(f"s_mul_i32 s3, s3, {amp}"); a("s_min_u32 s3, s3, 30000")
        a.label("L_amp"); a("s_memrealtime s[90:91]"); a("s_waitcnt lgkmcnt(0)"); a("s_sub_u32 s62, s90, s94")
        a("s_cmp_lt_u32 s62, s3"); a("s_cbranch_scc1 L_amp")

    a.mark("end")
    a.label("L_done")
    if diag == 2:
        stamp("end")
        a("s_mov_b64 exec, 1"); a("s_waitcnt lgkmcnt(0)")
        a("s_mov_b32 s76, s24"); a("s_mov_b32 s77, s25"); a("s_movk_i32 s78, 256"); a("s_mov_b32 s79, 0x20000")
        a("s_not_b32 s3, s80"); a("v_mov_b32 v16, s3"); a("v_mov_b32 v17, 0")
        a("buffer_atomic_umax v16, v17, s[76:79], 0 offen sc1")
        a("v_mov_b32 v18, s80"); a("buffer_atomic_umax v18, v17, s[76:79], 0 offen offset:4 sc1")
        a("v_mov_b32 v19, s88"); a("buffer_atomic_umax v19, v17, s[76:79], 0 offen offset:8 sc1")
        a("v_mov_b32 v20, s94"); a("buffer_atomic_umax v20, v17, s[76:79], 0 offen offset:12 sc1")
        a(f"s_cmp_eq_u32 {WAVE}, 8"); a("s_cbranch_scc1 L_exit")
        a("v_mov_b32 v21, s82"); a("buffer_atomic_umax v21, v17, s[76:79], 0 offen offset:16 sc1")
        a("v_mov_b32 v22, s84"); a("buffer_atomic_umax v22, v17, s[76:79], 0 offen offset:20 sc1")
        a("v_mov_b32 v23, s86"); a("buffer_atomic_umax v23, v17, s[76:79], 0 offen offset:24 sc1")
    elif diag:
        stamp("end")
        a("s_mov_b64 exec, 1"); a("s_waitcnt lgkmcnt(0)")
        a(f"s_mul_i32 s3, {RID}, 9"); a(f"s_add_u32 s3, s3, {WAVE}"); a("s_lshl_b32 s3, s3, 5"); a(f"s_add_u32 s3, s3, {STAMP}")
        a("v_mov_b32 v28, s3")
        for i in range(8): a(f"v_mov_b32 v{16+i}, s{80+2*i}")
        a(f"buffer_store_dwordx4 v[16:19], v28, {sWS}, 0 offen"); a(f"buffer_store_dwordx4 v[20:23], v28, {sWS}, 0 offen offset:16")
    a.label("L_exit")
    a("s_endpgm")
    a.label("L_end")
    a.place_pads(pads)
    body = a.finalize()
    out = HEADER + """; One launch, 256 workgroups (one per CU) of 8 streaming waves + 1 helper wave; written with an own generator script.
;  - workgroup b owns head 4*(b&7) + ((b>>3)&3), keys 1024*(b>>5)..+1023. The helper computes LN(x) and a 72-row share of
;    q = LN(x).wq; the eight shares of a head are exchanged through d_ws while the streaming waves already fetch K.
;  - scores by v_dot2 + row reductions, softmax with the true maximum (per wave, then per workgroup, then per head),
;    p.V and all weight products by MFMA with a one-value-per-column selector operand.
;  - after the stream every workgroup takes a role: 144 SwiGLU slices (32 columns of w1/w3, 32 rows of w2; the layer norm's
;    mean enters through column sums), 72 output-projection tiles (4 heads x 64 columns), 36 final sums (16 columns).
;  - hand-offs carry a tag (launch number read from d_ws word 0, advanced at the end) in every word, so stale or random
;    workspace contents are never taken for data; every wait loop is bounded.
;  - die placement only affects speed: a same-die copy of the first hand-off is read only after the die numbers of all its
;    producers were checked at run time; single-word loads of w1/w3/w2 lines are cache prefetches; dies with an even number
;    keep two instead of four loads per wave in flight for a few steps, which evens out the shared memory links.
"""
    if diag: out += "; stamps: " + " ".join(names) + "\n"
    out += "; @launch grid=(256,1,1) block=(576,1,1) lds=9216\n"
    out += '.amdgcn_target "amdgcn-amd-amdhsa--gfx950"\n.text\n' + f".globl {KNAME}\n.p2align 8\n.type {KNAME},@function\n"
    out += body
    out += f""".section .rodata,"a"
.p2align 6
.amdhsa_kernel {KNAME}
  .amdhsa_next_free_vgpr 168
  .amdhsa_next_free_sgpr {100 if (diag or dyn or amp) else 80}
  .amdhsa_accum_offset 168
  .amdhsa_group_segment_fixed_size 0
  .amdhsa_kernarg_size 96
  .amdhsa_user_sgpr_count 2
  .amdhsa_user_sgpr_kernarg_segment_ptr 1
  .amdhsa_system_sgpr_workgroup_id_x 1
.end_amdhsa_kernel
"""
    return out

if __name__ == "__main__":
    kw = eval("dict(" + (sys.argv[2] if len(sys.argv) > 2 else "") + ")")
    open(sys.argv[1], "w").write(gen(**kw))
```
